```python
import torch

def _softmax(x, axis=-1):
    return torch.softmax(x, dim=axis)

def _gelu(x):
    return torch.nn.functional.gelu(x, approximate='tanh')

def _silu(x):
    return torch.nn.functional.silu(x)

def _sigmoid(x):
    return torch.sigmoid(x)

def _layernorm(x, axis=-1, eps=1e-05):
    m = x.mean(dim=axis, keepdim=True)
    v = x.var(dim=axis, keepdim=True, unbiased=False)
    return (x - m) / torch.sqrt(v + eps)

def _scatter_add(tgt, idx, src, axis=0):
    return tgt.clone().index_add_(axis, idx, src)

def _segment_sum(src, seg, n):
    out = torch.zeros((n,) + src.shape[1:], dtype=src.dtype)
    return out.index_add_(0, seg, src)

def _pad(x, pw):
    flat = tuple((v for pair in reversed(pw) for v in pair))
    return torch.nn.functional.pad(x, flat)
kernel_name = 'adaLN_cond__compressed_kv_cla__mixer_channel_mlp__decode'

def setup_inputs():

    _w = lambda a: (lambda t: t.to(torch.bfloat16) if t.is_floating_point() else t)(torch.as_tensor(a))

    def _A_setup():
        B, H, Sq, Sk, D, M = (1, 32, 1, 4096, 128, 512)
        Dc = 4 * D
        return {'x': _w((lambda *s: torch.randn(*s, dtype=torch.bfloat16) * 0.1)(B, Sq, M)), 'c_kv': _w((lambda *s: torch.randn(*s, dtype=torch.bfloat16) * 0.8)(B, Sk, Dc)), 'w_q': _w((lambda *s: torch.randn(*s, dtype=torch.bfloat16) * 0.8)(M, H, D) * M ** (-0.5)), 'w_uk': _w((lambda *s: torch.randn(*s, dtype=torch.bfloat16) * 0.8)(Dc, H, D) * Dc ** (-0.5)), 'w_uv': _w((lambda *s: torch.randn(*s, dtype=torch.bfloat16) * 0.8)(Dc, H, D) * Dc ** (-0.5)), 'w_o': _w((lambda *s: torch.randn(*s, dtype=torch.bfloat16) * 0.8)(H, D, M) * (H * D) ** (-0.5))}
    _A_in = _A_setup()

    def _B_setup():
        B, S, D, F = (1, 1, 512, 1376)
        return {'x': _w((lambda *s: torch.randn(*s, dtype=torch.bfloat16) * 0.1)(B, S, D)), 'w1': _w((lambda *s: torch.randn(*s, dtype=torch.bfloat16) * 3.2)(D, F) * D ** (-0.5)), 'b1': _w((lambda *s: torch.randn(*s, dtype=torch.bfloat16) * 3.2)(F)), 'w2': _w((lambda *s: torch.randn(*s, dtype=torch.bfloat16) * 3.2)(F, D) * F ** (-0.5)), 'b2': _w((lambda *s: torch.randn(*s, dtype=torch.bfloat16) * 3.2)(D))}
    _B_in = _B_setup()
    return {'A_x': _A_in['x'], 'A_c_kv': _A_in['c_kv'], 'A_w_q': _A_in['w_q'], 'A_w_uk': _A_in['w_uk'], 'A_w_uv': _A_in['w_uv'], 'A_w_o': _A_in['w_o'], 'B_x': _B_in['x'], 'B_w1': _B_in['w1'], 'B_b1': _B_in['b1'], 'B_w2': _B_in['w2'], 'B_b2': _B_in['b2'], 'c': _w((lambda *s: torch.randn(*s, dtype=torch.bfloat16) * 0.4)(1, 512) * 8.0), 'w_mod': _w((lambda *s: torch.randn(*s, dtype=torch.bfloat16) * 0.4)(512, 6 * 512) * 512 ** (-0.5) * 8.0)}

def reference(A_x, A_c_kv, A_w_q, A_w_uk, A_w_uv, A_w_o, B_x, B_w1, B_b1, B_w2, B_b2, c, w_mod):

    def _A_ref(x, c_kv, w_q, w_uk, w_uv, w_o):
        B, Sq, M = (x.shape[0], x.shape[1], x.shape[2])
        Sk = c_kv.shape[1]
        H, D = (w_q.shape[1], w_q.shape[2])
        q = torch.einsum('bqm,mhd->bhqd', x, w_q)
        k = torch.einsum('bkc,chd->bhkd', c_kv, w_uk)
        v = torch.einsum('bkc,chd->bhkd', c_kv, w_uv)
        scores = torch.einsum('bhqd,bhkd->bhqk', q, k) * D ** (-0.5)
        off = Sk - Sq
        qi = torch.arange(Sq)[:, None]
        kj = torch.arange(Sk)[None, :]
        cmask = kj <= qi + off
        scores = torch.where(cmask[None, None], scores, -1000000000.0)
        p = _softmax(scores, axis=-1)
        ctx = torch.einsum('bhqk,bhkd->bhqd', p, v)
        return torch.einsum('bhqd,hdm->bqm', ctx, w_o)

    def _B_ref(x, w1, b1, w2, b2):
        y = _layernorm(x, axis=-1)
        h = _gelu(torch.einsum('bsd,df->bsf', y, w1) + b1)
        return torch.einsum('bsf,fd->bsd', h, w2) + b2
    x = A_x
    mod = (_silu(c) @ w_mod).reshape(c.shape[0], 6, 1, -1)
    sa, ca, ga, sb, cb, gb = (mod[:, 0].clone(), mod[:, 1].clone(), mod[:, 2].clone(), mod[:, 3].clone(), mod[:, 4].clone(), mod[:, 5].clone())
    h = _layernorm(x, axis=-1) * (1 + ca) + sa
    x = x + ga * _A_ref(h, A_c_kv, A_w_q, A_w_uk, A_w_uv, A_w_o)
    h = _layernorm(x, axis=-1) * (1 + cb) + sb
    x = x + gb * _B_ref(h, B_w1, B_b1, B_w2, B_b2)
    return x
```

```python
import sys

DEBUG = "--debug" in sys.argv
OUTF = [a for a in sys.argv[1:] if not a.startswith("--")]
NAME = "adaLN_cond__compressed_kv_cla__mixer_channel_mlp__decode"
OUTF = OUTF[0] if OUTF else f"cdna_kernels/{NAME}.s"

TAG = 0x7A5C3E91
HB1, HB2, HB3, HB3ML, HB4A, HB4B, HB6 = 0x0, 0x10000, 0x100000, 0x300000, 0x400000, 0x480000, 0x500000
TS = 0x2000000
X, CKV, WQ, WUK, WUV, WO, BX, W1, B1, W2, B2, C, WMOD, OUT, DBG, WS = [16 + 2 * i for i in range(16)]
def sp(b): return f"s[{b}:{b+1}]"
LDS_BYTES = 154368
SPIN = 400000
LOG2E = 1.4426950408889634

L = []
def e(s): L.append("    " + s)
def lab(s): L.append(s + ":")
_uid = [0]
def uid(p="L"):
    _uid[0] += 1
    return f"{p}_{_uid[0]}"
def v(a, n=1): return f"v{a}" if n == 1 else f"v[{a}:{a+n-1}]"
def nop(n): e(f"s_nop {n}")
def fhex(x):
    import struct
    return "0x%08x" % struct.unpack("<I", struct.pack("<f", x))[0]

def stamp(k):
    if not DEBUG: return
    sk = uid("st")
    e("s_cmp_lg_u32 s3, 0")
    e(f"s_cbranch_scc1 {sk}")
    e("s_memrealtime s[90:91]")
    e("s_waitcnt lgkmcnt(0)")
    e("v_mov_b32 v255, s90")
    e("v_mov_b32 v254, s92")
    e(f"global_store_dword v254, v255, {sp(WS)} offset:{4*k}")
    lab(sk)

def set_exec(lo, hi):
    e(f"s_mov_b32 exec_lo, {lo:#x}")
    e(f"s_mov_b32 exec_hi, {hi:#x}")
def full_exec(): e("s_mov_b64 exec, -1")

def spin_bound():
    e("s_add_u32 s9, s9, 1")
    e(f"s_cmp_gt_u32 s9, {SPIN}")
    e("s_cbranch_scc1 L_end")

def flags_wait(t0, t1):
    lp, dn = uid("fw"), uid("fd")
    e(f"v_lshlrev_b32 {v(t0)}, 2, v1")
    lab(lp)
    e(f"global_load_dword {v(t1)}, {v(t0)}, {sp(DBG)} sc1")
    e("s_waitcnt vmcnt(0)")
    e(f"v_cmp_ne_u32 vcc, 0x01010101, {v(t1)}")
    e(f"s_cbranch_vccz {dn}")
    spin_bound()
    e("s_sleep 2")
    e(f"s_branch {lp}")
    lab(dn)

def set_flag():
    sk = uid("sf")
    e("s_cmp_lg_u32 s3, 0")
    e(f"s_cbranch_scc1 {sk}")
    e("v_mov_b32 v252, s2")
    e("v_mov_b32 v253, 1")
    set_exec(1, 0)
    e(f"global_store_byte v252, v253, {sp(DBG)} sc1")
    full_exec()
    lab(sk)

def tagcheck(units, mn, mx, retry):
    first = True
    for u in units:
        if first:
            e(f"v_min_u32 {v(mn)}, {v(u+1)}, {v(u+3)}")
            e(f"v_max_u32 {v(mx)}, {v(u+1)}, {v(u+3)}")
            first = False
        else:
            e(f"v_min3_u32 {v(mn)}, {v(mn)}, {v(u+1)}, {v(u+3)}")
            e(f"v_max3_u32 {v(mx)}, {v(mx)}, {v(u+1)}, {v(u+3)}")
    e(f"v_xor_b32 {v(mn)}, s8, {v(mn)}")
    e(f"v_xor_b32 {v(mx)}, s8, {v(mx)}")
    e(f"v_or_b32 {v(mn)}, {v(mn)}, {v(mx)}")
    e(f"v_cmp_ne_u32 vcc, 0, {v(mn)}")
    ok = uid("ok")
    e(f"s_cbranch_vccz {ok}")
    spin_bound()
    e(f"s_branch {retry}")
    lab(ok)

def hint_wait(addr_v, lo, hi, u, mn, mx):
    lp, dn = uid("hw"), uid("hd")
    set_exec(lo, hi)
    lab(lp)
    e(f"global_load_dwordx4 {v(u,4)}, {v(addr_v)}, {sp(WS)} sc1")
    e("s_waitcnt vmcnt(0)")
    e(f"v_xor_b32 {v(mn)}, s8, {v(u+1)}")
    e(f"v_xor_b32 {v(mx)}, s8, {v(u+3)}")
    e(f"v_or_b32 {v(mn)}, {v(mn)}, {v(mx)}")
    e(f"v_cmp_ne_u32 vcc, 0, {v(mn)}")
    e(f"s_cbranch_vccz {dn}")
    spin_bound()
    e("s_sleep 1")
    e(f"s_branch {lp}")
    lab(dn)
    full_exec()

def dpp(op, d, s0, s1, ctrl):
    e(f"{op}_dpp {v(d)}, {v(s0)}, {v(s1)} {ctrl} row_mask:0xf bank_mask:0xf")

def wave_red(op, a, t, half=False):
    for r in (8, 4, 2, 1):
        nop(1)
        dpp(op, a, a, a, f"row_ror:{r}")
    e(f"v_mov_b32 {v(t)}, {v(a)}")
    nop(1)
    e(f"v_permlane16_swap_b32 {v(t)}, {v(a)}")
    e(f"{op} {v(a)}, {v(a)}, {v(t)}")
    if not half:
        e(f"v_mov_b32 {v(t)}, {v(a)}")
        nop(1)
        e(f"v_permlane32_swap_b32 {v(t)}, {v(a)}")
        e(f"{op} {v(a)}, {v(a)}, {v(t)}")

def red8_to2(acc):
    for k in range(4):
        e(f"v_permlane32_swap_b32 {v(acc+2*k)}, {v(acc+2*k+1)}")
    for k in range(4):
        e(f"v_add_f32 {v(acc+2*k)}, {v(acc+2*k)}, {v(acc+2*k+1)}")
    nop(1)
    e(f"v_permlane16_swap_b32 {v(acc+0)}, {v(acc+2)}")
    e(f"v_permlane16_swap_b32 {v(acc+4)}, {v(acc+6)}")
    e(f"v_add_f32 {v(acc+0)}, {v(acc+0)}, {v(acc+2)}")
    e(f"v_add_f32 {v(acc+4)}, {v(acc+4)}, {v(acc+6)}")

def bitswap_rho(dst, t):
    e(f"v_lshrrev_b32 {v(dst)}, 5, v1")
    e(f"v_lshrrev_b32 {v(t)}, 3, v1")
    e(f"v_and_b32 {v(t)}, 2, {v(t)}")
    e(f"v_or_b32 {v(dst)}, {v(dst)}, {v(t)}")

def gemv_row8(W, nrows, vf, acc, lo, hi):
    for i in range(nrows):
        e(f"v_cvt_pk_bf16_f32 {v(lo+i)}, {v(vf+i)}, 0")
        e(f"v_cvt_pk_bf16_f32 {v(hi+i)}, 0, {v(vf+i)}")
    for i in range(nrows):
        for k in range(4):
            c0 = "0" if i == 0 else v(acc + 2 * k)
            c1 = "0" if i == 0 else v(acc + 2 * k + 1)
            e(f"v_dot2_f32_bf16 {v(acc+2*k)}, {v(W+4*i+k)}, {v(lo+i)}, {c0}")
            e(f"v_dot2_f32_bf16 {v(acc+2*k+1)}, {v(W+4*i+k)}, {v(hi+i)}, {c1}")
    nop(2)

def sadd64(dst, src, imm):
    e(f"s_add_u32 s{dst}, s{src}, {imm}")
    e(f"s_addc_u32 s{dst+1}, s{src+1}, 0")

L.append(f"; @launch grid=(256,1,1) block=(512,1,1) lds={LDS_BYTES}")
L.append('.amdgcn_target "amdgcn-amd-amdhsa--gfx950"')
L.append(".text")
L.append(f".globl {NAME}_kernel")
L.append(".p2align 8")
L.append(f".type {NAME}_kernel,@function")
lab(f"{NAME}_kernel")
e("s_cmp_ge_u32 s2, 256")
e("s_cbranch_scc1 L_end")
e("s_load_dwordx16 s[16:31], s[0:1], 0")
e("s_load_dwordx16 s[32:47], s[0:1], 64")
e("v_and_b32 v1, 63, v0")
e("v_lshrrev_b32 v2, 6, v0")
e("s_and_b32 s4, s2, 7")
e("v_readfirstlane_b32 s3, v2")
e("s_lshr_b32 s5, s2, 3")
e("s_and_b32 s6, s5, 3")
e("s_lshr_b32 s7, s5, 2")
e(f"s_mov_b32 s8, {TAG:#x}")
e("s_mov_b32 s9, 0")
for i in range(4, 8): e(f"v_mov_b32 v{i}, 0")
if DEBUG:
    e("s_lshl_b32 s92, s2, 8")
    e(f"s_add_u32 s92, s92, {TS:#x}")
e("s_lshr_b32 s48, s7, 1")
e("s_lshl_b32 s10, s4, 2")
e("s_add_u32 s48, s48, s10")
e("s_and_b32 s49, s7, 1")
e("s_waitcnt lgkmcnt(0)")
stamp(0)
e("s_cmp_eq_u32 s6, 1")
e("s_cbranch_scc1 L_roleB")
e("s_cmp_eq_u32 s6, 2")
e("s_cbranch_scc1 L_roleC")
e("s_cmp_eq_u32 s6, 3")
e("s_cbranch_scc1 L_roleA")

lab("L_roleD")
e("s_lshl_b32 s50, s7, 3")
e("s_add_u32 s50, s50, s4")
e("s_lshl_b32 s51, s4, 3")
e("s_add_u32 s51, s51, s7")
sk = uid("d")
e("s_cmp_lg_u32 s3, 0")
e(f"s_cbranch_scc1 {sk}")
e("v_lshrrev_b32 v2, 2, v1")
e("v_lshlrev_b32 v2, 12, v2")
e("v_and_b32 v3, 3, v1")
e("v_lshlrev_b32 v3, 4, v3")
e("v_add_u32 v2, v2, v3")
e("s_lshl_b32 s10, s51, 6")
e("v_add_u32 v2, s10, v2")
set_exec(0xfff, 0)
e(f"global_store_dwordx4 v2, v[4:7], {sp(WS)} sc1")
full_exec()
lab(sk)
sk = uid("d"); sk2 = uid("d")
e("s_cmp_ge_u32 s50, 43")
e(f"s_cbranch_scc1 {sk}")
e("s_cmp_ge_u32 s3, 4")
e(f"s_cbranch_scc1 {sk2}")
e("s_lshl_b32 s10, s50, 12")
e(f"s_add_u32 s10, s10, {HB6:#x}")
e("v_lshlrev_b32 v2, 4, v0")
e("v_add_u32 v2, s10, v2")
e(f"global_store_dwordx4 v2, v[4:7], {sp(WS)} sc1")
e(f"s_branch {sk2}")
lab(sk)
e("s_cmp_ge_u32 s50, 59")
e(f"s_cbranch_scc1 {sk2}")
e("s_cmp_lg_u32 s3, 1")
e(f"s_cbranch_scc1 {sk2}")
e("s_sub_u32 s10, s50, 43")
e("s_lshl_b32 s10, s10, 8")
e(f"s_add_u32 s10, s10, {HB4B:#x}")
e("v_lshlrev_b32 v2, 4, v1")
e("v_add_u32 v2, s10, v2")
set_exec(0xffff, 0)
e(f"global_store_dwordx4 v2, v[4:7], {sp(WS)} sc1")
full_exec()
lab(sk2)
e("v_lshrrev_b32 v2, 1, v1")
e("s_lshl_b32 s10, s3, 6")
e("v_add_u32 v2, s10, v2")
e("v_lshlrev_b32 v3, 1, v2")
e(f"global_load_ushort v8, v3, {sp(C)}")
e(f"global_load_ushort v9, v3, {sp(C)} offset:64")
e("s_movk_i32 s10, 6144")
e("v_mul_lo_u32 v10, v2, s10")
e("v_and_b32 v3, 1, v1")
e("v_lshlrev_b32 v3, 4, v3")
e("v_add_u32 v10, v10, v3")
e("s_lshl_b32 s10, s51, 5")
e("s_add_u32 s10, s10, 2048")
e("v_add_u32 v10, s10, v10")
e("v_add_u32 v11, 196608, v10")
for p in range(3):
    e(f"global_load_dwordx4 {v(16+8*p,4)}, v10, {sp(WMOD)} offset:{(p-1)*2048}")
    e(f"global_load_dwordx4 {v(20+8*p,4)}, v11, {sp(WMOD)} offset:{(p-1)*2048}")
e("v_lshlrev_b32 v3, 3, v0")
e("ds_write_b64 v3, v[4:5]")
bitswap_rho(48, 3)
e("v_and_b32 v3, 1, v1")
e("v_lshl_add_u32 v48, v3, 3, v48")
e("v_lshlrev_b32 v48, 2, v48")
e("s_waitcnt vmcnt(8) lgkmcnt(0)")
e("s_barrier")
set_flag()
e("s_waitcnt vmcnt(4)")
for (c_, lo, hi) in ((8, 12, 13), (9, 14, 15)):
    e(f"v_lshlrev_b32 {v(c_)}, 16, {v(c_)}")
    e(f"v_mul_f32 v3, {fhex(-LOG2E)}, {v(c_)}")
    e("v_exp_f32 v3, v3")
    nop(0)
    e("v_add_f32 v3, 1.0, v3")
    e("v_rcp_f32 v3, v3")
    nop(0)
    e(f"v_mul_f32 {v(c_)}, {v(c_)}, v3")
    e(f"v_cvt_pk_bf16_f32 {v(lo)}, {v(c_)}, 0")
    e(f"v_cvt_pk_bf16_f32 {v(hi)}, 0, {v(c_)}")
def ph1_pass(p):
    W = 16 + 8 * p
    for i in range(2):
        lo, hi = (12, 13) if i == 0 else (14, 15)
        for k in range(4):
            c0 = "0" if i == 0 else v(40 + 2 * k)
            c1 = "0" if i == 0 else v(41 + 2 * k)
            e(f"v_dot2_f32_bf16 {v(40+2*k)}, {v(W+4*i+k)}, {v(lo)}, {c0}")
            e(f"v_dot2_f32_bf16 {v(41+2*k)}, {v(W+4*i+k)}, {v(hi)}, {c1}")
    nop(2)
    red8_to2(40)
    for r in (8, 4, 2):
        nop(0)
        dpp("v_add_f32", 40, 40, 40, f"row_ror:{r}")
        dpp("v_add_f32", 44, 44, 44, f"row_ror:{r}")
    set_exec(0x00030003, 0x00030003)
    e(f"ds_add_f32 v48, v40 offset:{p*64}")
    e(f"ds_add_f32 v48, v44 offset:{p*64+16}")
    full_exec()
def ph1_pub(p0, np_):
    sk = uid("d")
    e("s_cmp_lg_u32 s3, 0")
    e(f"s_cbranch_scc1 {sk}")
    e("v_lshlrev_b32 v3, 4, v1")
    e(f"ds_read_b128 v[40:43], v3 offset:{p0*64}")
    e("v_lshrrev_b32 v2, 2, v1")
    e("v_lshlrev_b32 v2, 12, v2")
    e("v_and_b32 v3, 3, v1")
    e("v_lshlrev_b32 v3, 4, v3")
    e("v_add_u32 v2, v2, v3")
    e("s_lshl_b32 s10, s51, 6")
    e(f"s_add_u32 s10, s10, {p0*4096}")
    e("v_add_u32 v2, s10, v2")
    e("s_waitcnt lgkmcnt(0)")
    e("v_cvt_pk_bf16_f32 v44, v40, v41")
    e("v_mov_b32 v45, s8")
    e("v_cvt_pk_bf16_f32 v46, v42, v43")
    e("v_mov_b32 v47, s8")
    set_exec((1 << (4 * np_)) - 1, 0)
    e(f"global_store_dwordx4 v2, v[44:47], {sp(WS)} sc1")
    full_exec()
    lab(sk)
ph1_pass(0)
e("s_waitcnt lgkmcnt(0)")
e("s_barrier")
ph1_pub(0, 1)
stamp(1)
e("s_waitcnt vmcnt(0)")
ph1_pass(1)
ph1_pass(2)
e("s_waitcnt lgkmcnt(0)")
e("s_barrier")
ph1_pub(1, 2)
e("s_cmp_ge_u32 s50, 59")
e("s_cbranch_scc1 L_end")
e("s_cmp_ge_u32 s50, 43")
e("s_cbranch_scc1 L_reducer")

e("v_lshrrev_b32 v2, 2, v1")
e("v_lshlrev_b32 v2, 2, v2")
e("s_lshl_b32 s10, s3, 6")
e("v_add_u32 v2, s10, v2")
e("s_movk_i32 s10, 2752")
e("v_mul_lo_u32 v10, v2, s10")
e("v_and_b32 v3, 3, v1")
e("v_lshlrev_b32 v3, 4, v3")
e("v_add_u32 v10, v10, v3")
e("s_lshl_b32 s10, s50, 6")
e("v_add_u32 v10, s10, v10")
e("v_add_u32 v11, 5504, v10")
e(f"global_load_dwordx4 v[64:67], v10, {sp(W1)}")
e(f"global_load_dwordx4 v[68:71], v10, {sp(W1)} offset:2752")
e(f"global_load_dwordx4 v[72:75], v11, {sp(W1)}")
e(f"global_load_dwordx4 v[76:79], v11, {sp(W1)} offset:2752")
e("s_lshl_b32 s10, s50, 5")
e("s_lshl_b32 s11, s3, 2")
e("s_add_u32 s10, s10, s11")
e("s_lshl_b32 s11, s10, 10")
e("v_lshlrev_b32 v10, 4, v1")
e("v_add_u32 v10, s11, v10")
for i in range(4):
    e(f"global_load_dwordx4 {v(80+4*i,4)}, v10, {sp(W2)} offset:{1024*i}")
e("s_lshl_b32 s11, s10, 1")
e("v_mov_b32 v10, s11")
e(f"global_load_dwordx2 v[96:97], v10, {sp(B1)}")
flags_wait(3, 10)
e("v_lshlrev_b32 v10, 5, v1")
e("v_lshlrev_b32 v11, 2, v2")
lp = uid("g")
lab(lp)
e(f"global_load_dwordx4 v[16:19], v10, {sp(WS)} offset:{HB1+0} sc1" if False else "v_add_u32 v12, %d, v10" % (HB1 + 384 * 16))
e(f"v_add_u32 v13, {HB1 + 384*16}, v11")
e(f"global_load_dwordx4 v[16:19], v12, {sp(WS)} sc1")
e(f"global_load_dwordx4 v[20:23], v12, {sp(WS)} offset:16 sc1")
e(f"global_load_dwordx4 v[24:27], v12, {sp(WS)} offset:2048 sc1")
e(f"global_load_dwordx4 v[28:31], v12, {sp(WS)} offset:2064 sc1")
e(f"global_load_dwordx4 v[32:35], v13, {sp(WS)} sc1")
e(f"global_load_dwordx4 v[36:39], v13, {sp(WS)} offset:2048 sc1")
e("s_waitcnt vmcnt(0)")
tagcheck([16, 20, 24, 28, 32, 36], 40, 41, lp)
def unpack2(src, d):
    e(f"v_lshlrev_b32 {v(d)}, 16, {v(src)}")
    e(f"v_and_b32 {v(d+1)}, 0xffff0000, {v(src)}")
for (u, d) in ((16, 100), (20, 104), (24, 108), (28, 112), (32, 116), (36, 120)):
    unpack2(u, d); unpack2(u + 2, d + 2)
for d in list(range(108, 116)) + list(range(120, 124)):
    e(f"v_add_f32 {v(d)}, 1.0, {v(d)}")
unpack2(96, 124); unpack2(97, 126)
bitswap_rho(48, 3)
e("v_and_b32 v3, 3, v1")
e("v_lshl_add_u32 v48, v3, 3, v48")
e("v_lshlrev_b32 v48, 2, v48")
sk = uid("d")
e("s_cmp_lg_u32 s3, 0")
e(f"s_cbranch_scc1 {sk}")
e("v_lshlrev_b32 v3, 8, v1")
e(f"v_add_u32 v3, {HB4B:#x}, v3")
hint_wait(3, 0xffff, 0, 16, 40, 41)
lab(sk)
e("s_barrier")
stamp(2)
e("v_lshlrev_b32 v12, 6, v1")
e(f"v_add_u32 v12, {HB4B:#x}, v12")
e("v_lshlrev_b32 v13, 3, v2")
e(f"v_add_u32 v13, {HB4B:#x}, v13")
lp = uid("g")
lab(lp)
for i in range(4):
    e(f"global_load_dwordx4 {v(16+4*i,4)}, v12, {sp(WS)} offset:{16*i} sc1")
e(f"global_load_dwordx4 v[32:35], v13, {sp(WS)} sc1")
e(f"global_load_dwordx4 v[36:39], v13, {sp(WS)} offset:16 sc1")
e("s_waitcnt vmcnt(0)")
tagcheck([16, 20, 24, 28, 32, 36], 40, 41, lp)
xs = [16 + 2 * i for i in range(8)]
xo = [32, 34, 36, 38]
e("v_add_f32 v40, v16, v18")
for r in xs[2:]: e(f"v_add_f32 v40, v40, {v(r)}")
wave_red("v_add_f32", 40, 41)
e(f"v_mul_f32 v40, {fhex(1/512)}, v40")
for r in xs + xo: e(f"v_sub_f32 {v(r)}, {v(r)}, v40")
e("v_mul_f32 v42, v16, v16")
for r in xs[1:]: e(f"v_fmac_f32 v42, {v(r)}, {v(r)}")
wave_red("v_add_f32", 42, 41)
e(f"v_mov_b32 v41, {fhex(1e-5)}")
e(f"v_fmac_f32 v41, {fhex(1/512)}, v42")
e("v_rsq_f32 v41, v41")
nop(0)
for i, r in enumerate(xs):
    e(f"v_mul_f32 {v(r)}, {v(r)}, v41")
    e(f"v_fma_f32 {v(r)}, {v(r)}, {v(108+i)}, {v(100+i)}")
for i, r in enumerate(xo):
    e(f"v_mul_f32 {v(r)}, {v(r)}, v41")
    e(f"v_fma_f32 {v(r)}, {v(r)}, {v(120+i)}, {v(116+i)}")
e("v_add_f32 v40, v16, v18")
for r in xs[2:]: e(f"v_add_f32 v40, v40, {v(r)}")
wave_red("v_add_f32", 40, 41)
e(f"v_mul_f32 v40, {fhex(1/512)}, v40")
for r in xs + xo: e(f"v_sub_f32 {v(r)}, {v(r)}, v40")
e("v_mul_f32 v42, v16, v16")
for r in xs[1:]: e(f"v_fmac_f32 v42, {v(r)}, {v(r)}")
wave_red("v_add_f32", 42, 41)
e(f"v_mov_b32 v41, {fhex(1e-5)}")
e(f"v_fmac_f32 v41, {fhex(1/512)}, v42")
e("v_rsq_f32 v41, v41")
nop(0)
for i, r in enumerate(xo):
    e(f"v_mul_f32 {v(16+i)}, {v(r)}, v41")
gemv_row8(64, 4, 16, 40, 20, 24)
red8_to2(40)
for r in (8, 4):
    nop(0)
    dpp("v_add_f32", 40, 40, 40, f"row_ror:{r}")
    dpp("v_add_f32", 44, 44, 44, f"row_ror:{r}")
set_exec(0x000f000f, 0x000f000f)
e("ds_add_f32 v48, v40 offset:512")
e("ds_add_f32 v48, v44 offset:528")
full_exec()
e("s_waitcnt lgkmcnt(0)")
e("s_barrier")
e("s_lshl_b32 s10, s3, 4")
e("v_mov_b32 v3, s10")
e("ds_read_b128 v[16:19], v3 offset:512")
e("s_waitcnt lgkmcnt(0)")
K1 = -2 * 0.7978845608028654 * LOG2E
for i in range(4):
    r = 16 + i
    e(f"v_add_f32 {v(r)}, {v(r)}, {v(124+i)}")
    e(f"v_mul_f32 v20, {v(r)}, {v(r)}")
    e(f"v_mul_f32 v20, {fhex(0.044715)}, v20")
    e(f"v_fma_f32 v20, v20, {v(r)}, {v(r)}")
    e(f"v_mul_f32 v20, {fhex(K1)}, v20")
    e("v_exp_f32 v20, v20")
    nop(0)
    e("v_add_f32 v20, 1.0, v20")
    e("v_rcp_f32 v20, v20")
    nop(0)
    e(f"v_mul_f32 {v(r)}, {v(r)}, v20")
gemv_row8(80, 4, 16, 40, 20, 24)
e("v_lshlrev_b32 v3, 2, v1")
for t in range(8):
    e(f"ds_add_f32 v3, {v(40+t)} offset:{1024 + t*256}")
e("s_waitcnt lgkmcnt(0)")
e("s_barrier")
def publish512(ldsbase, wsbase_sgpr_expr):
    sk = uid("p")
    e("s_cmp_ge_u32 s3, 4")
    e(f"s_cbranch_scc1 {sk}")
    e("v_and_b32 v3, 3, v0")
    e("v_lshlrev_b32 v3, 9, v3")
    e("v_lshrrev_b32 v2, 2, v0")
    e("v_lshl_add_u32 v3, v2, 2, v3")
    e(f"ds_read_b32 v40, v3 offset:{ldsbase}")
    e(f"ds_read_b32 v42, v3 offset:{ldsbase+256}")
    e("v_mov_b32 v41, s8")
    e("v_mov_b32 v43, s8")
    e("v_lshlrev_b32 v2, 4, v0")
    e("v_add_u32 v2, s10, v2")
    e("s_waitcnt lgkmcnt(0)")
    e(f"global_store_dwordx4 v2, v[40:43], {sp(WS)} sc1")
    lab(sk)
e("s_lshl_b32 s10, s50, 12")
e(f"s_add_u32 s10, s10, {HB6:#x}")
publish512(1024, None)
stamp(3)
e("s_branch L_end")

lab("L_reducer")
e("s_sub_u32 s52, s50, 43")
e("v_and_b32 v2, 15, v1")
e("s_lshl_b32 s10, s52, 6")
e("v_lshl_add_u32 v3, v2, 2, s10")
e(f"global_load_dword v64, v3, {sp(X)}")
e(f"global_load_dword v65, v3, {sp(B2)}")
e("v_mov_b32 v70, v3")
flags_wait(10, 11)
e("s_lshl_b32 s10, s52, 7")
e("v_lshl_add_u32 v3, v2, 3, s10")
lp = uid("g")
lab(lp)
e(f"v_add_u32 v10, {HB1 + 512*8}, v3")
e(f"v_add_u32 v11, {HB1 + 1280*8}, v3")
e(f"global_load_dwordx2 v[16:17], v10, {sp(WS)} sc1")
e(f"global_load_dwordx2 v[18:19], v11, {sp(WS)} sc1")
e("s_waitcnt vmcnt(0)")
tagcheck([16], 40, 41, lp)
e("v_mov_b32 v66, v16")
e("v_mov_b32 v67, v18")
e("v_lshrrev_b32 v48, 5, v1")
e("v_lshl_add_u32 v48, v2, 1, v48")
e("v_lshlrev_b32 v48, 2, v48")
def red_gather(hb, nprod, ldsoff, st):
    sk = uid("r")
    e("s_cmp_lg_u32 s3, 0")
    e(f"s_cbranch_scc1 {sk}")
    e("v_lshlrev_b32 v3, 12, v1")
    e("s_lshl_b32 s10, s52, 8")
    e(f"s_add_u32 s10, s10, {hb:#x}")
    e("v_add_u32 v3, s10, v3")
    m = (1 << nprod) - 1
    hint_wait(3, m & 0xffffffff, m >> 32, 16, 40, 41)
    lab(sk)
    e("s_barrier")
    stamp(st)
    e("v_lshrrev_b32 v3, 4, v0")
    e("v_lshlrev_b32 v10, 12, v3")
    e("v_lshl_add_u32 v10, v2, 4, v10")
    e("s_lshl_b32 s10, s52, 8")
    e(f"s_add_u32 s10, s10, {hb:#x}")
    e("v_add_u32 v10, s10, v10")
    e(f"v_add_u32 v11, {32*4096}, v10")
    e(f"v_cmp_gt_u32 vcc, {nprod-32}, v3")
    e("s_mov_b64 s[12:13], vcc")
    e("v_mov_b32 v20, 0"); e("v_mov_b32 v21, s8"); e("v_mov_b32 v22, 0"); e("v_mov_b32 v23, s8")
    lp = uid("g")
    lab(lp)
    e(f"global_load_dwordx4 v[16:19], v10, {sp(WS)} sc1")
    sk = uid("r")
    e("s_cmp_eq_u64 s[12:13], 0")
    e(f"s_cbranch_scc1 {sk}")
    e("s_mov_b64 exec, s[12:13]")
    e(f"global_load_dwordx4 v[20:23], v11, {sp(WS)} sc1")
    full_exec()
    lab(sk)
    e("s_waitcnt vmcnt(0)")
    tagcheck([16, 20], 40, 41, lp)
    e("v_add_f32 v16, v16, v20")
    e("v_add_f32 v18, v18, v22")
    nop(1)
    e("v_permlane32_swap_b32 v16, v18")
    e("v_add_f32 v16, v16, v18")
    e("v_mov_b32 v17, v16")
    nop(1)
    e("v_permlane16_swap_b32 v17, v16")
    e("v_add_f32 v16, v16, v17")
    set_exec(0xffff, 0xffff)
    e(f"ds_add_f32 v48, v16 offset:{ldsoff}")
    full_exec()
    e("s_waitcnt lgkmcnt(0)")
    e("s_barrier")
red_gather(HB4A, 64, 256, 2)
e("v_lshlrev_b32 v3, 3, v2")
e("ds_read_b64 v[16:17], v3 offset:256")
unpack2(64, 24)
unpack2(66, 26)
e("s_waitcnt lgkmcnt(0)")
e("v_fma_f32 v24, v26, v16, v24")
e("v_fma_f32 v25, v27, v17, v25")
e("v_cvt_pk_bf16_f32 v24, v24, v25")
unpack2(24, 68)
sk = uid("r")
e("s_cmp_lg_u32 s3, 0")
e(f"s_cbranch_scc1 {sk}")
e("v_mov_b32 v40, v68"); e("v_mov_b32 v41, s8"); e("v_mov_b32 v42, v69"); e("v_mov_b32 v43, s8")
e("s_lshl_b32 s10, s52, 8")
e(f"s_add_u32 s10, s10, {HB4B:#x}")
e("v_lshl_add_u32 v3, v2, 4, s10")
set_exec(0xffff, 0)
e(f"global_store_dwordx4 v3, v[40:43], {sp(WS)} sc1")
full_exec()
lab(sk)
stamp(3)
red_gather(HB6, 43, 3072, 4)
e("v_lshlrev_b32 v3, 3, v2")
e("ds_read_b64 v[16:17], v3 offset:3072")
unpack2(65, 24)
unpack2(67, 26)
e("s_waitcnt lgkmcnt(0)")
e("v_add_f32 v24, v24, v16")
e("v_add_f32 v25, v25, v17")
e("v_fma_f32 v24, v26, v24, v68")
e("v_fma_f32 v25, v27, v25, v69")
e("v_cvt_pk_bf16_f32 v24, v24, v25")
sk = uid("r")
e("s_cmp_lg_u32 s3, 0")
e(f"s_cbranch_scc1 {sk}")
set_exec(0xffff, 0)
e(f"global_store_dword v70, v24, {sp(OUT)}")
full_exec()
lab(sk)
stamp(5)
e("s_branch L_end")

def gemv64(W, ldsV, ldsRED):
    e(f"ds_read_b128 v[16:19], v2 offset:{ldsV}")
    e(f"ds_read_b128 v[20:23], v2 offset:{ldsV+16}")
    e("s_waitcnt lgkmcnt(0)")
    gemv_row8(W, 8, 16, 40, 24, 32)
    red8_to2(40)
    nop(0)
    dpp("v_add_f32", 40, 40, 40, "row_ror:8")
    dpp("v_add_f32", 44, 44, 44, "row_ror:8")
    set_exec(0x00ff00ff, 0x00ff00ff)
    e(f"ds_add_f32 v48, v40 offset:{ldsRED}")
    e(f"ds_add_f32 v48, v44 offset:{ldsRED+16}")
    full_exec()
def gemv64_setup():
    e("v_lshrrev_b32 v2, 3, v1")
    e("v_lshlrev_b32 v2, 5, v2")
    e("s_lshl_b32 s10, s3, 8")
    e("v_add_u32 v2, s10, v2")
    bitswap_rho(48, 3)
    e("v_and_b32 v3, 7, v1")
    e("v_lshl_add_u32 v48, v3, 3, v48")
    e("v_lshlrev_b32 v48, 2, v48")
def load_seg64(ptr, dst):
    for i in range(8):
        sadd64(12, ptr, i * 8192)
        e(f"global_load_dwordx4 {v(dst+4*i,4)}, v10, s[12:13]")
def seg64_off():
    e("v_lshrrev_b32 v10, 3, v1")
    e("v_lshlrev_b32 v10, 16, v10")
    e("s_lshl_b32 s10, s3, 19")
    e("s_lshl_b32 s11, s48, 8")
    e("s_add_u32 s10, s10, s11")
    e("s_lshl_b32 s11, s49, 7")
    e("s_add_u32 s10, s10, s11")
    e("v_add_u32 v10, s10, v10")
    e("v_and_b32 v3, 7, v1")
    e("v_lshl_add_u32 v10, v3, 4, v10")

lab("L_roleB")
e("s_lshl_b32 s50, s48, 1")
e("s_add_u32 s50, s50, s49")
e("s_lshl_b32 s50, s50, 11")
e(f"s_add_u32 s50, s50, {HB2:#x}")
sk = uid("b")
e("s_cmp_ge_u32 s3, 2")
e(f"s_cbranch_scc1 {sk}")
e("v_lshlrev_b32 v2, 4, v0")
e("v_add_u32 v2, s50, v2")
e(f"global_store_dwordx4 v2, v[4:7], {sp(WS)} sc1")
lab(sk)
e("v_lshlrev_b32 v2, 4, v1")
e(f"global_load_dwordx4 v[128:131], v2, {sp(X)}")
e("v_and_b32 v2, 127, v0")
e("v_lshlrev_b32 v2, 3, v2")
e(f"global_load_dwordx2 v[132:133], v2, {sp(X)}")
e("v_lshrrev_b32 v14, 3, v1")
seg64_off()
load_seg64(WQ, 64)
load_seg64(WUK, 96)
e("v_lshlrev_b32 v3, 2, v1")
e("ds_write_b32 v3, v4 offset:2048")
gemv64_setup()
e("s_waitcnt vmcnt(18) lgkmcnt(0)")
e("s_barrier")
set_flag()
skB = uid("b")
e("s_cmp_ge_u32 s3, 2")
e(f"s_cbranch_scc1 {skB}")
e("s_waitcnt vmcnt(16)")
for k in range(4): unpack2(128 + k, 16 + 2 * k)
unpack2(132, 24); unpack2(133, 26)
e("v_add_f32 v40, v16, v17")
for r in range(18, 24): e(f"v_add_f32 v40, v40, {v(r)}")
wave_red("v_add_f32", 40, 41)
e(f"v_mul_f32 v40, {fhex(1/512)}, v40")
for r in range(16, 28): e(f"v_sub_f32 {v(r)}, {v(r)}, v40")
e("v_mul_f32 v42, v16, v16")
for r in range(17, 24): e(f"v_fmac_f32 v42, {v(r)}, {v(r)}")
wave_red("v_add_f32", 42, 41)
e(f"v_mov_b32 v41, {fhex(1e-5)}")
e(f"v_fmac_f32 v41, {fhex(1/512)}, v42")
e("v_rsq_f32 v41, v41")
nop(0)
for r in range(24, 28): e(f"v_mul_f32 {v(r)}, {v(r)}, v41")
flags_wait(3, 40)
e("v_lshlrev_b32 v3, 4, v0")
lp = uid("g")
lab(lp)
e(f"global_load_dwordx4 v[16:19], v3, {sp(WS)} offset:{HB1} sc1")
e(f"global_load_dwordx4 v[20:23], v3, {sp(WS)} offset:{HB1+2048} sc1")
e("s_waitcnt vmcnt(0)")
tagcheck([16, 20], 40, 41, lp)
unpack2(16, 28); unpack2(18, 30)
unpack2(20, 32); unpack2(22, 34)
for i in range(4):
    e(f"v_fma_f32 {v(32+i)}, {v(24+i)}, {v(32+i)}, {v(24+i)}")
    e(f"v_add_f32 {v(32+i)}, {v(32+i)}, {v(28+i)}")
e("ds_write_b128 v3, v[32:35]")
lab(skB)
e("s_waitcnt vmcnt(0) lgkmcnt(0)")
e("s_barrier")
stamp(1)
gemv64(64, 0, 2048)
e("s_waitcnt lgkmcnt(0)")
e("s_barrier")
e("v_and_b32 v3, 7, v1")
e("v_lshlrev_b32 v3, 5, v3")
e("ds_read_b128 v[16:19], v3 offset:2048")
e("ds_read_b128 v[20:23], v3 offset:2064")
e("s_waitcnt lgkmcnt(0)")
for k in range(4):
    e(f"v_cvt_pk_bf16_f32 {v(24+k)}, {v(16+2*k)}, {v(17+2*k)}")
for i in range(8):
    for k in range(4):
        c0 = "0" if k == 0 else v(40 + i)
        e(f"v_dot2_f32_bf16 {v(40+i)}, {v(96+4*i+k)}, {v(24+k)}, {c0}")
nop(2)
for ctrl in ("quad_perm:[1,0,3,2]", "quad_perm:[2,3,0,1]", "row_half_mirror"):
    for i in range(8):
        dpp("v_add_f32", 40 + i, 40 + i, 40 + i, ctrl)
e("v_cvt_pk_bf16_f32 v16, v40, v41")
e("v_mov_b32 v17, s8")
e("v_cvt_pk_bf16_f32 v18, v42, v43")
e("v_mov_b32 v19, s8")
e("v_cvt_pk_bf16_f32 v20, v44, v45")
e("v_mov_b32 v21, s8")
e("v_cvt_pk_bf16_f32 v22, v46, v47")
e("v_mov_b32 v23, s8")
e("v_add_u32 v3, s50, v2")
set_exec(0x01010101, 0x01010101)
e(f"global_store_dwordx4 v3, v[16:19], {sp(WS)} sc1")
e(f"global_store_dwordx4 v3, v[20:23], {sp(WS)} offset:16 sc1")
full_exec()
stamp(2)
e("s_branch L_end")

CK_ROW = 1040
QA = 128 * CK_ROW
PB = QA + 16 * CK_ROW
MX = PB + 16 * 272
lab("L_roleC")
e("v_lshrrev_b32 v2, 4, v1")
e("v_lshlrev_b32 v50, 18, v2")
e("v_and_b32 v3, 15, v1")
e("v_lshl_add_u32 v50, v3, 4, v50")
e("s_lshl_b32 s10, s49, 20")
e("s_lshl_b32 s11, s48, 11")
e("s_add_u32 s10, s10, s11")
e("s_lshl_b32 s11, s3, 8")
e("s_add_u32 s10, s10, s11")
e(f"s_add_u32 s10, s10, {HB3:#x}")
e("v_add_u32 v50, s10, v50")
for r in range(4):
    sadd64(54 + 2 * r, WS, r * 65536)
for r in range(4):
    e(f"global_store_dwordx4 v50, v[4:7], s[{54+2*r}:{55+2*r}] sc1")
e("v_lshlrev_b32 v51, 9, v1")
e("s_lshl_b32 s10, s49, 13")
e("s_lshl_b32 s11, s48, 4")
e("s_add_u32 s10, s10, s11")
e(f"s_add_u32 s10, s10, {HB3ML:#x}")
e("v_add_u32 v51, s10, v51")
sk = uid("c")
e("s_cmp_lg_u32 s3, 0")
e(f"s_cbranch_scc1 {sk}")
set_exec(0xffff, 0)
e(f"global_store_dwordx4 v51, v[4:7], {sp(WS)} sc1")
full_exec()
lab(sk)
e("v_lshlrev_b32 v2, 4, v1")
e("s_lshl_b32 s10, s48, 17")
e("s_lshl_b32 s11, s3, 14")
e("s_add_u32 s10, s10, s11")
e(f"s_add_u32 s12, s{CKV}, s10")
e(f"s_addc_u32 s13, s{CKV+1}, 0")
e(f"s_mul_i32 s11, s3, {16*CK_ROW}")
for i in range(16):
    e("s_mov_b32 m0, s11")
    if i: pass
    e("s_nop 0")
    e("global_load_lds_dwordx4 v2, s[12:13]")
    if i < 15:
        e("s_add_u32 s12, s12, 1024")
        e("s_addc_u32 s13, s13, 0")
        e(f"s_add_u32 s11, s11, {CK_ROW}")
e("v_lshlrev_b32 v3, 2, v1")
e("v_mov_b32 v2, 0xff800000")
e("v_cmp_gt_u32 vcc, 16, v1")
nop(1)
e("v_cndmask_b32 v2, 0, v2, vcc")
set_exec(0xffffffff, 0)
e(f"v_add_u32 v3, {MX}, v3")
e("ds_write_b32 v3, v2")
full_exec()
e("s_waitcnt vmcnt(16) lgkmcnt(0)")
e("s_barrier")
set_flag()
e("s_waitcnt vmcnt(0)")
e("s_barrier")
e("v_and_b32 v2, 15, v1")
e("s_lshl_b32 s10, s3, 4")
e("v_add_u32 v2, s10, v2")
e(f"s_movk_i32 s10, {CK_ROW}")
e("v_mul_lo_u32 v2, v2, s10")
e("v_lshrrev_b32 v3, 4, v1")
e("v_lshl_add_u32 v2, v3, 4, v2")
for j in range(16):
    e(f"ds_read_b128 {v(64+4*j,4)}, v2 offset:{64*j}")
e("v_lshrrev_b32 v2, 4, v1")
e("v_lshlrev_b32 v2, 3, v2")
e("v_and_b32 v3, 15, v1")
e("v_lshrrev_b32 v3, 2, v3")
e("v_add_u32 v2, v2, v3")
e("v_mul_lo_u32 v2, v2, s10")
e("v_and_b32 v3, 3, v1")
e("v_lshl_add_u32 v2, v3, 3, v2")
e("s_lshl_b32 s11, s3, 7")
e("v_add_u32 v2, s11, v2")
e(f"v_add_u32 v3, {64*CK_ROW}, v2")
for j in range(4):
    for jj in range(4):
        base = 2 if j < 2 else 3
        off = (j % 2) * 32 * CK_ROW + jj * 32
        d = 128 + (j * 4 + jj) * 4
        e(f"ds_read_b64_tr_b16 {v(d,2)}, {v(base)} offset:{off}")
        e(f"ds_read_b64_tr_b16 {v(d+2,2)}, {v(base)} offset:{off+4*CK_ROW}")
e("v_and_b32 v2, 127, v0")
e("v_lshlrev_b32 v52, 4, v2")
e("s_lshr_b32 s10, s3, 1")
e("s_lshl_b32 s11, s49, 4")
e("s_add_u32 s11, s11, s10")
e("s_lshl_b32 s11, s11, 12")
e(f"s_add_u32 s11, s11, {HB2:#x}")
e("v_add_u32 v52, s11, v52")
e(f"s_mul_i32 s10, s10, {CK_ROW}")
e("v_lshlrev_b32 v53, 3, v2")
e("v_add_u32 v53, s10, v53")
e(f"v_add_u32 v53, {QA}, v53")
for i in range(4):
    sadd64(62 + 2 * i, WS, i * 16384)
e("v_and_b32 v2, 15, v1")
e(f"s_movk_i32 s10, {CK_ROW}")
e("v_mul_lo_u32 v49, v2, s10")
e("v_lshrrev_b32 v3, 4, v1")
e("v_lshl_add_u32 v49, v3, 4, v49")
e(f"v_add_u32 v49, {QA}, v49")
e("v_lshlrev_b32 v54, 2, v2")
e(f"v_add_u32 v54, {MX}, v54")
e("s_movk_i32 s10, 272")
e("v_mul_lo_u32 v56, v2, s10")
e(f"v_add_u32 v56, {PB}, v56")
e("v_lshl_add_u32 v55, v3, 3, v56")
e("s_lshl_b32 s10, s3, 5")
e("v_add_u32 v55, s10, v55")
e("v_lshl_add_u32 v56, v3, 4, v56")
e("s_waitcnt lgkmcnt(0)")
sk = uid("c")
e("s_cmp_lg_u32 s3, 0")
e(f"s_cbranch_scc1 {sk}")
flags_wait(3, 2)
e("v_lshlrev_b32 v3, 11, v1")
e("s_lshl_b32 s10, s49, 16")
e(f"s_add_u32 s10, s10, {HB2+2032:#x}")
e("v_add_u32 v3, s10, v3")
hint_wait(3, 0xffffffff, 0, 16, 40, 41)
lab(sk)
e("s_barrier")
stamp(1)
lp = uid("g")
lab(lp)
for i in range(4):
    e(f"global_load_dwordx4 {v(16+8*i,4)}, v52, s[{62+2*i}:{63+2*i}] sc1")
    e(f"global_load_dwordx4 {v(20+8*i,4)}, v52, s[{62+2*i}:{63+2*i}] offset:2048 sc1")
e("s_waitcnt vmcnt(0)")
tagcheck([16 + 4 * i for i in range(8)], 2, 3, lp)
for i in range(4):
    a, b = 16 + 8 * i, 20 + 8 * i
    for (pa, pb, d) in ((a, b, a), (a + 2, b + 2, a + 1)):
        e(f"v_lshlrev_b32 v2, 16, {v(pa)}")
        e(f"v_lshlrev_b32 v3, 16, {v(pb)}")
        e("v_add_f32 v2, v2, v3")
        e(f"v_and_b32 v3, 0xffff0000, {v(pa)}")
        e(f"v_and_b32 v57, 0xffff0000, {v(pb)}")
        e("v_add_f32 v3, v3, v57")
        e(f"v_cvt_pk_bf16_f32 {v(d)}, v2, v3")
    e(f"ds_write_b64 v53, {v(a,2)} offset:{i*4*CK_ROW}")
e("s_waitcnt lgkmcnt(0)")
e("s_barrier")
for j in range(16):
    e(f"ds_read_b128 {v(192+4*j,4)}, v49 offset:{64*j}")
for j in range(16):
    e(f"s_waitcnt lgkmcnt({15-j})")
    c = "0" if j == 0 else "v[16:19]"
    e(f"v_mfma_f32_16x16x32_bf16 v[16:19], {v(64+4*j,4)}, {v(192+4*j,4)}, {c}")
nop(7)
SCL = 128 ** -0.5 * LOG2E
for r in range(4): e(f"v_mul_f32 {v(16+r)}, {fhex(SCL)}, {v(16+r)}")
e("v_max_f32 v20, v16, v17")
e("v_max3_f32 v20, v20, v18, v19")
e("v_mov_b32 v21, v20")
nop(1)
e("v_permlane16_swap_b32 v21, v20")
e("v_max_f32 v20, v20, v21")
e("v_mov_b32 v21, v20")
nop(1)
e("v_permlane32_swap_b32 v21, v20")
e("v_max_f32 v20, v20, v21")
set_exec(0xffff, 0)
e("ds_max_f32 v54, v20")
full_exec()
e("s_waitcnt lgkmcnt(0)")
e("s_barrier")
e("ds_read_b32 v20, v54")
e("s_waitcnt lgkmcnt(0)")
for r in range(4):
    e(f"v_sub_f32 {v(16+r)}, {v(16+r)}, v20")
for r in range(4):
    e(f"v_exp_f32 {v(16+r)}, {v(16+r)}")
nop(0)
e("v_cvt_pk_bf16_f32 v22, v16, v17")
e("v_cvt_pk_bf16_f32 v23, v18, v19")
e("ds_write_b64 v55, v[22:23]")
e("v_add_f32 v16, v16, v17")
e("v_add_f32 v18, v18, v19")
e("v_add_f32 v16, v16, v18")
e("v_mov_b32 v21, v16")
nop(1)
e("v_permlane16_swap_b32 v21, v16")
e("v_add_f32 v16, v16, v21")
e("v_mov_b32 v21, v16")
nop(1)
e("v_permlane32_swap_b32 v21, v16")
e("v_add_f32 v16, v16, v21")
set_exec(0xffff, 0)
e("ds_add_f32 v54, v16 offset:64")
full_exec()
e("s_waitcnt lgkmcnt(0)")
e("s_barrier")
for j in range(4):
    e(f"ds_read_b128 {v(192+4*j,4)}, v56 offset:{64*j}")
e("ds_read_b32 v22, v54 offset:64")
for j in range(4):
    e(f"s_waitcnt lgkmcnt({4-j})")
    for jj in range(4):
        c = "0" if j == 0 else v(24 + 4 * jj, 4)
        e(f"v_mfma_f32_16x16x32_bf16 {v(24+4*jj,4)}, {v(192+4*j,4)}, {v(128+(j*4+jj)*4,4)}, {c}")
e("v_mov_b32 v21, s8")
e("v_mov_b32 v23, s8")
e("s_waitcnt lgkmcnt(0)")
nop(7)
for r in range(4):
    d = 208 + 4 * r
    e(f"v_cvt_pk_bf16_f32 {v(d)}, {v(24+r)}, {v(28+r)}")
    e(f"v_mov_b32 {v(d+1)}, s8")
    e(f"v_cvt_pk_bf16_f32 {v(d+2)}, {v(32+r)}, {v(36+r)}")
    e(f"v_mov_b32 {v(d+3)}, s8")
    e(f"global_store_dwordx4 v50, {v(d,4)}, s[{54+2*r}:{55+2*r}] sc1")
sk = uid("c")
e("s_cmp_lg_u32 s3, 0")
e(f"s_cbranch_scc1 {sk}")
set_exec(0xffff, 0)
e(f"global_store_dwordx4 v51, v[20:23], {sp(WS)} sc1")
full_exec()
lab(sk)
stamp(2)
e("s_branch L_end")

lab("L_roleA")
e("s_lshl_b32 s50, s48, 1")
e("s_add_u32 s50, s50, s49")
e("s_lshl_b32 s50, s50, 12")
e(f"s_add_u32 s50, s50, {HB4A:#x}")
sk = uid("a")
e("s_cmp_ge_u32 s3, 4")
e(f"s_cbranch_scc1 {sk}")
e("v_lshlrev_b32 v2, 4, v0")
e("v_add_u32 v2, s50, v2")
e(f"global_store_dwordx4 v2, v[4:7], {sp(WS)} sc1")
lab(sk)
seg64_off()
load_seg64(WUV, 64)
e("s_lshl_b32 s10, s48, 7")
e("s_lshl_b32 s11, s49, 6")
e("s_add_u32 s10, s10, s11")
e("s_lshl_b32 s11, s3, 3")
e("s_add_u32 s10, s10, s11")
e("s_lshl_b32 s10, s10, 10")
e("v_lshlrev_b32 v10, 4, v1")
e("v_add_u32 v10, s10, v10")
e("v_add_u32 v11, 4096, v10")
for i in range(8):
    e(f"global_load_dwordx4 {v(96+4*i,4)}, {v(10 + i//4)}, {sp(WO)} offset:{1024*(i%4)}")
e("v_lshlrev_b32 v3, 4, v0")
e("ds_write_b128 v3, v[4:7]")
gemv64_setup()
e("s_waitcnt vmcnt(16) lgkmcnt(0)")
e("s_barrier")
set_flag()
e("v_and_b32 v3, 127, v0")
e("v_lshlrev_b32 v52, 4, v3")
e("s_lshr_b32 s51, s3, 1")
e("s_lshl_b32 s10, s48, 5")
e("s_add_u32 s10, s10, s51")
e("s_lshl_b32 s10, s10, 11")
e(f"s_add_u32 s10, s10, {HB3:#x}")
e("v_add_u32 v52, s10, v52")
for i in range(8):
    sadd64(54 + 2 * i, WS, i * 8192)
e("v_lshrrev_b32 v53, 4, v3")
e("v_lshlrev_b32 v53, 8, v53")
e("v_and_b32 v3, 15, v3")
e("v_lshl_add_u32 v53, v3, 2, v53")
sk = uid("a")
e("s_cmp_lg_u32 s3, 0")
e(f"s_cbranch_scc1 {sk}")
flags_wait(3, 16)
e("v_and_b32 v3, 31, v1")
e("v_lshlrev_b32 v3, 4, v3")
e("s_lshl_b32 s10, s48, 9")
e(f"s_add_u32 s10, s10, {HB3ML:#x}")
e("v_add_u32 v3, s10, v3")
hint_wait(3, 0xffffffff, 0xffffffff, 16, 40, 41)
e("v_mov_b32 v20, v16")
wave_red("v_max_f32", 20, 21, half=True)
e("v_sub_f32 v16, v16, v20")
e("v_exp_f32 v16, v16")
nop(0)
e("v_mul_f32 v20, v16, v18")
wave_red("v_add_f32", 20, 21, half=True)
e("v_rcp_f32 v20, v20")
nop(0)
e("v_mul_f32 v16, v16, v20")
e("v_lshlrev_b32 v3, 2, v1")
set_exec(0xffffffff, 0)
e("ds_write_b32 v3, v16 offset:2304")
full_exec()
e("s_waitcnt lgkmcnt(0)")
lab(sk)
e("s_barrier")
stamp(1)
lp = uid("g")
lab(lp)
for i in range(8):
    e(f"global_load_dwordx4 {v(16+4*i,4)}, v52, s[{54+2*i}:{55+2*i}] sc1")
e("s_lshl_b32 s10, s51, 2")
e("v_mov_b32 v3, s10")
for i in range(8):
    e(f"ds_read_b32 {v(128+i)}, v3 offset:{2304+16*i}")
e("s_waitcnt vmcnt(0) lgkmcnt(0)")
tagcheck([16 + 4 * i for i in range(8)], 2 + 134, 3 + 134, lp)
for i in range(8):
    u = 16 + 4 * i
    for (src, a) in ((u, 140), (u + 2, 142)):
        e(f"v_lshlrev_b32 v136, 16, {v(src)}")
        e(f"v_and_b32 v137, 0xffff0000, {v(src)}")
        if i == 0:
            e(f"v_mul_f32 {v(a)}, v136, {v(128+i)}")
            e(f"v_mul_f32 {v(a+1)}, v137, {v(128+i)}")
        else:
            e(f"v_fmac_f32 {v(a)}, v136, {v(128+i)}")
            e(f"v_fmac_f32 {v(a+1)}, v137, {v(128+i)}")
for jj in range(4):
    e(f"ds_add_f32 v53, {v(140+jj)} offset:{64*jj}")
e("s_waitcnt lgkmcnt(0)")
e("s_barrier")
gemv64(64, 0, 2048)
e("s_waitcnt lgkmcnt(0)")
e("s_barrier")
e("s_lshl_b32 s10, s3, 5")
e("v_mov_b32 v3, s10")
e("ds_read_b128 v[16:19], v3 offset:2048")
e("ds_read_b128 v[20:23], v3 offset:2064")
e("s_waitcnt lgkmcnt(0)")
gemv_row8(96, 8, 16, 40, 24, 32)
e("v_lshlrev_b32 v3, 2, v1")
for t in range(8):
    e(f"ds_add_f32 v3, {v(40+t)} offset:{4096 + t*256}")
e("s_waitcnt lgkmcnt(0)")
e("s_barrier")
e("s_mov_b32 s10, s50")
publish512(4096, None)
stamp(2)

lab("L_end")
e("s_endpgm")
L.append('.section .rodata,"a"')
L.append(".p2align 6")
L.append(f".amdhsa_kernel {NAME}_kernel")
L.append("  .amdhsa_next_free_vgpr 256")
L.append("  .amdhsa_next_free_sgpr 102")
L.append("  .amdhsa_accum_offset 256")
L.append("  .amdhsa_group_segment_fixed_size 0")
L.append("  .amdhsa_kernarg_size 128")
L.append("  .amdhsa_user_sgpr_count 2")
L.append("  .amdhsa_user_sgpr_kernarg_segment_ptr 1")
L.append("  .amdhsa_system_sgpr_workgroup_id_x 1")
L.append(".end_amdhsa_kernel")
open(OUTF, "w").write("\n".join(L) + "\n")
print("wrote", OUTF, len(L), "lines")
```

```python
import sys, struct

DEBUG = "--debug" in sys.argv
NODRY = "--nodry" in sys.argv
OUTF = [a for a in sys.argv[1:] if not a.startswith("--")]
NAME = "adaLN_cond__compressed_kv_cla__mixer_channel_mlp__decode"
OUTF = OUTF[0] if OUTF else f"cdna_kernels/{NAME}.s"

HB1, HB2, HB3, HB3ML, HB4A, HB4B, HB6, EPOCH = 0x0, 0x10000, 0x100000, 0x300000, 0x400000, 0x480000, 0x500000, 0x600000
TS = 0x2000000
X, CKV, WQ, WUK, WUV, WO, BX, W1, B1, W2, B2, C, WMOD, OUT, DBG, WS = [16 + 2 * i for i in range(16)]
def sp(b): return f"s[{b}:{b+1}]"
LDS_BYTES = 155136
SPIN = 400000
LOG2E = 1.4426950408889634
T0, T1 = "s8", "s93"
PM = "s[96:97]"

L = []
def e(s): L.append("    " + s)
def lab(s): L.append(s + ":")
_uid = [0]
def uid(p="L"):
    _uid[0] += 1
    return f"{p}_{_uid[0]}"
def v(a, n=1): return f"v{a}" if n == 1 else f"v[{a}:{a+n-1}]"
def nop(n): e(f"s_nop {n}")
def fhex(x): return "0x%08x" % struct.unpack("<I", struct.pack("<f", x))[0]

def stamp(k):
    if not DEBUG: return
    sk = uid("st")
    e("s_cmp_lg_u32 s3, 0")
    e(f"s_cbranch_scc1 {sk}")
    e("s_memrealtime s[90:91]")
    e("s_waitcnt lgkmcnt(0)")
    e("v_mov_b32 v255, s90")
    e("v_mov_b32 v254, s92")
    e(f"global_store_dword v254, v255, {sp(WS)} offset:{4*k}")
    lab(sk)

def set_exec(lo, hi):
    e(f"s_mov_b32 exec_lo, {lo:#x}")
    e(f"s_mov_b32 exec_hi, {hi:#x}")
def full_exec(): e("s_mov_b64 exec, -1")
def pub_exec(lo=None, hi=None):
    if lo is None:
        e(f"s_mov_b64 exec, {PM}")
    else:
        set_exec(lo, hi)
        e(f"s_and_b64 exec, exec, {PM}")

def spin_bound():
    e("s_add_u32 s9, s9, 1")
    e(f"s_cmp_gt_u32 s9, {SPIN}")
    e("s_cbranch_scc1 L_end")

def tagcheck(units, t, retry):
    us = list(units)
    if len(us) % 2: us.append(us[-1])
    first = True
    for a, b in zip(us[0::2], us[1::2]):
        for k in (0, 1):
            if first:
                e(f"v_min_u32 {v(t+2*k)}, {v(a+2+k)}, {v(b+2+k)}")
                e(f"v_max_u32 {v(t+2*k+1)}, {v(a+2+k)}, {v(b+2+k)}")
            else:
                e(f"v_min3_u32 {v(t+2*k)}, {v(t+2*k)}, {v(a+2+k)}, {v(b+2+k)}")
                e(f"v_max3_u32 {v(t+2*k+1)}, {v(t+2*k+1)}, {v(a+2+k)}, {v(b+2+k)}")
        first = False
    e(f"v_xor_b32 {v(t)}, {T0}, {v(t)}")
    e(f"v_xor_b32 {v(t+1)}, {T0}, {v(t+1)}")
    e(f"v_xor_b32 {v(t+2)}, {T1}, {v(t+2)}")
    e(f"v_xor_b32 {v(t+3)}, {T1}, {v(t+3)}")
    e(f"v_or3_b32 {v(t)}, {v(t)}, {v(t+1)}, {v(t+2)}")
    e(f"v_or_b32 {v(t)}, {v(t)}, {v(t+3)}")
    e(f"v_cmp_ne_u32 vcc, 0, {v(t)}")
    ok = uid("ok")
    e(f"s_cbranch_vccz {ok}")
    spin_bound()
    e(f"s_branch {retry}")
    lab(ok)

def hint_wait(saddr_expr_sgpr, u, sleep=4):
    lp, dn = uid("hw"), uid("hd")
    e(f"v_mov_b32 {v(u+4)}, s{saddr_expr_sgpr}")
    set_exec(1, 0)
    lab(lp)
    e(f"global_load_dwordx4 {v(u,4)}, {v(u+4)}, {sp(WS)} sc1")
    e("s_waitcnt vmcnt(0)")
    e(f"v_xor_b32 {v(u)}, {T0}, {v(u+2)}")
    e(f"v_xor_b32 {v(u+1)}, {T1}, {v(u+3)}")
    e(f"v_or_b32 {v(u)}, {v(u)}, {v(u+1)}")
    e(f"v_cmp_ne_u32 vcc, 0, {v(u)}")
    e(f"s_cbranch_vccz {dn}")
    spin_bound()
    e(f"s_sleep {sleep}")
    e(f"s_branch {lp}")
    lab(dn)
    full_exec()

def wave0_hint_barrier(sreg, u):
    sk = uid("h")
    e("s_cmp_lg_u32 s3, 0")
    e(f"s_cbranch_scc1 {sk}")
    hint_wait(sreg, u)
    lab(sk)
    e("s_barrier")

def dpp(op, d, s0, s1, ctrl):
    e(f"{op}_dpp {v(d)}, {v(s0)}, {v(s1)} {ctrl} row_mask:0xf bank_mask:0xf")

def wave_red(op, a, t, half=False):
    for r in (8, 4, 2, 1):
        nop(1)
        dpp(op, a, a, a, f"row_ror:{r}")
    e(f"v_mov_b32 {v(t)}, {v(a)}")
    nop(1)
    e(f"v_permlane16_swap_b32 {v(t)}, {v(a)}")
    e(f"{op} {v(a)}, {v(a)}, {v(t)}")
    if not half:
        e(f"v_mov_b32 {v(t)}, {v(a)}")
        nop(1)
        e(f"v_permlane32_swap_b32 {v(t)}, {v(a)}")
        e(f"{op} {v(a)}, {v(a)}, {v(t)}")

def red8_to2(acc):
    for k in range(4):
        e(f"v_permlane32_swap_b32 {v(acc+2*k)}, {v(acc+2*k+1)}")
    for k in range(4):
        e(f"v_add_f32 {v(acc+2*k)}, {v(acc+2*k)}, {v(acc+2*k+1)}")
    nop(1)
    e(f"v_permlane16_swap_b32 {v(acc+0)}, {v(acc+2)}")
    e(f"v_permlane16_swap_b32 {v(acc+4)}, {v(acc+6)}")
    e(f"v_add_f32 {v(acc+0)}, {v(acc+0)}, {v(acc+2)}")
    e(f"v_add_f32 {v(acc+4)}, {v(acc+4)}, {v(acc+6)}")

def bitswap_rho(dst, t):
    e(f"v_lshrrev_b32 {v(dst)}, 5, v1")
    e(f"v_lshrrev_b32 {v(t)}, 3, v1")
    e(f"v_and_b32 {v(t)}, 2, {v(t)}")
    e(f"v_or_b32 {v(dst)}, {v(dst)}, {v(t)}")

def gemv_row8(W, nrows, vf, acc, lo, hi):
    for i in range(nrows):
        e(f"v_cvt_pk_bf16_f32 {v(lo+i)}, {v(vf+i)}, 0")
        e(f"v_cvt_pk_bf16_f32 {v(hi+i)}, 0, {v(vf+i)}")
    for i in range(nrows):
        for k in range(4):
            c0 = "0" if i == 0 else v(acc + 2 * k)
            c1 = "0" if i == 0 else v(acc + 2 * k + 1)
            e(f"v_dot2_f32_bf16 {v(acc+2*k)}, {v(W+4*i+k)}, {v(lo+i)}, {c0}")
            e(f"v_dot2_f32_bf16 {v(acc+2*k+1)}, {v(W+4*i+k)}, {v(hi+i)}, {c1}")
    nop(2)

def sadd64(dst, src, imm):
    e(f"s_add_u32 s{dst}, s{src}, {imm}")
    e(f"s_addc_u32 s{dst+1}, s{src+1}, 0")

def unpack2(src, d):
    e(f"v_lshlrev_b32 {v(d)}, 16, {v(src)}")
    e(f"v_and_b32 {v(d+1)}, 0xffff0000, {v(src)}")

def gemv64(W, ldsV, ldsRW, nparts=1, pstride=0):
    e(f"ds_read_b128 v[16:19], v2 offset:{ldsV}")
    e(f"ds_read_b128 v[20:23], v2 offset:{ldsV+16}")
    for p in range(1, nparts):
        e(f"ds_read_b128 {v(24+8*(p-1),4)}, v2 offset:{ldsV+p*pstride}")
        e(f"ds_read_b128 {v(28+8*(p-1),4)}, v2 offset:{ldsV+p*pstride+16}")
    e("s_waitcnt lgkmcnt(0)")
    for p in range(1, nparts):
        for i in range(8):
            e(f"v_add_f32 {v(16+i)}, {v(16+i)}, {v(24+8*(p-1)+i)}")
    gemv_row8(W, 8, 16, 40, 24, 32)
    red8_to2(40)
    nop(0)
    dpp("v_add_f32", 40, 40, 40, "row_ror:8")
    dpp("v_add_f32", 44, 44, 44, "row_ror:8")
    set_exec(0x00ff00ff, 0x00ff00ff)
    e(f"ds_write_b32 v48, v40 offset:{ldsRW}")
    e(f"ds_write_b32 v48, v44 offset:{ldsRW+16}")
    full_exec()
def gemv64_setup():
    e("v_lshrrev_b32 v2, 3, v1")
    e("v_lshlrev_b32 v2, 5, v2")
    e("s_lshl_b32 s10, s3, 8")
    e("v_add_u32 v2, s10, v2")
    bitswap_rho(48, 3)
    e("v_and_b32 v3, 7, v1")
    e("v_lshl_add_u32 v48, v3, 3, v48")
    e("v_lshl_add_u32 v48, v48, 2, s10")
def sum64(ldsRW, dst):
    e("v_lshlrev_b32 v3, 2, v1")
    for w in range(8):
        e(f"ds_read_b32 {v(16+w)}, v3 offset:{ldsRW+256*w}")
    e("s_waitcnt lgkmcnt(0)")
    e("v_add_f32 v16, v16, v17"); e("v_add_f32 v18, v18, v19"); e("v_add_f32 v20, v20, v21"); e("v_add_f32 v22, v22, v23")
    e("v_add_f32 v16, v16, v18"); e("v_add_f32 v20, v20, v22")
    e(f"v_add_f32 {v(dst)}, v16, v20")
def load_seg64(ptr, dst, stride):
    for i in range(8):
        sadd64(12, ptr, i * stride)
        e(f"global_load_dwordx4 {v(dst+4*i,4)}, v10, s[12:13] nt")
def seg64_off():
    e("v_lshrrev_b32 v10, 3, v1")
    e("v_lshlrev_b32 v10, 16, v10")
    e("s_lshl_b32 s10, s3, 19")
    e("s_lshl_b32 s11, s48, 8")
    e("s_add_u32 s10, s10, s11")
    e("s_lshl_b32 s11, s49, 7")
    e("s_add_u32 s10, s10, s11")
    e("v_add_u32 v10, s10, v10")
    e("v_and_b32 v3, 7, v1")
    e("v_lshl_add_u32 v10, v3, 4, v10")
def out512_write(ldsO):
    e("v_lshlrev_b32 v3, 5, v1")
    e("s_lshl_b32 s10, s3, 11")
    e("v_add_u32 v3, s10, v3")
    e(f"ds_write_b128 v3, v[40:43] offset:{ldsO}")
    e(f"ds_write_b128 v3, v[44:47] offset:{ldsO+16}")
def publish512(ldsO, sbase):
    sk = uid("p")
    e("s_cmp_ge_u32 s3, 4")
    e(f"s_cbranch_scc1 {sk}")
    e("v_lshlrev_b32 v3, 3, v0")
    for w in range(8):
        e(f"ds_read_b64 {v(16+2*w,2)}, v3 offset:{ldsO+2048*w}")
    e(f"v_mov_b32 v42, {T0}")
    e(f"v_mov_b32 v43, {T1}")
    e("v_lshlrev_b32 v3, 4, v0")
    e(f"v_add_u32 v3, s{sbase}, v3")
    e("s_waitcnt lgkmcnt(0)")
    for o in (0, 1):
        e(f"v_add_f32 {v(16+o)}, {v(16+o)}, {v(18+o)}"); e(f"v_add_f32 {v(20+o)}, {v(20+o)}, {v(22+o)}")
        e(f"v_add_f32 {v(24+o)}, {v(24+o)}, {v(26+o)}"); e(f"v_add_f32 {v(28+o)}, {v(28+o)}, {v(30+o)}")
        e(f"v_add_f32 {v(16+o)}, {v(16+o)}, {v(20+o)}"); e(f"v_add_f32 {v(24+o)}, {v(24+o)}, {v(28+o)}")
        e(f"v_add_f32 {v(40+o)}, {v(16+o)}, {v(24+o)}")
    pub_exec()
    e(f"global_store_dwordx4 v3, v[40:43], {sp(WS)} sc1")
    full_exec()
    lab(sk)

def get_tags():
    e("v_readfirstlane_b32 s8, v253")
    nop(3)
    e("s_add_u32 s8, s8, 1")
    e("s_xor_b32 s93, s8, 0x5bd1e995")

def dry_begin(name):
    if NODRY:
        return
    e(f"s_mov_b64 {PM}, 0")
    e(f"s_branch {name}_crit")
    lab(f"{name}_ret")
    e(f"s_mov_b64 {PM}, -1")
def dry_end(name):
    if NODRY:
        return
    e(f"s_cmp_eq_u64 {PM}, 0")
    e(f"s_cbranch_scc1 {name}_ret")

L.append(f"; @launch grid=(256,1,1) block=(512,1,1) lds={LDS_BYTES}")
L.append('.amdgcn_target "amdgcn-amd-amdhsa--gfx950"')
L.append(".text")
L.append(f".globl {NAME}_kernel")
L.append(".p2align 8")
L.append(f".type {NAME}_kernel,@function")
lab(f"{NAME}_kernel")
e("s_cmp_ge_u32 s2, 256")
e("s_cbranch_scc1 L_end")
e("s_load_dwordx16 s[16:31], s[0:1], 0")
e("s_load_dwordx16 s[32:47], s[0:1], 64")
e("v_and_b32 v1, 63, v0")
e("v_lshrrev_b32 v2, 6, v0")
e("s_and_b32 s4, s2, 7")
e("v_readfirstlane_b32 s3, v2")
e("s_lshr_b32 s5, s2, 3")
e("s_and_b32 s6, s5, 3")
e("s_lshr_b32 s7, s5, 2")
e("s_mov_b32 s9, 0")
e("s_mov_b32 s8, 0")
e("s_mov_b32 s93, 0")
e(f"s_mov_b64 {PM}, -1")
if DEBUG:
    e("s_lshl_b32 s92, s2, 8")
    e(f"s_add_u32 s92, s92, {TS:#x}")
e("s_lshr_b32 s48, s7, 1")
e("s_lshl_b32 s10, s4, 2")
e("s_add_u32 s48, s48, s10")
e("s_and_b32 s49, s7, 1")
e(f"v_mov_b32 v252, {EPOCH:#x}")
e("s_waitcnt lgkmcnt(0)")
e(f"global_load_dword v253, v252, {sp(WS)} sc1")
stamp(0)
e("s_cmp_eq_u32 s6, 1")
e("s_cbranch_scc1 L_roleB")
e("s_cmp_eq_u32 s6, 2")
e("s_cbranch_scc1 L_roleC")
e("s_cmp_eq_u32 s6, 3")
e("s_cbranch_scc1 L_roleA")

lab("L_roleD")
e("s_lshl_b32 s50, s7, 3")
e("s_add_u32 s50, s50, s4")
e("s_cmp_ge_u32 s50, 48")
e("s_cbranch_scc1 L_reducer")
e("v_lshlrev_b32 v3, 1, v0")
e(f"global_load_ushort v8, v3, {sp(C)}")
e("v_lshrrev_b32 v10, 3, v1")
e("v_lshlrev_b32 v10, 3, v10")
e("s_lshl_b32 s10, s3, 6")
e("v_add_u32 v10, s10, v10")
e("s_movk_i32 s10, 6144")
e("v_mul_lo_u32 v10, v10, s10")
e("v_and_b32 v3, 7, v1")
e("v_lshl_add_u32 v10, v3, 4, v10")
e("s_lshl_b32 s10, s50, 7")
e("v_add_u32 v10, s10, v10")
load_seg64(WMOD, 64, 6144)
gemv64_setup()
dry_begin("D1")
e("s_waitcnt vmcnt(8)")
get_tags()
lab("D1_crit")
e("v_lshlrev_b32 v9, 16, v8")
e(f"v_mul_f32 v3, {fhex(-LOG2E)}, v9")
e("v_exp_f32 v3, v3")
nop(0)
e("v_add_f32 v3, 1.0, v3")
e("v_rcp_f32 v3, v3")
nop(0)
e("v_mul_f32 v9, v9, v3")
e("v_lshlrev_b32 v3, 2, v0")
e("ds_write_b32 v3, v9")
sk = uid("d")
e(f"s_cmp_eq_u64 {PM}, 0")
e(f"s_cbranch_scc1 {sk}")
e("s_waitcnt vmcnt(0)")
lab(sk)
e("s_waitcnt lgkmcnt(0)")
e("s_barrier")
gemv64(64, 0, 2048)
e("s_waitcnt lgkmcnt(0)")
e("s_barrier")
sk = uid("d")
e("s_cmp_lg_u32 s3, 0")
e(f"s_cbranch_scc1 {sk}")
sum64(2048, 24)
nop(1)
for k in range(4):
    e(f"v_mov_b32_dpp {v(28+k)}, v24 quad_perm:[{k},{k},{k},{k}] row_mask:0xf bank_mask:0xf")
e("v_cvt_pk_bf16_f32 v32, v28, v29")
e("v_cvt_pk_bf16_f32 v33, v30, v31")
e(f"v_mov_b32 v34, {T0}")
e(f"v_mov_b32 v35, {T1}")
e("s_lshl_b32 s10, s50, 8")
e("v_lshl_add_u32 v3, v1, 2, s10")
pub_exec(0x11111111, 0x11111111)
e(f"global_store_dwordx4 v3, v[32:35], {sp(WS)} sc1")
full_exec()
lab(sk)
dry_end("D1")
stamp(1)
e("s_cmp_ge_u32 s50, 43")
e("s_cbranch_scc1 L_end")

e("v_lshrrev_b32 v2, 2, v1")
e("v_lshlrev_b32 v2, 2, v2")
e("s_lshl_b32 s10, s3, 6")
e("v_add_u32 v2, s10, v2")
e("s_movk_i32 s10, 2752")
e("v_mul_lo_u32 v10, v2, s10")
e("v_and_b32 v3, 3, v1")
e("v_lshlrev_b32 v3, 4, v3")
e("v_add_u32 v10, v10, v3")
e("s_lshl_b32 s10, s50, 6")
e("v_add_u32 v10, s10, v10")
e("v_add_u32 v11, 5504, v10")
e(f"global_load_dwordx4 v[64:67], v10, {sp(W1)} nt")
e(f"global_load_dwordx4 v[68:71], v10, {sp(W1)} offset:2752 nt")
e(f"global_load_dwordx4 v[72:75], v11, {sp(W1)} nt")
e(f"global_load_dwordx4 v[76:79], v11, {sp(W1)} offset:2752 nt")
e("s_lshl_b32 s10, s50, 5")
e("s_lshl_b32 s11, s3, 2")
e("s_add_u32 s10, s10, s11")
e("s_lshl_b32 s11, s10, 10")
e("v_lshlrev_b32 v10, 4, v1")
e("v_add_u32 v10, s11, v10")
for i in range(4):
    e(f"global_load_dwordx4 {v(80+4*i,4)}, v10, {sp(W2)} offset:{1024*i} nt")
e("s_lshl_b32 s11, s10, 1")
e("v_and_b32 v10, 3, v1")
e("v_lshl_add_u32 v10, v10, 1, s11")
e(f"global_load_ushort v96, v10, {sp(B1)}")
bitswap_rho(48, 3)
e("v_and_b32 v3, 3, v1")
e("v_lshl_add_u32 v48, v3, 3, v48")
e("s_lshl_b32 s10, s3, 7")
e("v_lshl_add_u32 v48, v48, 2, s10")
e("v_bfe_u32 v49, v1, 2, 3")
e("v_lshlrev_b32 v49, 7, v49")
e("v_lshl_add_u32 v49, v3, 2, v49")
e("s_lshl_b32 s10, s3, 4")
e("v_add_u32 v49, s10, v49")
e("s_lshl_b32 s51, s50, 12")
e(f"s_add_u32 s51, s51, {HB6:#x}")
dry_begin("D5")
e("v_lshlrev_b32 v10, 5, v1")
e("v_lshlrev_b32 v11, 2, v2")
e(f"v_add_u32 v12, {HB1 + 384*16}, v10")
e(f"v_add_u32 v13, {HB1 + 384*16}, v11")
e(f"s_mov_b32 s10, {HB1 + 39*256}")
wave0_hint_barrier(10, 16)
lp = uid("g")
lab(lp)
e(f"global_load_dwordx4 v[16:19], v12, {sp(WS)} sc1")
e(f"global_load_dwordx4 v[20:23], v12, {sp(WS)} offset:16 sc1")
e(f"global_load_dwordx4 v[24:27], v12, {sp(WS)} offset:2048 sc1")
e(f"global_load_dwordx4 v[28:31], v12, {sp(WS)} offset:2064 sc1")
e(f"global_load_dwordx4 v[32:35], v13, {sp(WS)} sc1")
e(f"global_load_dwordx4 v[36:39], v13, {sp(WS)} offset:2048 sc1")
e("s_waitcnt vmcnt(0)")
tagcheck([16, 20, 24, 28, 32, 36], 40, lp)
for (u, d) in ((16, 100), (20, 104), (24, 108), (28, 112), (32, 116), (36, 120)):
    unpack2(u, d); unpack2(u + 1, d + 2)
for d in list(range(108, 116)) + list(range(120, 124)):
    e(f"v_add_f32 {v(d)}, 1.0, {v(d)}")
e("v_lshlrev_b32 v96, 16, v96")
e(f"s_mov_b32 s10, {HB4A:#x}")
wave0_hint_barrier(10, 16)
stamp(2)
e("v_lshlrev_b32 v12, 6, v1")
e(f"v_add_u32 v12, {HB4B:#x}, v12")
e("v_lshlrev_b32 v13, 3, v2")
e(f"v_add_u32 v13, {HB4B:#x}, v13")
lp = uid("g")
lab(lp)
for i in range(4):
    e(f"global_load_dwordx4 {v(16+4*i,4)}, v12, {sp(WS)} offset:{16*i} sc1")
e(f"global_load_dwordx4 v[32:35], v13, {sp(WS)} sc1")
e(f"global_load_dwordx4 v[36:39], v13, {sp(WS)} offset:16 sc1")
e("s_waitcnt vmcnt(0)")
tagcheck([16, 20, 24, 28, 32, 36], 40, lp)
stamp(8)
lab("D5_crit")
xs = [16, 17, 20, 21, 24, 25, 28, 29]
xo = [32, 33, 36, 37]
def ln_stats():
    e(f"v_add_f32 v40, {v(xs[0])}, {v(xs[1])}")
    for r in xs[2:]: e(f"v_add_f32 v40, v40, {v(r)}")
    wave_red("v_add_f32", 40, 41)
    e(f"v_mul_f32 v40, {fhex(1/512)}, v40")
    for r in xs + xo: e(f"v_sub_f32 {v(r)}, {v(r)}, v40")
    e(f"v_mul_f32 v42, {v(xs[0])}, {v(xs[0])}")
    for r in xs[1:]: e(f"v_fmac_f32 v42, {v(r)}, {v(r)}")
    wave_red("v_add_f32", 42, 41)
    e(f"v_mov_b32 v41, {fhex(1e-5)}")
    e(f"v_fmac_f32 v41, {fhex(1/512)}, v42")
    e("v_rsq_f32 v41, v41")
    nop(0)
ln_stats()
for i, r in enumerate(xs):
    e(f"v_mul_f32 {v(r)}, {v(r)}, v41")
    e(f"v_fma_f32 {v(r)}, {v(r)}, {v(108+i)}, {v(100+i)}")
for i, r in enumerate(xo):
    e(f"v_mul_f32 {v(r)}, {v(r)}, v41")
    e(f"v_fma_f32 {v(r)}, {v(r)}, {v(120+i)}, {v(116+i)}")
ln_stats()
for i, r in enumerate(xo):
    e(f"v_mul_f32 {v(16+i)}, {v(r)}, v41")
gemv_row8(64, 4, 16, 40, 20, 24)
red8_to2(40)
for r in (8, 4):
    nop(0)
    dpp("v_add_f32", 40, 40, 40, f"row_ror:{r}")
    dpp("v_add_f32", 44, 44, 44, f"row_ror:{r}")
set_exec(0x000f000f, 0x000f000f)
e("ds_write_b32 v48, v40 offset:4096")
e("ds_write_b32 v48, v44 offset:4112")
full_exec()
e("s_waitcnt lgkmcnt(0)")
e("s_barrier")
e("ds_read_b32 v24, v49 offset:4096")
e("s_waitcnt lgkmcnt(0)")
for r in (4, 8):
    nop(1)
    dpp("v_add_f32", 24, 24, 24, f"row_ror:{r}")
e("v_mov_b32 v25, v24")
nop(1)
e("v_permlane16_swap_b32 v25, v24")
e("v_add_f32 v24, v24, v25")
K1 = -2 * 0.7978845608028654 * LOG2E
e("v_add_f32 v24, v24, v96")
e("v_mul_f32 v20, v24, v24")
e(f"v_mul_f32 v20, {fhex(0.044715)}, v20")
e("v_fma_f32 v20, v20, v24, v24")
e(f"v_mul_f32 v20, {fhex(K1)}, v20")
e("v_exp_f32 v20, v20")
nop(0)
e("v_add_f32 v20, 1.0, v20")
e("v_rcp_f32 v20, v20")
nop(0)
e("v_mul_f32 v24, v24, v20")
nop(1)
for k in range(4):
    e(f"v_mov_b32_dpp {v(16+k)}, v24 quad_perm:[{k},{k},{k},{k}] row_mask:0xf bank_mask:0xf")
gemv_row8(80, 4, 16, 40, 20, 24)
out512_write(8192)
e("s_waitcnt lgkmcnt(0)")
e("s_barrier")
publish512(8192, 51)
dry_end("D5")
stamp(3)
e("s_branch L_end")

lab("L_reducer")
e("s_sub_u32 s52, s50, 48")
e("v_and_b32 v2, 15, v1")
e("s_lshl_b32 s10, s52, 8")
e(f"s_add_u32 s10, s10, {HB4B:#x}")
e("v_lshl_add_u32 v71, v2, 4, s10")
e("s_lshl_b32 s10, s52, 6")
e("v_lshl_add_u32 v70, v2, 2, s10")
e(f"global_load_dword v64, v70, {sp(X)}")
e(f"global_load_dword v65, v70, {sp(B2)}")
e("v_lshrrev_b32 v48, 5, v1")
e("v_lshl_add_u32 v48, v2, 1, v48")
e("s_lshl_b32 s10, s3, 7")
e("v_lshl_add_u32 v48, v48, 2, s10")
e("v_lshrrev_b32 v3, 4, v0")
e("v_lshlrev_b32 v72, 12, v3")
e("v_lshl_add_u32 v72, v2, 4, v72")
e("s_lshl_b32 s10, s52, 8")
e("v_add_u32 v72, s10, v72")
e("v_cmp_gt_u32 vcc, 11, v3")
e("s_mov_b64 s[54:55], vcc")
e("s_waitcnt vmcnt(0)")
get_tags()
skr = uid("d")
e("s_cmp_lg_u32 s3, 0")
e(f"s_cbranch_scc1 {skr}")
e(f"s_mov_b32 s10, {HB1 + 47*256}")
hint_wait(10, 16)
e("v_lshrrev_b32 v3, 1, v2")
e("s_lshl_b32 s10, s52, 7")
e("v_lshl_add_u32 v3, v3, 4, s10")
e(f"v_add_u32 v10, {HB1 + 256*16}, v3")
e(f"v_add_u32 v11, {HB1 + 640*16}, v3")
lp = uid("g")
lab(lp)
e(f"global_load_dwordx4 v[16:19], v10, {sp(WS)} sc1")
e(f"global_load_dwordx4 v[20:23], v11, {sp(WS)} sc1")
e("s_waitcnt vmcnt(0)")
tagcheck([16, 20], 40, lp)
e("v_and_b32 v3, 1, v2")
e("v_cmp_eq_u32 vcc, 1, v3")
nop(1)
e("v_cndmask_b32 v66, v16, v17, vcc")
e("v_cndmask_b32 v67, v20, v21, vcc")
lab(skr)
def red_gather(hb, full, ldsoff):
    e(f"v_add_u32 v10, {hb:#x}, v72")
    e(f"v_add_u32 v11, {hb + 32*4096:#x}, v72")
    if not full:
        e("v_mov_b32 v20, 0"); e("v_mov_b32 v21, 0"); e(f"v_mov_b32 v22, {T0}"); e(f"v_mov_b32 v23, {T1}")
    lp = uid("g")
    lab(lp)
    e(f"global_load_dwordx4 v[16:19], v10, {sp(WS)} sc1")
    if full:
        e(f"global_load_dwordx4 v[20:23], v11, {sp(WS)} sc1")
    else:
        sk = uid("r")
        e("s_cmp_eq_u64 s[54:55], 0")
        e(f"s_cbranch_scc1 {sk}")
        e("s_mov_b64 exec, s[54:55]")
        e(f"global_load_dwordx4 v[20:23], v11, {sp(WS)} sc1")
        full_exec()
        lab(sk)
    e("s_waitcnt vmcnt(0)")
    tagcheck([16, 20], 40, lp)
    e("v_add_f32 v16, v16, v20")
    e("v_add_f32 v17, v17, v21")
    nop(1)
    e("v_permlane32_swap_b32 v16, v17")
    e("v_add_f32 v16, v16, v17")
    e("v_mov_b32 v17, v16")
    nop(1)
    e("v_permlane16_swap_b32 v17, v16")
    e("v_add_f32 v16, v16, v17")
    set_exec(0xffff, 0xffff)
    e(f"ds_write_b32 v48, v16 offset:{ldsoff}")
    full_exec()
    e("s_waitcnt lgkmcnt(0)")
    e("s_barrier")
    e("s_cmp_lg_u32 s3, 0")
    skw = uid("rw")
    e(f"s_cbranch_scc1 {skw}")
    e("v_lshlrev_b32 v3, 3, v2")
    for w in range(8):
        e(f"ds_read_b64 {v(24+2*w,2)}, v3 offset:{ldsoff+128*w}")
    e("s_waitcnt lgkmcnt(0)")
    for o in (0, 1):
        e(f"v_add_f32 {v(24+o)}, {v(24+o)}, {v(26+o)}"); e(f"v_add_f32 {v(28+o)}, {v(28+o)}, {v(30+o)}")
        e(f"v_add_f32 {v(32+o)}, {v(32+o)}, {v(34+o)}"); e(f"v_add_f32 {v(36+o)}, {v(36+o)}, {v(38+o)}")
        e(f"v_add_f32 {v(24+o)}, {v(24+o)}, {v(28+o)}"); e(f"v_add_f32 {v(32+o)}, {v(32+o)}, {v(36+o)}")
        e(f"v_add_f32 {v(16+o)}, {v(24+o)}, {v(32+o)}")
    return skw
e(f"s_mov_b32 s10, {HB3ML:#x}")
wave0_hint_barrier(10, 16)
stamp(2)
skw = red_gather(HB4A, True, 0)
unpack2(64, 24)
unpack2(66, 26)
e("v_fma_f32 v24, v26, v16, v24")
e("v_fma_f32 v25, v27, v17, v25")
e("v_cvt_pk_bf16_f32 v24, v24, v25")
unpack2(24, 68)
e("v_mov_b32 v40, v68"); e("v_mov_b32 v41, v69"); e(f"v_mov_b32 v42, {T0}"); e(f"v_mov_b32 v43, {T1}")
set_exec(0xffff, 0)
e(f"global_store_dwordx4 v71, v[40:43], {sp(WS)} sc1")
full_exec()
lab(skw)
stamp(3)
skw = red_gather(HB6, False, 1024)
unpack2(65, 24)
unpack2(67, 26)
e("v_add_f32 v24, v24, v16")
e("v_add_f32 v25, v25, v17")
e("v_fma_f32 v24, v26, v24, v68")
e("v_fma_f32 v25, v27, v25, v69")
e("v_cvt_pk_bf16_f32 v24, v24, v25")
set_exec(0xffff, 0)
e(f"global_store_dword v70, v24, {sp(OUT)}")
e("s_cmp_lg_u32 s52, 0")
e(f"s_cbranch_scc1 {skw}")
set_exec(1, 0)
e(f"v_mov_b32 v3, {EPOCH:#x}")
e(f"v_mov_b32 v24, {T0}")
e(f"global_store_dword v3, v24, {sp(WS)} sc1")
lab(skw)
full_exec()
stamp(5)
e("s_branch L_end")

lab("L_roleB")
e("s_lshl_b32 s50, s48, 1")
e("s_add_u32 s50, s50, s49")
e("s_lshl_b32 s50, s50, 11")
e(f"s_add_u32 s50, s50, {HB2:#x}")
e("v_lshlrev_b32 v2, 4, v1")
e(f"global_load_dwordx4 v[128:131], v2, {sp(X)}")
e("v_and_b32 v2, 127, v0")
e("v_lshlrev_b32 v2, 3, v2")
e(f"global_load_dwordx2 v[132:133], v2, {sp(X)}")
seg64_off()
load_seg64(WQ, 64, 8192)
load_seg64(WUK, 96, 8192)
gemv64_setup()
dry_begin("B")
e("s_waitcnt vmcnt(16)")
get_tags()
skB = uid("b")
e("s_cmp_ge_u32 s3, 2")
e(f"s_cbranch_scc1 {skB}")
for k in range(4): unpack2(128 + k, 16 + 2 * k)
unpack2(132, 24); unpack2(133, 26)
e("v_add_f32 v40, v16, v17")
for r in range(18, 24): e(f"v_add_f32 v40, v40, {v(r)}")
wave_red("v_add_f32", 40, 41)
e(f"v_mul_f32 v40, {fhex(1/512)}, v40")
for r in range(16, 28): e(f"v_sub_f32 {v(r)}, {v(r)}, v40")
e("v_mul_f32 v42, v16, v16")
for r in range(17, 24): e(f"v_fmac_f32 v42, {v(r)}, {v(r)}")
wave_red("v_add_f32", 42, 41)
e(f"v_mov_b32 v41, {fhex(1e-5)}")
e(f"v_fmac_f32 v41, {fhex(1/512)}, v42")
e("v_rsq_f32 v41, v41")
nop(0)
for r in range(24, 28): e(f"v_mul_f32 {v(r)}, {v(r)}, v41")
stamp(5)
e("v_lshlrev_b32 v3, 4, v0")
lp = uid("g")
lab(lp)
e(f"global_load_dwordx4 v[16:19], v3, {sp(WS)} offset:{HB1} sc1")
e(f"global_load_dwordx4 v[20:23], v3, {sp(WS)} offset:{HB1+2048} sc1")
e("s_waitcnt vmcnt(0)")
tagcheck([16, 20], 40, lp)
unpack2(16, 28); unpack2(17, 30)
unpack2(20, 32); unpack2(21, 34)
for i in range(4):
    e(f"v_fma_f32 {v(32+i)}, {v(24+i)}, {v(32+i)}, {v(24+i)}")
    e(f"v_add_f32 {v(32+i)}, {v(32+i)}, {v(28+i)}")
e("ds_write_b128 v3, v[32:35]")
stamp(4)
lab(skB)
e("s_waitcnt vmcnt(0) lgkmcnt(0)")
lab("B_crit")
e("s_barrier")
stamp(1)
gemv64(64, 0, 2048)
e("s_waitcnt lgkmcnt(0)")
e("s_barrier")
sum64(2048, 24)
e("s_lshl_b32 s10, s3, 8")
e("v_add_u32 v3, s10, v3")
e("ds_write_b32 v3, v24 offset:4096")
e("v_and_b32 v3, 7, v1")
e("v_lshl_add_u32 v3, v3, 5, s10")
e("s_waitcnt lgkmcnt(0)")
e("ds_read_b128 v[16:19], v3 offset:4096")
e("ds_read_b128 v[20:23], v3 offset:4112")
e("s_waitcnt lgkmcnt(0)")
for k in range(4):
    e(f"v_cvt_pk_bf16_f32 {v(24+k)}, {v(16+2*k)}, {v(17+2*k)}")
for i in range(8):
    for k in range(4):
        c0 = "0" if k == 0 else v(40 + i)
        e(f"v_dot2_f32_bf16 {v(40+i)}, {v(96+4*i+k)}, {v(24+k)}, {c0}")
nop(2)
for ctrl in ("quad_perm:[1,0,3,2]", "quad_perm:[2,3,0,1]", "row_half_mirror"):
    for i in range(8):
        dpp("v_add_f32", 40 + i, 40 + i, 40 + i, ctrl)
e("v_cvt_pk_bf16_f32 v16, v40, v41")
e("v_cvt_pk_bf16_f32 v17, v42, v43")
e(f"v_mov_b32 v18, {T0}")
e(f"v_mov_b32 v19, {T1}")
e("v_cvt_pk_bf16_f32 v20, v44, v45")
e("v_cvt_pk_bf16_f32 v21, v46, v47")
e(f"v_mov_b32 v22, {T0}")
e(f"v_mov_b32 v23, {T1}")
e("v_add_u32 v3, s50, v2")
pub_exec(0x01010101, 0x01010101)
e(f"global_store_dwordx4 v3, v[16:19], {sp(WS)} sc1")
e(f"global_store_dwordx4 v3, v[20:23], {sp(WS)} offset:16 sc1")
full_exec()
dry_end("B")
stamp(2)
e("s_branch L_end")

CK_ROW = 1040
QA = 128 * CK_ROW
PB = QA + 16 * CK_ROW
MX = PB + 16 * 272
lab("L_roleC")
e("v_lshrrev_b32 v2, 4, v1")
e("v_lshlrev_b32 v50, 18, v2")
e("v_and_b32 v3, 15, v1")
e("v_lshl_add_u32 v50, v3, 4, v50")
e("s_lshl_b32 s10, s49, 20")
e("s_lshl_b32 s11, s48, 11")
e("s_add_u32 s10, s10, s11")
e("s_lshl_b32 s11, s3, 8")
e("s_add_u32 s10, s10, s11")
e(f"s_add_u32 s10, s10, {HB3:#x}")
e("v_add_u32 v50, s10, v50")
for r in range(4):
    sadd64(54 + 2 * r, WS, r * 65536)
e("v_lshlrev_b32 v51, 9, v1")
e("s_lshl_b32 s10, s49, 13")
e("s_lshl_b32 s11, s48, 4")
e("s_add_u32 s10, s10, s11")
e(f"s_add_u32 s10, s10, {HB3ML:#x}")
e("v_add_u32 v51, s10, v51")
e("v_and_b32 v2, 127, v0")
e("v_lshlrev_b32 v52, 4, v2")
e("s_lshr_b32 s10, s3, 1")
e("s_lshl_b32 s11, s49, 4")
e("s_add_u32 s11, s11, s10")
e("s_lshl_b32 s11, s11, 12")
e(f"s_add_u32 s11, s11, {HB2:#x}")
e("v_add_u32 v52, s11, v52")
e(f"s_mul_i32 s10, s10, {CK_ROW}")
e("v_lshlrev_b32 v53, 3, v2")
e("v_add_u32 v53, s10, v53")
e(f"v_add_u32 v53, {QA}, v53")
for i in range(4):
    sadd64(62 + 2 * i, WS, i * 16384)
e("v_and_b32 v2, 15, v1")
e(f"s_movk_i32 s10, {CK_ROW}")
e("v_mul_lo_u32 v49, v2, s10")
e("v_lshrrev_b32 v3, 4, v1")
e("v_lshl_add_u32 v49, v3, 4, v49")
e(f"v_add_u32 v49, {QA}, v49")
e("v_lshlrev_b32 v54, 5, v2")
e(f"v_add_u32 v54, {MX}, v54")
e("s_lshl_b32 s10, s3, 2")
e("v_add_u32 v58, s10, v54")
e("s_movk_i32 s10, 272")
e("v_mul_lo_u32 v56, v2, s10")
e(f"v_add_u32 v56, {PB}, v56")
e("v_lshl_add_u32 v55, v3, 3, v56")
e("s_lshl_b32 s10, s3, 5")
e("v_add_u32 v55, s10, v55")
e("v_lshl_add_u32 v56, v3, 4, v56")
e("s_waitcnt vmcnt(0)")
get_tags()
dry_begin("C")
e("v_lshlrev_b32 v2, 4, v1")
e("s_lshl_b32 s10, s48, 17")
e("s_lshl_b32 s11, s3, 14")
e("s_add_u32 s10, s10, s11")
e(f"s_add_u32 s12, s{CKV}, s10")
e(f"s_addc_u32 s13, s{CKV+1}, 0")
e(f"s_mul_i32 s11, s3, {16*CK_ROW}")
for i in range(16):
    e("s_mov_b32 m0, s11")
    e("s_nop 0")
    e("global_load_lds_dwordx4 v2, s[12:13]")
    if i < 15:
        e("s_add_u32 s12, s12, 1024")
        e("s_addc_u32 s13, s13, 0")
        e(f"s_add_u32 s11, s11, {CK_ROW}")
e("s_waitcnt vmcnt(0)")
e("s_barrier")
stamp(4)
e("v_and_b32 v2, 15, v1")
e("s_lshl_b32 s10, s3, 4")
e("v_add_u32 v2, s10, v2")
e(f"s_movk_i32 s10, {CK_ROW}")
e("v_mul_lo_u32 v2, v2, s10")
e("v_lshrrev_b32 v3, 4, v1")
e("v_lshl_add_u32 v2, v3, 4, v2")
for j in range(16):
    e(f"ds_read_b128 {v(64+4*j,4)}, v2 offset:{64*j}")
e("v_lshrrev_b32 v2, 4, v1")
e("v_lshlrev_b32 v2, 3, v2")
e("v_and_b32 v3, 15, v1")
e("v_lshrrev_b32 v3, 2, v3")
e("v_add_u32 v2, v2, v3")
e("v_mul_lo_u32 v2, v2, s10")
e("v_and_b32 v3, 3, v1")
e("v_lshl_add_u32 v2, v3, 3, v2")
e("s_lshl_b32 s11, s3, 7")
e("v_add_u32 v2, s11, v2")
e(f"v_add_u32 v3, {64*CK_ROW}, v2")
for j in range(4):
    for jj in range(4):
        base = 2 if j < 2 else 3
        off = (j % 2) * 32 * CK_ROW + jj * 32
        d = 128 + (j * 4 + jj) * 4
        e(f"ds_read_b64_tr_b16 {v(d,2)}, {v(base)} offset:{off}")
        e(f"ds_read_b64_tr_b16 {v(d+2,2)}, {v(base)} offset:{off+4*CK_ROW}")
e("s_waitcnt lgkmcnt(0)")
e(f"s_mov_b32 s10, {HB1}")
wave0_hint_barrier(10, 16)
stamp(1)
lp = uid("g")
lab(lp)
for i in range(4):
    e(f"global_load_dwordx4 {v(16+8*i,4)}, v52, s[{62+2*i}:{63+2*i}] sc1")
    e(f"global_load_dwordx4 {v(20+8*i,4)}, v52, s[{62+2*i}:{63+2*i}] offset:2048 sc1")
e("s_waitcnt vmcnt(0)")
tagcheck([16 + 4 * i for i in range(8)], 192, lp)
stamp(3)
lab("C_crit")
for i in range(4):
    a, b = 16 + 8 * i, 20 + 8 * i
    for k in (0, 1):
        e(f"v_lshlrev_b32 v2, 16, {v(a+k)}")
        e(f"v_lshlrev_b32 v3, 16, {v(b+k)}")
        e("v_add_f32 v2, v2, v3")
        e(f"v_and_b32 v3, 0xffff0000, {v(a+k)}")
        e(f"v_and_b32 v57, 0xffff0000, {v(b+k)}")
        e("v_add_f32 v3, v3, v57")
        e(f"v_cvt_pk_bf16_f32 {v(a+k)}, v2, v3")
    e(f"ds_write_b64 v53, {v(a,2)} offset:{i*4*CK_ROW}")
e("s_waitcnt lgkmcnt(0)")
e("s_barrier")
for j in range(16):
    e(f"ds_read_b128 {v(192+4*j,4)}, v49 offset:{64*j}")
for j in range(16):
    e(f"s_waitcnt lgkmcnt({15-j})")
    c = "0" if j == 0 else "v[16:19]"
    e(f"v_mfma_f32_16x16x32_bf16 v[16:19], {v(64+4*j,4)}, {v(192+4*j,4)}, {c}")
nop(7)
SCL = 128 ** -0.5 * LOG2E
for r in range(4): e(f"v_mul_f32 {v(16+r)}, {fhex(SCL)}, {v(16+r)}")
e("v_max_f32 v20, v16, v17")
e("v_max3_f32 v20, v20, v18, v19")
e("v_mov_b32 v21, v20")
nop(1)
e("v_permlane16_swap_b32 v21, v20")
e("v_max_f32 v20, v20, v21")
e("v_mov_b32 v21, v20")
nop(1)
e("v_permlane32_swap_b32 v21, v20")
e("v_max_f32 v20, v20, v21")
set_exec(0xffff, 0)
e("ds_write_b32 v58, v20")
full_exec()
e("s_waitcnt lgkmcnt(0)")
e("s_barrier")
e("ds_read_b128 v[24:27], v54")
e("ds_read_b128 v[28:31], v54 offset:16")
e("s_waitcnt lgkmcnt(0)")
e("v_max3_f32 v20, v24, v25, v26")
e("v_max3_f32 v20, v20, v27, v28")
e("v_max3_f32 v20, v20, v29, v30")
e("v_max_f32 v20, v20, v31")
for r in range(4):
    e(f"v_sub_f32 {v(16+r)}, {v(16+r)}, v20")
for r in range(4):
    e(f"v_exp_f32 {v(16+r)}, {v(16+r)}")
nop(0)
e("v_cvt_pk_bf16_f32 v22, v16, v17")
e("v_cvt_pk_bf16_f32 v23, v18, v19")
e("ds_write_b64 v55, v[22:23]")
e("v_add_f32 v16, v16, v17")
e("v_add_f32 v18, v18, v19")
e("v_add_f32 v16, v16, v18")
e("v_mov_b32 v21, v16")
nop(1)
e("v_permlane16_swap_b32 v21, v16")
e("v_add_f32 v16, v16, v21")
e("v_mov_b32 v21, v16")
nop(1)
e("v_permlane32_swap_b32 v21, v16")
e("v_add_f32 v16, v16, v21")
set_exec(0xffff, 0)
e("ds_write_b32 v58, v16 offset:512")
full_exec()
e("s_waitcnt lgkmcnt(0)")
e("s_barrier")
for j in range(4):
    e(f"ds_read_b128 {v(192+4*j,4)}, v56 offset:{64*j}")
e("ds_read_b128 v[40:43], v54 offset:512")
e("ds_read_b128 v[44:47], v54 offset:528")
for j in range(4):
    e(f"s_waitcnt lgkmcnt({5-j})")
    for jj in range(4):
        c = "0" if j == 0 else v(24 + 4 * jj, 4)
        e(f"v_mfma_f32_16x16x32_bf16 {v(24+4*jj,4)}, {v(192+4*j,4)}, {v(128+(j*4+jj)*4,4)}, {c}")
e(f"v_mov_b32 v22, {T0}")
e(f"v_mov_b32 v23, {T1}")
e("s_waitcnt lgkmcnt(0)")
e("v_add_f32 v40, v40, v41"); e("v_add_f32 v42, v42, v43"); e("v_add_f32 v44, v44, v45"); e("v_add_f32 v46, v46, v47")
e("v_add_f32 v40, v40, v42"); e("v_add_f32 v44, v44, v46"); e("v_add_f32 v21, v40, v44")
nop(3)
pub_exec()
for r in range(4):
    d = 208 + 4 * r
    e(f"v_cvt_pk_bf16_f32 {v(d)}, {v(24+r)}, {v(28+r)}")
    e(f"v_cvt_pk_bf16_f32 {v(d+1)}, {v(32+r)}, {v(36+r)}")
    e(f"v_mov_b32 {v(d+2)}, {T0}")
    e(f"v_mov_b32 {v(d+3)}, {T1}")
    e(f"global_store_dwordx4 v50, {v(d,4)}, s[{54+2*r}:{55+2*r}] sc1")
sk = uid("c")
e("s_cmp_lg_u32 s3, 0")
e(f"s_cbranch_scc1 {sk}")
pub_exec(0xffff, 0)
e(f"global_store_dwordx4 v51, v[20:23], {sp(WS)} sc1")
lab(sk)
full_exec()
dry_end("C")
stamp(2)
e("s_branch L_end")

lab("L_roleA")
e("s_lshl_b32 s50, s48, 1")
e("s_add_u32 s50, s50, s49")
e("s_lshl_b32 s50, s50, 12")
e(f"s_add_u32 s50, s50, {HB4A:#x}")
gemv64_setup()
e("v_and_b32 v3, 127, v0")
e("v_lshlrev_b32 v52, 4, v3")
e("s_lshr_b32 s51, s3, 1")
e("s_lshl_b32 s10, s48, 5")
e("s_add_u32 s10, s10, s51")
e("s_lshl_b32 s10, s10, 11")
e(f"s_add_u32 s10, s10, {HB3:#x}")
e("v_add_u32 v52, s10, v52")
for i in range(8):
    sadd64(54 + 2 * i, WS, i * 8192)
e("v_lshrrev_b32 v53, 4, v3")
e("v_lshlrev_b32 v53, 8, v53")
e("v_and_b32 v3, 15, v3")
e("v_lshl_add_u32 v53, v3, 2, v53")
e("s_lshl_b32 s10, s51, 11")
e("v_add_u32 v53, s10, v53")
e("v_and_b32 v3, 31, v1")
e("s_lshl_b32 s10, s48, 9")
e(f"s_add_u32 s10, s10, {HB3ML:#x}")
e("v_lshl_add_u32 v54, v3, 4, s10")
e("s_waitcnt vmcnt(0)")
get_tags()
dry_begin("A")
seg64_off()
load_seg64(WUV, 64, 8192)
e("s_lshl_b32 s10, s48, 7")
e("s_lshl_b32 s11, s49, 6")
e("s_add_u32 s10, s10, s11")
e("s_lshl_b32 s11, s3, 3")
e("s_add_u32 s10, s10, s11")
e("s_lshl_b32 s10, s10, 10")
e("v_lshlrev_b32 v10, 4, v1")
e("v_add_u32 v10, s10, v10")
e("v_add_u32 v11, 4096, v10")
for i in range(8):
    e(f"global_load_dwordx4 {v(96+4*i,4)}, {v(10 + i//4)}, {sp(WO)} offset:{1024*(i%4)} nt")
e("s_lshl_b32 s10, s48, 12")
e(f"s_add_u32 s10, s10, {HB2:#x}")
wave0_hint_barrier(10, 16)
stamp(1)
lp = uid("g")
lab(lp)
e(f"global_load_dwordx4 v[128:131], v54, {sp(WS)} sc1")
for i in range(8):
    e(f"global_load_dwordx4 {v(16+4*i,4)}, v52, s[{54+2*i}:{55+2*i}] sc1")
e("s_waitcnt vmcnt(0)")
tagcheck([128] + [16 + 4 * i for i in range(8)], 136, lp)
stamp(3)
lab("A_crit")
e("v_mov_b32 v132, v128")
wave_red("v_max_f32", 132, 133, half=True)
e("v_sub_f32 v128, v128, v132")
e("v_exp_f32 v128, v128")
nop(0)
e("v_mul_f32 v132, v128, v129")
wave_red("v_add_f32", 132, 133, half=True)
e("v_rcp_f32 v132, v132")
nop(0)
e("v_mul_f32 v128, v128, v132")
nop(0)
for i in range(8):
    e(f"s_add_u32 s10, s51, {4*i}")
    e(f"v_readlane_b32 s{70+i}, v128, s10")
nop(1)
for i in range(8):
    u = 16 + 4 * i
    for (src, a) in ((u, 140), (u + 1, 142)):
        e(f"v_lshlrev_b32 v136, 16, {v(src)}")
        e(f"v_and_b32 v137, 0xffff0000, {v(src)}")
        if i == 0:
            e(f"v_mul_f32 {v(a)}, s{70+i}, v136")
            e(f"v_mul_f32 {v(a+1)}, s{70+i}, v137")
        else:
            e(f"v_fmac_f32 {v(a)}, s{70+i}, v136")
            e(f"v_fmac_f32 {v(a+1)}, s{70+i}, v137")
for jj in range(4):
    e(f"ds_write_b32 v53, {v(140+jj)} offset:{64*jj}")
e("s_waitcnt lgkmcnt(0)")
e("s_barrier")
gemv64(64, 0, 8192, 4, 2048)
e("s_waitcnt lgkmcnt(0)")
e("s_barrier")
sum64(8192, 24)
e("s_lshl_b32 s10, s3, 3")
for t in range(8):
    e(f"s_add_u32 s11, s10, {t}")
    e(f"v_readlane_b32 s{70+t}, v24, s11")
nop(1)
for t in range(8):
    e(f"v_mov_b32 {v(16+t)}, s{70+t}")
gemv_row8(96, 8, 16, 40, 24, 32)
out512_write(12288)
e("s_waitcnt lgkmcnt(0)")
e("s_barrier")
publish512(12288, 50)
dry_end("A")
stamp(2)

lab("L_end")
e("s_endpgm")
L.append('.section .rodata,"a"')
L.append(".p2align 6")
L.append(f".amdhsa_kernel {NAME}_kernel")
L.append("  .amdhsa_next_free_vgpr 256")
L.append("  .amdhsa_next_free_sgpr 102")
L.append("  .amdhsa_accum_offset 256")
L.append("  .amdhsa_group_segment_fixed_size 0")
L.append("  .amdhsa_kernarg_size 128")
L.append("  .amdhsa_user_sgpr_count 2")
L.append("  .amdhsa_user_sgpr_kernarg_segment_ptr 1")
L.append("  .amdhsa_system_sgpr_workgroup_id_x 1")
L.append(".end_amdhsa_kernel")
open(OUTF, "w").write("\n".join(L) + "\n")
print("wrote", OUTF, len(L), "lines")
```

```python
import sys, struct

DEBUG = "--debug" in sys.argv
NODRY = "--nodry" in sys.argv
OUTF = [a for a in sys.argv[1:] if not a.startswith("--")]
NAME = "adaLN_cond__compressed_kv_cla__mixer_channel_mlp__decode"
OUTF = OUTF[0] if OUTF else f"cdna_kernels/{NAME}.s"

HB1C = 0x8000
HBQ = 0x4000
HB1, HB2, HB3, HB3ML, HB4A, HB4B, HB6, EPOCH = 0x0, 0x10000, 0x100000, 0x300000, 0x400000, 0x480000, 0x500000, 0x600000
TS = 0x2000000
X, CKV, WQ, WUK, WUV, WO, BX, W1, B1, W2, B2, C, WMOD, OUT, DBG, WS = [16 + 2 * i for i in range(16)]
def sp(b): return f"s[{b}:{b+1}]"
LDS_BYTES = 155136
SPIN = 400000
LOG2E = 1.4426950408889634
T0, T1 = "s8", "s93"
PM = "s[96:97]"

L = []
def e(s): L.append("    " + s)
def lab(s): L.append(s + ":")
_uid = [0]
def uid(p="L"):
    _uid[0] += 1
    return f"{p}_{_uid[0]}"
def v(a, n=1): return f"v{a}" if n == 1 else f"v[{a}:{a+n-1}]"
def nop(n): e(f"s_nop {n}")
def fhex(x): return "0x%08x" % struct.unpack("<I", struct.pack("<f", x))[0]

def stamp(k):
    if not DEBUG: return
    sk = uid("st")
    e("s_cmp_lg_u32 s3, 0")
    e(f"s_cbranch_scc1 {sk}")
    e("s_memrealtime s[90:91]")
    e("s_waitcnt lgkmcnt(0)")
    e("v_mov_b32 v255, s90")
    e("v_mov_b32 v254, s92")
    e(f"global_store_dword v254, v255, {sp(WS)} offset:{4*k}")
    lab(sk)

def stamp_w(k):
    if not DEBUG: return
    e("s_memrealtime s[90:91]")
    e("s_lshl_b32 s94, s3, 2")
    e("s_add_u32 s94, s94, s92")
    e("s_waitcnt lgkmcnt(0)")
    e("v_mov_b32 v255, s90")
    e("v_mov_b32 v254, s94")
    e(f"global_store_dword v254, v255, {sp(WS)} offset:{4*k}")

def stamp_s9(k):
    if not DEBUG: return
    sk = uid("st")
    e("s_cmp_lg_u32 s3, 0")
    e(f"s_cbranch_scc1 {sk}")
    e("v_mov_b32 v255, s9")
    e("v_mov_b32 v254, s92")
    e(f"global_store_dword v254, v255, {sp(WS)} offset:{4*k}")
    lab(sk)

def set_exec(lo, hi):
    e(f"s_mov_b32 exec_lo, {lo:#x}")
    e(f"s_mov_b32 exec_hi, {hi:#x}")
def full_exec(): e("s_mov_b64 exec, -1")
def pub_exec(lo=None, hi=None):
    if lo is None:
        e(f"s_mov_b64 exec, {PM}")
    else:
        set_exec(lo, hi)
        e(f"s_and_b64 exec, exec, {PM}")

def spin_bound():
    e("s_add_u32 s9, s9, 1")
    e(f"s_cmp_gt_u32 s9, {SPIN}")
    e("s_cbranch_scc1 L_end")

def tagcheck(units, t, retry):
    us = list(units)
    if len(us) % 2: us.append(us[-1])
    first = True
    for a, b in zip(us[0::2], us[1::2]):
        for k in (0, 1):
            if first:
                e(f"v_min_u32 {v(t+2*k)}, {v(a+2+k)}, {v(b+2+k)}")
                e(f"v_max_u32 {v(t+2*k+1)}, {v(a+2+k)}, {v(b+2+k)}")
            else:
                e(f"v_min3_u32 {v(t+2*k)}, {v(t+2*k)}, {v(a+2+k)}, {v(b+2+k)}")
                e(f"v_max3_u32 {v(t+2*k+1)}, {v(t+2*k+1)}, {v(a+2+k)}, {v(b+2+k)}")
        first = False
    e(f"v_xor_b32 {v(t)}, {T0}, {v(t)}")
    e(f"v_xor_b32 {v(t+1)}, {T0}, {v(t+1)}")
    e(f"v_xor_b32 {v(t+2)}, {T1}, {v(t+2)}")
    e(f"v_xor_b32 {v(t+3)}, {T1}, {v(t+3)}")
    e(f"v_or3_b32 {v(t)}, {v(t)}, {v(t+1)}, {v(t+2)}")
    e(f"v_or_b32 {v(t)}, {v(t)}, {v(t+3)}")
    e(f"v_cmp_ne_u32 vcc, 0, {v(t)}")
    ok = uid("ok")
    e(f"s_cbranch_vccz {ok}")
    spin_bound()
    e(f"s_branch {retry}")
    lab(ok)

def hint_wait(saddr_expr_sgpr, u, sleep=4):
    lp, dn = uid("hw"), uid("hd")
    e(f"v_mov_b32 {v(u+4)}, s{saddr_expr_sgpr}")
    set_exec(1, 0)
    lab(lp)
    e(f"global_load_dwordx4 {v(u,4)}, {v(u+4)}, {sp(WS)} sc1")
    e("s_waitcnt vmcnt(0)")
    e(f"v_xor_b32 {v(u)}, {T0}, {v(u+2)}")
    e(f"v_xor_b32 {v(u+1)}, {T1}, {v(u+3)}")
    e(f"v_or_b32 {v(u)}, {v(u)}, {v(u+1)}")
    e(f"v_cmp_ne_u32 vcc, 0, {v(u)}")
    e(f"s_cbranch_vccz {dn}")
    spin_bound()
    e(f"s_sleep {sleep}")
    e(f"s_branch {lp}")
    lab(dn)
    full_exec()

def hint_multi(addr_v, lo, hi, u, sleep=2):
    lp, dn = uid("hw"), uid("hd")
    set_exec(lo, hi)
    lab(lp)
    e(f"global_load_dwordx4 {v(u,4)}, {v(addr_v)}, {sp(WS)} sc1")
    e("s_waitcnt vmcnt(0)")
    e(f"v_xor_b32 {v(u)}, {T0}, {v(u+2)}")
    e(f"v_xor_b32 {v(u+1)}, {T1}, {v(u+3)}")
    e(f"v_or_b32 {v(u)}, {v(u)}, {v(u+1)}")
    e(f"v_cmp_ne_u32 vcc, 0, {v(u)}")
    e(f"s_cbranch_vccz {dn}")
    spin_bound()
    e(f"s_sleep {sleep}")
    e(f"s_branch {lp}")
    lab(dn)
    full_exec()

def wave0_hint2_barrier(sreg, addr_code, lo, hi, u):
    sk = uid("h")
    e("s_cmp_lg_u32 s3, 0")
    e(f"s_cbranch_scc1 {sk}")
    hint_wait(sreg, u)
    addr_code()
    hint_multi(u + 4, lo, hi, u)
    lab(sk)
    e("s_barrier")

def wave0_hint_barrier(sreg, u):
    sk = uid("h")
    e("s_cmp_lg_u32 s3, 0")
    e(f"s_cbranch_scc1 {sk}")
    hint_wait(sreg, u)
    lab(sk)
    e("s_barrier")

def dpp(op, d, s0, s1, ctrl):
    e(f"{op}_dpp {v(d)}, {v(s0)}, {v(s1)} {ctrl} row_mask:0xf bank_mask:0xf")

def wave_red(op, a, t, half=False):
    for r in (8, 4, 2, 1):
        nop(1)
        dpp(op, a, a, a, f"row_ror:{r}")
    e(f"v_mov_b32 {v(t)}, {v(a)}")
    nop(1)
    e(f"v_permlane16_swap_b32 {v(t)}, {v(a)}")
    e(f"{op} {v(a)}, {v(a)}, {v(t)}")
    if not half:
        e(f"v_mov_b32 {v(t)}, {v(a)}")
        nop(1)
        e(f"v_permlane32_swap_b32 {v(t)}, {v(a)}")
        e(f"{op} {v(a)}, {v(a)}, {v(t)}")

def red8_to2(acc):
    for k in range(4):
        e(f"v_permlane32_swap_b32 {v(acc+2*k)}, {v(acc+2*k+1)}")
    for k in range(4):
        e(f"v_add_f32 {v(acc+2*k)}, {v(acc+2*k)}, {v(acc+2*k+1)}")
    nop(1)
    e(f"v_permlane16_swap_b32 {v(acc+0)}, {v(acc+2)}")
    e(f"v_permlane16_swap_b32 {v(acc+4)}, {v(acc+6)}")
    e(f"v_add_f32 {v(acc+0)}, {v(acc+0)}, {v(acc+2)}")
    e(f"v_add_f32 {v(acc+4)}, {v(acc+4)}, {v(acc+6)}")

def bitswap_rho(dst, t):
    e(f"v_lshrrev_b32 {v(dst)}, 5, v1")
    e(f"v_lshrrev_b32 {v(t)}, 3, v1")
    e(f"v_and_b32 {v(t)}, 2, {v(t)}")
    e(f"v_or_b32 {v(dst)}, {v(dst)}, {v(t)}")

def gemv_row8(W, nrows, vf, acc, lo, hi):
    for i in range(nrows):
        e(f"v_cvt_pk_bf16_f32 {v(lo+i)}, {v(vf+i)}, 0")
        e(f"v_cvt_pk_bf16_f32 {v(hi+i)}, 0, {v(vf+i)}")
    for i in range(nrows):
        for k in range(4):
            c0 = "0" if i == 0 else v(acc + 2 * k)
            c1 = "0" if i == 0 else v(acc + 2 * k + 1)
            e(f"v_dot2_f32_bf16 {v(acc+2*k)}, {v(W+4*i+k)}, {v(lo+i)}, {c0}")
            e(f"v_dot2_f32_bf16 {v(acc+2*k+1)}, {v(W+4*i+k)}, {v(hi+i)}, {c1}")
    nop(2)

def sadd64(dst, src, imm):
    e(f"s_add_u32 s{dst}, s{src}, {imm}")
    e(f"s_addc_u32 s{dst+1}, s{src+1}, 0")

def unpack2(src, d):
    e(f"v_lshlrev_b32 {v(d)}, 16, {v(src)}")
    e(f"v_and_b32 {v(d+1)}, 0xffff0000, {v(src)}")

def gemv64(W, ldsV, ldsRW, nparts=1, pstride=0):
    e(f"ds_read_b128 v[16:19], v2 offset:{ldsV}")
    e(f"ds_read_b128 v[20:23], v2 offset:{ldsV+16}")
    for p in range(1, nparts):
        e(f"ds_read_b128 {v(24+8*(p-1),4)}, v2 offset:{ldsV+p*pstride}")
        e(f"ds_read_b128 {v(28+8*(p-1),4)}, v2 offset:{ldsV+p*pstride+16}")
    e("s_waitcnt lgkmcnt(0)")
    for p in range(1, nparts):
        for i in range(8):
            e(f"v_add_f32 {v(16+i)}, {v(16+i)}, {v(24+8*(p-1)+i)}")
    gemv_row8(W, 8, 16, 40, 24, 32)
    red8_to2(40)
    nop(0)
    dpp("v_add_f32", 40, 40, 40, "row_ror:8")
    dpp("v_add_f32", 44, 44, 44, "row_ror:8")
    set_exec(0x00ff00ff, 0x00ff00ff)
    e(f"ds_write_b32 v48, v40 offset:{ldsRW}")
    e(f"ds_write_b32 v48, v44 offset:{ldsRW+16}")
    full_exec()
def gemv64_setup():
    e("v_lshrrev_b32 v2, 3, v1")
    e("v_lshlrev_b32 v2, 5, v2")
    e("s_lshl_b32 s10, s3, 8")
    e("v_add_u32 v2, s10, v2")
    bitswap_rho(48, 3)
    e("v_and_b32 v3, 7, v1")
    e("v_lshl_add_u32 v48, v3, 3, v48")
    e("v_lshl_add_u32 v48, v48, 2, s10")
def sum64(ldsRW, dst):
    e("v_lshlrev_b32 v3, 2, v1")
    for w in range(8):
        e(f"ds_read_b32 {v(16+w)}, v3 offset:{ldsRW+256*w}")
    e("s_waitcnt lgkmcnt(0)")
    e("v_add_f32 v16, v16, v17"); e("v_add_f32 v18, v18, v19"); e("v_add_f32 v20, v20, v21"); e("v_add_f32 v22, v22, v23")
    e("v_add_f32 v16, v16, v18"); e("v_add_f32 v20, v20, v22")
    e(f"v_add_f32 {v(dst)}, v16, v20")
def load_seg64(ptr, dst, stride):
    for i in range(8):
        sadd64(12, ptr, i * stride)
        e(f"global_load_dwordx4 {v(dst+4*i,4)}, v10, s[12:13] nt")
def seg64_off():
    e("v_lshrrev_b32 v10, 3, v1")
    e("v_lshlrev_b32 v10, 16, v10")
    e("s_lshl_b32 s10, s3, 19")
    e("s_lshl_b32 s11, s48, 8")
    e("s_add_u32 s10, s10, s11")
    e("s_lshl_b32 s11, s49, 7")
    e("s_add_u32 s10, s10, s11")
    e("v_add_u32 v10, s10, v10")
    e("v_and_b32 v3, 7, v1")
    e("v_lshl_add_u32 v10, v3, 4, v10")
def out512_write(ldsO):
    e("v_lshlrev_b32 v3, 5, v1")
    e("s_lshl_b32 s10, s3, 11")
    e("v_add_u32 v3, s10, v3")
    e(f"ds_write_b128 v3, v[40:43] offset:{ldsO}")
    e(f"ds_write_b128 v3, v[44:47] offset:{ldsO+16}")
def publish512(ldsO, sbase):
    sk = uid("p")
    e("s_cmp_ge_u32 s3, 4")
    e(f"s_cbranch_scc1 {sk}")
    e("v_lshlrev_b32 v3, 3, v0")
    for w in range(8):
        e(f"ds_read_b64 {v(16+2*w,2)}, v3 offset:{ldsO+2048*w}")
    e(f"v_mov_b32 v42, {T0}")
    e(f"v_mov_b32 v43, {T1}")
    e("v_lshlrev_b32 v3, 4, v0")
    e(f"v_add_u32 v3, s{sbase}, v3")
    e("s_waitcnt lgkmcnt(0)")
    for o in (0, 1):
        e(f"v_add_f32 {v(16+o)}, {v(16+o)}, {v(18+o)}"); e(f"v_add_f32 {v(20+o)}, {v(20+o)}, {v(22+o)}")
        e(f"v_add_f32 {v(24+o)}, {v(24+o)}, {v(26+o)}"); e(f"v_add_f32 {v(28+o)}, {v(28+o)}, {v(30+o)}")
        e(f"v_add_f32 {v(16+o)}, {v(16+o)}, {v(20+o)}"); e(f"v_add_f32 {v(24+o)}, {v(24+o)}, {v(28+o)}")
        e(f"v_add_f32 {v(40+o)}, {v(16+o)}, {v(24+o)}")
    pub_exec()
    e(f"global_store_dwordx4 v3, v[40:43], {sp(WS)} sc1")
    full_exec()
    lab(sk)

def get_tags():
    e("v_readfirstlane_b32 s8, v253")
    nop(3)
    e("s_add_u32 s8, s8, 1")
    e("s_xor_b32 s93, s8, 0x5bd1e995")

def dry_begin(name):
    if NODRY:
        return
    e(f"s_mov_b64 {PM}, 0")
    e(f"s_branch {name}_crit")
    lab(f"{name}_ret")
    e(f"s_mov_b64 {PM}, -1")
def dry_end(name):
    if NODRY:
        return
    e(f"s_cmp_eq_u64 {PM}, 0")
    e(f"s_cbranch_scc1 {name}_ret")


def masks_setup(m):
    e("v_and_b32 v3, 1, v1")
    e("v_lshlrev_b32 v3, 4, v3")
    e(f"v_mov_b32 {v(m+3)}, 0xffff")
    e(f"v_lshlrev_b32 {v(m+3)}, v3, {v(m+3)}")
    e("v_bfe_u32 v3, v1, 1, 2")
    for r in range(3):
        e(f"v_cmp_eq_u32 vcc, {r}, v3")
        nop(1)
        e(f"v_cndmask_b32 {v(m+r)}, 0, {v(m+3)}, vcc")
    e("v_cmp_eq_u32 vcc, 3, v3")
    nop(1)
    e(f"v_cndmask_b32 {v(m+3)}, 0, {v(m+3)}, vcc")

def gemv64m_setup(m):
    e("v_lshrrev_b32 v2, 3, v1")
    e("v_lshlrev_b32 v2, 5, v2")
    e("s_lshl_b32 s10, s3, 8")
    e("v_add_u32 v2, s10, v2")
    e("v_and_b32 v48, 7, v1")
    e("v_lshlrev_b32 v48, 5, v48")
    e("v_and_b32 v3, 16, v1")
    e("v_add3_u32 v48, v48, v3, s10")
    masks_setup(m)

def gemv64m(W, ldsV, ldsRW, m, nl=8, va=2):
    if nl == 8:
        e(f"ds_read_b128 v[16:19], {v(va)} offset:{ldsV}")
        e(f"ds_read_b128 v[20:23], {v(va)} offset:{ldsV+16}")
    else:
        e(f"ds_read_b64 v[16:17], {v(va)} offset:{ldsV}")
    e("s_waitcnt lgkmcnt(0)")
    for i in range(nl):
        e(f"v_cvt_pk_bf16_f32 {v(16+i)}, {v(16+i)}, {v(16+i)}")
    for i in range(nl):
        a = 24 + 4 * (i % 3)
        for r in range(4):
            e(f"v_and_b32 {v(a+r)}, {v(16+i)}, {v(m+r)}")
        if i > 0:
            pa = 24 + 4 * ((i - 1) % 3)
            c = "0" if i == 1 else "v[40:43]"
            e(f"v_mfma_f32_16x16x32_bf16 v[40:43], {v(pa,4)}, {v(W+4*(i-1),4)}, {c}")
    nop(1)
    e(f"v_mfma_f32_16x16x32_bf16 v[40:43], {v(24+4*((nl-1)%3),4)}, {v(W+4*(nl-1),4)}, v[40:43]")
    nop(7)
    for r in range(4):
        e(f"v_mov_b32 {v(44+r)}, {v(40+r)}")
    nop(0)
    for r in range(4):
        e(f"v_permlane32_swap_b32 {v(40+r)}, {v(44+r)}")
    nop(0)
    for r in range(4):
        dpp("v_add_f32", 40 + r, 44 + r, 40 + r, "row_ror:8")
    set_exec(0x00ff00ff, 0)
    e(f"ds_write_b128 v48, v[40:43] offset:{ldsRW}")
    full_exec()

def tr_frags(dst, bases, njs, ntiles, jstep, tstep, half_off, jsplit=None):
    for j in range(njs):
        for t in range(ntiles):
            if jsplit is None: b, jj = bases[0], j
            else: b, jj = bases[j // jsplit], j % jsplit
            off = jj * jstep + t * tstep
            d = dst + (j * ntiles + t) * 4
            e(f"ds_read_b64_tr_b16 {v(d,2)}, {v(b)} offset:{off}")
            e(f"ds_read_b64_tr_b16 {v(d+2,2)}, {v(b)} offset:{off+half_off}")

def red4_sg(a):
    nop(1)
    e(f"v_permlane32_swap_b32 {v(a)}, {v(a+1)}")
    e(f"v_permlane32_swap_b32 {v(a+2)}, {v(a+3)}")
    e(f"v_add_f32 {v(a)}, {v(a)}, {v(a+1)}")
    e(f"v_add_f32 {v(a+2)}, {v(a+2)}, {v(a+3)}")
    nop(1)
    e(f"v_permlane16_swap_b32 {v(a)}, {v(a+2)}")
    e(f"v_add_f32 {v(a)}, {v(a)}, {v(a+2)}")

def col_of_lane(dst, t):
    bitswap_rho(dst, t)
    e(f"v_lshlrev_b32 {v(dst)}, 4, {v(dst)}")
    e(f"v_and_b32 {v(t)}, 15, v1")
    e("s_lshl_b32 s10, s3, 6")
    e(f"v_add3_u32 {v(dst)}, {v(dst)}, {v(t)}, s10")

def pub_tiles(D, addr):
    e(f"v_cvt_pk_bf16_f32 v16, {v(D)}, {v(D+4)}")
    e(f"v_cvt_pk_bf16_f32 v17, {v(D+8)}, {v(D+12)}")
    e(f"v_mov_b32 v18, {T0}")
    e(f"v_mov_b32 v19, {T1}")
    pub_exec(0xffff, 0)
    e(f"global_store_dwordx4 {v(addr)}, v[16:19], {sp(WS)} sc1")
    full_exec()

def sweep8_addr(dst, hb_sgpr):
    e(f"v_lshrrev_b32 {v(dst)}, 4, v1")
    e(f"v_lshlrev_b32 {v(dst)}, 14, {v(dst)}")
    e("v_and_b32 v3, 15, v1")
    e(f"v_lshl_add_u32 {v(dst)}, v3, 4, {v(dst)}")
    e("s_lshl_b32 s10, s3, 8")
    e(f"s_add_u32 s10, s10, s{hb_sgpr}")
    e(f"v_add_u32 {v(dst)}, s10, {v(dst)}")
    for k in range(4):
        sadd64(54 + 2 * k, WS, k * 4096)
def sweep_pending(loads, t):
    n = len(loads)
    e(f"s_mov_b32 s53, {(1 << n) - 1:#x}")
    lp, dn = uid("sw"), uid("sd")
    lab(lp)
    for i, (line, u) in enumerate(loads):
        sk = uid("sk")
        e(f"s_bitcmp1_b32 s53, {i}")
        e(f"s_cbranch_scc0 {sk}")
        e(line)
        lab(sk)
    e("s_waitcnt vmcnt(0)")
    for i, (line, u) in enumerate(loads):
        e(f"v_xor_b32 {v(t)}, {T0}, {v(u+2)}")
        e(f"v_xor_b32 {v(t+1)}, {T1}, {v(u+3)}")
        e(f"v_or_b32 {v(t)}, {v(t)}, {v(t+1)}")
        e(f"v_cmp_ne_u32 vcc, 0, {v(t)}")
        e("s_cmp_eq_u64 vcc, 0")
        e(f"s_cselect_b32 s10, {~(1 << i) & 0xffffffff:#x}, -1")
        e("s_and_b32 s53, s53, s10")
    e("s_cmp_eq_u32 s53, 0")
    e(f"s_cbranch_scc1 {dn}")
    spin_bound()
    e(f"s_branch {lp}")
    lab(dn)
def sweep8_list(addr):
    return [(f"global_load_dwordx4 {v(16+4*i,4)}, {v(addr)}, s[{54+2*(i//2)}:{55+2*(i//2)}] offset:{2048*(i%2)} sc1", 16 + 4 * i) for i in range(8)]
def sweep8_loads(addr):
    for i in range(8):
        e(f"global_load_dwordx4 {v(16+4*i,4)}, {v(addr)}, s[{54+2*(i//2)}:{55+2*(i//2)}] offset:{2048*(i%2)} sc1")

L.append(f"; @launch grid=(256,1,1) block=(512,1,1) lds={LDS_BYTES}")
L.append('.amdgcn_target "amdgcn-amd-amdhsa--gfx950"')
L.append(".text")
L.append(f".globl {NAME}_kernel")
L.append(".p2align 8")
L.append(f".type {NAME}_kernel,@function")
lab(f"{NAME}_kernel")
e("s_cmp_ge_u32 s2, 256")
e("s_cbranch_scc1 L_end")
e("s_load_dwordx16 s[16:31], s[0:1], 0")
e("s_load_dwordx16 s[32:47], s[0:1], 64")
e("v_and_b32 v1, 63, v0")
e("v_lshrrev_b32 v2, 6, v0")
e("s_and_b32 s4, s2, 7")
e("v_readfirstlane_b32 s3, v2")
e("s_lshr_b32 s5, s2, 3")
e("s_and_b32 s6, s5, 3")
e("s_lshr_b32 s7, s5, 2")
e("s_mov_b32 s9, 0")
e("s_mov_b32 s8, 0")
e("s_mov_b32 s93, 0")
e(f"s_mov_b64 {PM}, -1")
if DEBUG:
    e("s_lshl_b32 s92, s2, 8")
    e(f"s_add_u32 s92, s92, {TS:#x}")
e("s_lshr_b32 s48, s7, 1")
e("s_lshl_b32 s10, s4, 2")
e("s_add_u32 s48, s48, s10")
e("s_and_b32 s49, s7, 1")
e(f"v_mov_b32 v252, {EPOCH:#x}")
e("s_waitcnt lgkmcnt(0)")
e(f"global_load_dword v253, v252, {sp(WS)} sc1")
stamp(0)
if DEBUG:
    e("s_getreg_b32 s9, hwreg(HW_REG_XCC_ID)")
    stamp_s9(20)
    e("s_mov_b32 s9, 0")
e("s_cmp_eq_u32 s6, 1")
e("s_cbranch_scc1 L_roleB")
e("s_cmp_eq_u32 s6, 2")
e("s_cbranch_scc1 L_roleC")
e("s_cmp_eq_u32 s6, 3")
e("s_cbranch_scc1 L_roleA")


lab("L_roleD")
e("s_lshl_b32 s50, s7, 3")
e("s_add_u32 s50, s50, s4")
e("v_lshlrev_b32 v3, 1, v0")
e(f"global_load_ushort v8, v3, {sp(C)}")
e("s_lshr_b32 s51, s50, 4")
e("s_and_b32 s52, s50, 15")
e("v_lshrrev_b32 v10, 3, v1")
e("v_lshlrev_b32 v10, 1, v10")
e("s_lshl_b32 s10, s3, 4")
e("s_lshl_b32 s11, s51, 7")
e("s_add_u32 s10, s10, s11")
e("v_add_u32 v10, s10, v10")
e("v_lshlrev_b32 v49, 2, v10")
e("s_movk_i32 s10, 6144")
e("v_mul_lo_u32 v10, v10, s10")
e("v_and_b32 v3, 7, v1")
e("v_lshl_add_u32 v10, v3, 4, v10")
e("s_lshl_b32 s10, s52, 7")
e("v_add_u32 v10, s10, v10")
e(f"global_load_dwordx4 v[56:59], v10, {sp(WMOD)} nt")
sadd64(12, WMOD, 6144)
e("global_load_dwordx4 v[60:63], v10, s[12:13] nt")
gemv64m_setup(52)
e("s_waitcnt vmcnt(2)")
get_tags()
e("v_lshlrev_b32 v9, 16, v8")
e(f"v_mul_f32 v3, {fhex(-LOG2E)}, v9")
e("v_exp_f32 v3, v3")
nop(0)
e("v_add_f32 v3, 1.0, v3")
e("v_rcp_f32 v3, v3")
nop(0)
e("v_mul_f32 v9, v9, v3")
e("v_lshlrev_b32 v3, 2, v0")
e("ds_write_b32 v3, v9")
e("s_waitcnt vmcnt(0) lgkmcnt(0)")
e("s_barrier")
gemv64m(56, 0, 2048, 52, nl=2, va=49)
e("s_waitcnt lgkmcnt(0)")
e("s_barrier")
sk = uid("d")
e("s_cmp_lg_u32 s3, 0")
e(f"s_cbranch_scc1 {sk}")
sum64(2048, 24)
nop(1)
e("v_mov_b32_dpp v32, v24 quad_perm:[0,0,2,2] row_mask:0xf bank_mask:0xf")
e("v_mov_b32_dpp v33, v24 quad_perm:[1,1,3,3] row_mask:0xf bank_mask:0xf")
e(f"v_mov_b32 v34, {T0}")
e(f"v_mov_b32 v35, {T1}")
e("s_lshl_b32 s10, s51, 13")
e("s_lshl_b32 s11, s52, 9")
e("s_add_u32 s10, s10, s11")
e(f"s_add_u32 s10, s10, {HB1C:#x}")
e("v_lshl_add_u32 v3, v1, 3, s10")
set_exec(0x55555555, 0x55555555)
e(f"global_store_dwordx4 v3, v[32:35], {sp(WS)} sc1")
full_exec()
lab(sk)
stamp(1)
e("s_barrier")
WK = 8192
e("v_lshrrev_b32 v10, 4, v1")
e("v_lshlrev_b32 v10, 13, v10")
e("v_and_b32 v3, 15, v1")
e("v_lshl_add_u32 v10, v3, 4, v10")
e("s_and_b32 s10, s50, 1")
e("s_lshl_b32 s10, s10, 21")
e("s_lshl_b32 s11, s3, 18")
e("s_add_u32 s10, s10, s11")
e("s_lshr_b32 s11, s50, 1")
e("s_lshl_b32 s11, s11, 8")
e("s_add_u32 s10, s10, s11")
e("v_add_u32 v10, s10, v10")
e(f"s_mul_i32 s11, s3, {8*1040}")
e(f"s_add_u32 s11, s11, {WK}")
for i in range(8):
    sadd64(12, WUK, i * 4 * 8192)
    e("s_mov_b32 m0, s11")
    nop(0)
    e("global_load_lds_dwordx4 v10, s[12:13] nt")
    e("s_add_u32 s11, s11, 1040")
e("v_bfe_u32 v3, v1, 2, 2")
e("s_lshl_b32 s10, s3, 3")
e("v_add_u32 v3, s10, v3")
e("s_movk_i32 s10, 1040")
e("v_mul_lo_u32 v10, v3, s10")
e("v_and_b32 v3, 3, v1")
e("v_lshl_add_u32 v10, v3, 8, v10")
e("v_lshrrev_b32 v3, 4, v1")
e("v_lshl_add_u32 v10, v3, 4, v10")
e(f"v_add_u32 v10, {WK}, v10")
e("s_lshr_b32 s10, s50, 1")
e("s_lshl_b32 s10, s10, 9")
e(f"s_add_u32 s10, s10, {HBQ:#x}")
e("v_lshl_add_u32 v11, v3, 5, s10")
e("s_lshl_b32 s10, s50, 10")
e("s_lshl_b32 s11, s3, 7")
e("s_add_u32 s10, s10, s11")
e(f"s_add_u32 s10, s10, {HB2:#x}")
e("v_lshl_add_u32 v12, v3, 4, s10")
e("s_waitcnt vmcnt(0)")
for rt in range(2):
    for ks in range(4):
        e(f"ds_read_b128 {v(64+(rt*4+ks)*4,4)}, v10 offset:{rt*4160+ks*64}")
_ld = []
for ks in range(4):
    _ld.append((f"global_load_dwordx4 {v(16+8*ks,4)}, v11, {sp(WS)} offset:{128*ks} sc1", 16 + 8 * ks))
    _ld.append((f"global_load_dwordx4 {v(20+8*ks,4)}, v11, {sp(WS)} offset:{128*ks+16} sc1", 20 + 8 * ks))
sweep_pending(_ld, 96)
stamp(6)
for ks in range(4):
    e(f"v_mov_b32 {v(18+8*ks)}, {v(20+8*ks)}")
    e(f"v_mov_b32 {v(19+8*ks)}, {v(21+8*ks)}")
e("s_waitcnt lgkmcnt(0)")
nop(0)
for ks in range(4):
    for rt in range(2):
        c = "0" if ks == 0 else v(96 + 4 * rt, 4)
        e(f"v_mfma_f32_16x16x32_bf16 {v(96+4*rt,4)}, {v(64+(rt*4+ks)*4,4)}, {v(16+8*ks,4)}, {c}")
nop(6)
set_exec(0x00010001, 0x00010001)
for rt in range(2):
    d = 104 + 4 * rt
    e(f"v_cvt_pk_bf16_f32 {v(d)}, {v(96+4*rt)}, {v(97+4*rt)}")
    e(f"v_cvt_pk_bf16_f32 {v(d+1)}, {v(98+4*rt)}, {v(99+4*rt)}")
    e(f"v_mov_b32 {v(d+2)}, {T0}")
    e(f"v_mov_b32 {v(d+3)}, {T1}")
    e(f"global_store_dwordx4 v12, {v(d,4)}, {sp(WS)} offset:{64*rt} sc1")
full_exec()
stamp(7)
e("s_cmp_ge_u32 s50, 48")
e("s_cbranch_scc1 L_final")
e("s_cmp_ge_u32 s50, 32")
e("s_cbranch_scc1 L_ph5pre")
e("v_lshrrev_b32 v10, 3, v1")
e("v_lshlrev_b32 v10, 3, v10")
e("s_lshl_b32 s10, s3, 6")
e("v_add_u32 v10, s10, v10")
e("s_movk_i32 s10, 6144")
e("v_mul_lo_u32 v10, v10, s10")
e("v_and_b32 v3, 7, v1")
e("v_lshl_add_u32 v10, v3, 4, v10")
e("s_lshl_b32 s10, s50, 7")
e("s_add_u32 s10, s10, 2048")
e("v_add_u32 v10, s10, v10")
load_seg64(WMOD, 64, 6144)
e("s_waitcnt vmcnt(0)")
e("s_barrier")
gemv64m(64, 0, 2048, 52)
e("s_waitcnt lgkmcnt(0)")
e("s_barrier")
sk = uid("d")
e("s_cmp_lg_u32 s3, 0")
e(f"s_cbranch_scc1 {sk}")
sum64(2048, 24)
nop(1)
for k in range(4):
    e(f"v_mov_b32_dpp {v(28+k)}, v24 quad_perm:[{k},{k},{k},{k}] row_mask:0xf bank_mask:0xf")
e("v_cvt_pk_bf16_f32 v32, v28, v29")
e("v_cvt_pk_bf16_f32 v33, v30, v31")
e(f"v_mov_b32 v34, {T0}")
e(f"v_mov_b32 v35, {T1}")
e("s_lshl_b32 s10, s50, 8")
e("s_add_u32 s10, s10, 4096")
e("v_lshl_add_u32 v3, v1, 2, s10")
set_exec(0x11111111, 0x11111111)
e(f"global_store_dwordx4 v3, v[32:35], {sp(WS)} sc1")
full_exec()
lab(sk)
lab("L_ph5pre")
e("s_cmp_ge_u32 s50, 43")
e("s_cbranch_scc1 L_end")
e("s_barrier")

W1S, W2S, MODL, X1L, YL, HPL, HL = 0, 33280, 66560, 69632, 71680, 79872, 80896
e("v_lshrrev_b32 v2, 2, v1")
e("s_lshl_b32 s10, s3, 6")
e("v_add_u32 v2, s10, v2")
e("s_movk_i32 s10, 2752")
e("v_mul_lo_u32 v2, v2, s10")
e("v_and_b32 v3, 3, v1")
e("v_lshl_add_u32 v2, v3, 4, v2")
e("s_lshl_b32 s10, s50, 6")
e("v_add_u32 v2, s10, v2")
e(f"s_mul_i32 s11, s3, {4*1040}")
e(f"s_add_u32 s11, s11, {W1S}")
for i in range(4):
    sadd64(12, W1, i * 16 * 2752)
    e("s_mov_b32 m0, s11")
    nop(0)
    e("global_load_lds_dwordx4 v2, s[12:13] nt")
    e("s_add_u32 s11, s11, 1040")
e("s_lshl_b32 s10, s50, 5")
e("s_lshl_b32 s11, s3, 2")
e("s_add_u32 s10, s10, s11")
e("s_lshl_b32 s10, s10, 10")
e("v_lshlrev_b32 v2, 4, v1")
e("v_add_u32 v2, s10, v2")
e(f"s_mul_i32 s11, s3, {4*1040}")
e(f"s_add_u32 s11, s11, {W2S}")
for i in range(4):
    sadd64(12, W2, i * 1024)
    e("s_mov_b32 m0, s11")
    nop(0)
    e("global_load_lds_dwordx4 v2, s[12:13] nt")
    e("s_add_u32 s11, s11, 1040")
e("v_and_b32 v3, 31, v1")
e("s_lshl_b32 s10, s50, 6")
e("v_lshl_add_u32 v3, v3, 1, s10")
e(f"global_load_ushort v96, v3, {sp(B1)}")
col_of_lane(97, 3)
e("v_lshlrev_b32 v3, 1, v97")
e(f"global_load_ushort v98, v3, {sp(X)}")
e(f"s_mov_b32 s10, {HB1 + 4096 + 23*256}")
wave0_hint_barrier(10, 16)
skm = uid("d")
e("s_cmp_ge_u32 s3, 6")
e(f"s_cbranch_scc1 {skm}")
e("v_lshlrev_b32 v12, 4, v0")
e(f"v_add_u32 v12, {HB1 + 256*16}, v12")
lp = uid("g")
lab(lp)
e(f"global_load_dwordx4 v[16:19], v12, {sp(WS)} sc1")
e("s_waitcnt vmcnt(0)")
tagcheck([16], 40, lp)
e("v_lshlrev_b32 v3, 3, v0")
e(f"ds_write_b64 v3, v[16:17] offset:{MODL}" if MODL < 65536 else "")
if MODL >= 65536:
    L.pop()
    e(f"v_add_u32 v3, {MODL}, v3")
    e("ds_write_b64 v3, v[16:17]")
lab(skm)
e("s_waitcnt vmcnt(0) lgkmcnt(0)")
e("s_barrier")
e("v_lshrrev_b32 v2, 5, v1")
e("s_lshl_b32 s10, s3, 2")
e("v_add_u32 v2, s10, v2")
e("s_movk_i32 s10, 1040")
e("v_mul_lo_u32 v2, v2, s10")
e("v_bfe_u32 v3, v1, 4, 1")
e("v_lshl_add_u32 v2, v3, 9, v2")
e("v_bfe_u32 v3, v1, 2, 2")
e("v_lshl_add_u32 v2, v3, 6, v2")
e("v_and_b32 v3, 3, v1")
e("v_lshl_add_u32 v2, v3, 3, v2")
tr_frags(64, [2], 2, 2, 2 * 1040, 32, 256)
e("v_lshrrev_b32 v2, 4, v1")
e("v_lshlrev_b32 v2, 3, v2")
e("v_bfe_u32 v3, v1, 2, 2")
e("v_add_u32 v2, v2, v3")
e("v_mul_lo_u32 v2, v2, s10")
e("v_and_b32 v3, 3, v1")
e("v_lshl_add_u32 v2, v3, 3, v2")
e("s_lshl_b32 s11, s3, 7")
e(f"s_add_u32 s11, s11, {W2S}")
e("v_add_u32 v2, s11, v2")
tr_frags(80, [2], 1, 4, 0, 32, 4 * 1040)
e("v_lshlrev_b32 v3, 1, v97")
e(f"v_add_u32 v3, {MODL}, v3")
e("ds_read_u16 v99, v3")
e("v_lshlrev_b32 v3, 4, v1")
e(f"v_add_u32 v3, {MODL}, v3")
e("ds_read_b128 v[16:19], v3 offset:1024")
e("ds_read_b128 v[20:23], v3 offset:2048")
e("s_waitcnt lgkmcnt(0)")
for k in range(4):
    unpack2(16 + k, 100 + 2 * k)
    unpack2(20 + k, 108 + 2 * k)
for d in range(108, 116):
    e(f"v_add_f32 {v(d)}, 1.0, {v(d)}")
for d in (96, 98, 99):
    e(f"v_lshlrev_b32 {v(d)}, 16, {v(d)}")
e(f"s_mov_b32 s51, {HB4A:#x}")
sweep8_addr(52, 51)
e("v_lshlrev_b32 v53, 2, v97")
e(f"v_add_u32 v53, {X1L}, v53")
e("v_lshlrev_b32 v54, 5, v1")
e(f"v_add_u32 v54, {X1L}, v54")
e("s_lshl_b32 s10, s3, 10")
e(f"s_add_u32 s10, s10, {YL}")
e("v_lshl_add_u32 v55, v1, 4, s10")
e("v_lshrrev_b32 v3, 4, v1")
e("s_lshl_b32 s11, s3, 7")
e("s_add_u32 s10, s10, s11")
e("v_lshl_add_u32 v56, v3, 4, s10")
e("v_and_b32 v3, 15, v1")
e("s_lshl_b32 s10, s3, 7")
e(f"s_add_u32 s10, s10, {HPL}")
e("v_lshl_add_u32 v57, v3, 2, s10")
e("v_and_b32 v3, 31, v1")
e("v_lshlrev_b32 v58, 2, v3")
e(f"v_add_u32 v58, {HPL}, v58")
e("s_lshl_b32 s10, s3, 6")
e(f"s_add_u32 s10, s10, {HL}")
e("v_lshl_add_u32 v59, v3, 1, s10")
e("v_lshrrev_b32 v3, 4, v1")
e("v_lshl_add_u32 v60, v3, 4, s10")
e("v_and_b32 v3, 15, v1")
e("s_lshl_b32 s10, s50, 11")
e("s_lshl_b32 s11, s3, 8")
e("s_add_u32 s10, s10, s11")
e(f"s_add_u32 s10, s10, {HB6:#x}")
e("v_lshl_add_u32 v61, v3, 4, s10")
e(f"s_mov_b32 s10, {HB3ML:#x}")
def _p():
    e("v_lshlrev_b32 v20, 10, v1")
    e(f"v_add_u32 v20, {HB4A:#x}, v20")
wave0_hint2_barrier(10, _p, 0xffffffff, 0xffffffff, 16)
stamp(2)
sweep_pending(sweep8_list(52), 120)
stamp(8)
for i in range(8):
    u = 16 + 4 * i
    for (src, a) in ((u, 120), (u + 1, 122)):
        if i == 0:
            unpack2(src, a)
        else:
            e(f"v_lshlrev_b32 v124, 16, {v(src)}")
            e(f"v_and_b32 v125, 0xffff0000, {v(src)}")
            e(f"v_add_f32 {v(a)}, {v(a)}, v124")
            e(f"v_add_f32 {v(a+1)}, {v(a+1)}, v125")
red4_sg(120)
e("v_fma_f32 v120, v99, v120, v98")
e("v_cvt_pk_bf16_f32 v120, v120, v120")
e("v_lshlrev_b32 v120, 16, v120")
e("ds_write_b32 v53, v120")
e("s_waitcnt lgkmcnt(0)")
e("s_barrier")
e("ds_read_b128 v[16:19], v54")
e("ds_read_b128 v[20:23], v54 offset:16")
e("s_waitcnt lgkmcnt(0)")
def ln8():
    e("v_readfirstlane_b32 s10, v16")
    nop(1)
    for r in range(16, 24): e(f"v_subrev_f32 {v(r)}, s10, {v(r)}")
    e("v_add_f32 v40, v16, v17")
    e("v_mul_f32 v42, v16, v16")
    for r in range(18, 24): e(f"v_add_f32 v40, v40, {v(r)}")
    for r in range(17, 24): e(f"v_fmac_f32 v42, {v(r)}, {v(r)}")
    for r_ in (8, 4, 2, 1):
        nop(0)
        dpp("v_add_f32", 40, 40, 40, f"row_ror:{r_}")
        dpp("v_add_f32", 42, 42, 42, f"row_ror:{r_}")
    for sw in ("v_permlane16_swap_b32", "v_permlane32_swap_b32"):
        e("v_mov_b32 v41, v40")
        e("v_mov_b32 v43, v42")
        nop(0)
        e(f"{sw} v41, v40")
        e(f"{sw} v43, v42")
        e("v_add_f32 v40, v40, v41")
        e("v_add_f32 v42, v42, v43")
    e(f"v_mul_f32 v40, {fhex(1/512)}, v40")
    e(f"v_mul_f32 v42, {fhex(1/512)}, v42")
    e("v_fma_f32 v42, -v40, v40, v42")
    e("v_max_f32 v42, 0, v42")
    e(f"v_add_f32 v42, {fhex(1e-5)}, v42")
    e("v_rsq_f32 v42, v42")
    for r in range(16, 24): e(f"v_sub_f32 {v(r)}, {v(r)}, v40")
    for r in range(16, 24): e(f"v_mul_f32 {v(r)}, {v(r)}, v42")
ln8()
for i in range(8):
    e(f"v_fma_f32 {v(16+i)}, {v(16+i)}, {v(108+i)}, {v(100+i)}")
nop(0)
ln8()
for k in range(4):
    e(f"v_cvt_pk_bf16_f32 {v(24+k)}, {v(16+2*k)}, {v(17+2*k)}")
e("ds_write_b128 v55, v[24:27]")
e("s_waitcnt lgkmcnt(0)")
e("ds_read_b128 v[16:19], v56")
e("ds_read_b128 v[20:23], v56 offset:64")
e("s_waitcnt lgkmcnt(1)")
e("v_mfma_f32_16x16x32_bf16 v[24:27], v[16:19], v[64:67], 0")
e("v_mfma_f32_16x16x32_bf16 v[28:31], v[16:19], v[68:71], 0")
e("s_waitcnt lgkmcnt(0)")
e("v_mfma_f32_16x16x32_bf16 v[24:27], v[20:23], v[72:75], v[24:27]")
e("v_mfma_f32_16x16x32_bf16 v[28:31], v[20:23], v[76:79], v[28:31]")
nop(7)
set_exec(0xffff, 0)
e("ds_write_b32 v57, v24")
e("ds_write_b32 v57, v28 offset:64")
full_exec()
e("s_waitcnt lgkmcnt(0)")
e("s_barrier")
for w in range(8):
    e(f"ds_read_b32 {v(16+w)}, v58 offset:{128*w}")
e("s_waitcnt lgkmcnt(0)")
e("v_add_f32 v16, v16, v17"); e("v_add_f32 v18, v18, v19"); e("v_add_f32 v20, v20, v21"); e("v_add_f32 v22, v22, v23")
e("v_add_f32 v16, v16, v18"); e("v_add_f32 v20, v20, v22")
e("v_add3_u32 v24, 0, 0, 0") if False else None
e("v_add_f32 v24, v16, v20")
K1 = -2 * 0.7978845608028654 * LOG2E
e("v_add_f32 v24, v24, v96")
e("v_mul_f32 v20, v24, v24")
e(f"v_mul_f32 v20, {fhex(0.044715)}, v20")
e("v_fma_f32 v20, v20, v24, v24")
e(f"v_mul_f32 v20, {fhex(K1)}, v20")
e("v_exp_f32 v20, v20")
nop(0)
e("v_add_f32 v20, 1.0, v20")
e("v_rcp_f32 v20, v20")
nop(0)
e("v_mul_f32 v24, v24, v20")
e("v_cvt_pk_bf16_f32 v24, v24, v24")
e("ds_write_b16 v59, v24")
e("s_waitcnt lgkmcnt(0)")
e("ds_read_b128 v[16:19], v60")
e("s_waitcnt lgkmcnt(0)")
for t in range(4):
    e(f"v_mfma_f32_16x16x32_bf16 {v(24+4*t,4)}, v[16:19], {v(80+4*t,4)}, 0")
nop(7)
pub_tiles(24, 61)
stamp(3)
e("s_branch L_end")

lab("L_final")
e("s_barrier")
e("s_sub_u32 s52, s50, 48")
e("v_lshrrev_b32 v3, 3, v0")
e("v_lshlrev_b32 v72, 11, v3")
e("v_and_b32 v2, 7, v0")
e("v_lshl_add_u32 v72, v2, 4, v72")
e("s_lshl_b32 s10, s52, 7")
e("v_add_u32 v72, s10, v72")
e("v_cmp_gt_u32 vcc, 32, v3")
e("s_mov_b64 s[54:55], vcc")
e("v_cmp_gt_u32 vcc, 43, v3")
e("s_mov_b64 s[56:57], vcc")
bitswap_rho(48, 3)
e("v_lshl_add_u32 v48, v2, 2, v48")
e("s_lshl_b32 s10, s3, 7")
e("v_lshl_add_u32 v48, v48, 2, s10")
e("v_and_b32 v3, 3, v1")
e("v_lshlrev_b32 v70, 4, v3")
e("v_bfe_u32 v3, v1, 2, 3")
e("v_add_u32 v70, v70, v3")
e("s_lshr_b32 s10, s52, 1")
e("s_lshl_b32 s10, s10, 6")
e("s_and_b32 s11, s52, 1")
e("s_lshl_b32 s11, s11, 3")
e("s_add_u32 s10, s10, s11")
e("v_add_u32 v70, s10, v70")
e("v_lshlrev_b32 v71, 1, v70")
e(f"global_load_ushort v64, v71, {sp(X)}")
e(f"global_load_ushort v65, v71, {sp(B2)}")
e("s_waitcnt vmcnt(0)")
get_tags()
skr = uid("d")
e("s_cmp_lg_u32 s3, 0")
e(f"s_cbranch_scc1 {skr}")
e(f"s_mov_b32 s10, {HB1 + 4096 + 31*256}")
hint_wait(10, 16)
e("v_lshrrev_b32 v3, 2, v70")
e("v_lshlrev_b32 v3, 4, v3")
e(f"v_add_u32 v10, {HB1 + 256*16}, v3")
e(f"v_add_u32 v11, {HB1 + 640*16}, v3")
lp = uid("g")
lab(lp)
e(f"global_load_dwordx4 v[16:19], v10, {sp(WS)} sc1")
e(f"global_load_dwordx4 v[20:23], v11, {sp(WS)} sc1")
e("s_waitcnt vmcnt(0)")
tagcheck([16, 20], 40, lp)
e("v_and_b32 v3, 2, v70")
e("v_cmp_ne_u32 vcc, 0, v3")
nop(1)
e("v_cndmask_b32 v66, v16, v17, vcc")
e("v_cndmask_b32 v67, v20, v21, vcc")
e("v_and_b32 v3, 1, v70")
e("v_lshlrev_b32 v3, 4, v3")
e("v_lshrrev_b32 v66, v3, v66")
e("v_lshrrev_b32 v67, v3, v67")
for d in (64, 65, 66, 67):
    e(f"v_lshlrev_b32 {v(d)}, 16, {v(d)}")
lab(skr)
def fin_gather(hb, mask, ldsoff):
    e(f"v_add_u32 v10, {hb:#x}, v72")
    e("v_mov_b32 v16, 0"); e("v_mov_b32 v17, 0"); e(f"v_mov_b32 v18, {T0}"); e(f"v_mov_b32 v19, {T1}")
    lp = uid("g"); sk = uid("r")
    e(f"s_cmp_eq_u64 {mask}, 0")
    e(f"s_cbranch_scc1 {sk}")
    lab(lp)
    e(f"s_mov_b64 exec, {mask}")
    e(f"global_load_dwordx4 v[16:19], v10, {sp(WS)} sc1")
    full_exec()
    e("s_waitcnt vmcnt(0)")
    tagcheck([16], 40, lp)
    lab(sk)
    unpack2(16, 20); unpack2(17, 22)
    red4_sg(20)
    nop(1)
    dpp("v_add_f32", 20, 20, 20, "row_ror:8")
    set_exec(0x00ff00ff, 0x00ff00ff)
    e(f"ds_write_b32 v48, v20 offset:{ldsoff}")
    full_exec()
    e("s_waitcnt lgkmcnt(0)")
    e("s_barrier")
    e("s_cmp_lg_u32 s3, 0")
    skw = uid("rw")
    e(f"s_cbranch_scc1 {skw}")
    e("v_and_b32 v3, 31, v1")
    e("v_lshlrev_b32 v3, 2, v3")
    for w in range(8):
        e(f"ds_read_b32 {v(24+w)}, v3 offset:{ldsoff+128*w}")
    e("s_waitcnt lgkmcnt(0)")
    e("v_add_f32 v24, v24, v25"); e("v_add_f32 v26, v26, v27"); e("v_add_f32 v28, v28, v29"); e("v_add_f32 v30, v30, v31")
    e("v_add_f32 v24, v24, v26"); e("v_add_f32 v28, v28, v30"); e("v_add_f32 v16, v24, v28")
    return skw
e(f"s_mov_b32 s10, {HB3ML:#x}")
wave0_hint_barrier(10, 16)
skw = fin_gather(HB4A, "s[54:55]", 0)
e("v_fma_f32 v68, v66, v16, v64")
e("v_cvt_pk_bf16_f32 v68, v68, v68")
e("v_lshlrev_b32 v68, 16, v68")
lab(skw)
stamp(3)
skw = fin_gather(HB6, "s[56:57]", 1024)
e("v_add_f32 v16, v16, v65")
e("v_fma_f32 v16, v67, v16, v68")
e("v_cvt_pk_bf16_f32 v16, v16, v16")
set_exec(0xffffffff, 0)
e(f"global_store_short v71, v16, {sp(OUT)}")
e("s_cmp_lg_u32 s52, 0")
e(f"s_cbranch_scc1 {skw}")
set_exec(1, 0)
e(f"v_mov_b32 v3, {EPOCH:#x}")
e(f"v_mov_b32 v24, {T0}")
e(f"global_store_dword v3, v24, {sp(WS)} sc1")
lab(skw)
full_exec()
stamp(5)
e("s_branch L_end")

lab("L_roleB")
e("s_lshl_b32 s50, s48, 1")
e("s_add_u32 s50, s50, s49")
e("s_lshl_b32 s50, s50, 8")
e(f"s_add_u32 s50, s50, {HBQ:#x}")
e("v_lshlrev_b32 v2, 4, v1")
e(f"global_load_dwordx4 v[128:131], v2, {sp(X)}")
e("v_and_b32 v2, 255, v0")
e("v_lshlrev_b32 v2, 2, v2")
e(f"global_load_dword v132, v2, {sp(X)}")
seg64_off()
load_seg64(WQ, 64, 8192)
gemv64m_setup(52)
e("s_lshl_b32 s10, s3, 7")
e("v_lshl_add_u32 v56, v1, 1, s10")
e("v_lshrrev_b32 v3, 4, v1")
e("v_lshl_add_u32 v57, v3, 4, s10")
e("s_lshl_b32 s10, s3, 8")
e("s_add_u32 s10, s10, s50")
e("v_lshl_add_u32 v58, v3, 4, s10")
e("s_waitcnt vmcnt(8)")
get_tags()
skB = uid("b")
e("s_cmp_ge_u32 s3, 4")
e(f"s_cbranch_scc1 {skB}")
for k in range(4): unpack2(128 + k, 16 + 2 * k)
unpack2(132, 134)
e("v_add_f32 v40, v16, v17")
for r in range(18, 24): e(f"v_add_f32 v40, v40, {v(r)}")
wave_red("v_add_f32", 40, 41)
e(f"v_mul_f32 v40, {fhex(1/512)}, v40")
for r in list(range(16, 24)) + [134, 135]: e(f"v_sub_f32 {v(r)}, {v(r)}, v40")
e("v_mul_f32 v42, v16, v16")
for r in range(17, 24): e(f"v_fmac_f32 v42, {v(r)}, {v(r)}")
wave_red("v_add_f32", 42, 41)
e(f"v_mov_b32 v41, {fhex(1e-5)}")
e(f"v_fmac_f32 v41, {fhex(1/512)}, v42")
e("v_rsq_f32 v41, v41")
nop(0)
for r in (134, 135): e(f"v_mul_f32 {v(r)}, {v(r)}, v41")
stamp(5)
e("v_lshlrev_b32 v3, 4, v0")
e(f"v_add_u32 v3, {HB1C:#x}, v3")
for k in range(4):
    sadd64(54 + 2 * k, WS, k * 8192)
    sadd64(62 + 2 * k, WS, k * 8192 + 4096)
_ld = []
for k in range(4):
    _ld.append((f"global_load_dwordx4 {v(16+4*k,4)}, v3, s[{54+2*k}:{55+2*k}] sc1", 16 + 4 * k))
    _ld.append((f"global_load_dwordx4 {v(32+4*k,4)}, v3, s[{62+2*k}:{63+2*k}] sc1", 32 + 4 * k))
sweep_pending(_ld, 136)
for base in (16, 32):
    for o in (0, 1):
        e(f"v_add_f32 {v(base+o)}, {v(base+o)}, {v(base+4+o)}")
        e(f"v_add_f32 {v(base+8+o)}, {v(base+8+o)}, {v(base+12+o)}")
        e(f"v_add_f32 {v(base+o)}, {v(base+o)}, {v(base+8+o)}")
    e(f"v_cvt_pk_bf16_f32 {v(base)}, {v(base)}, {v(base+1)}")
    unpack2(base, base + 2)
for o in (0, 1):
    e(f"v_fma_f32 {v(34+o)}, {v(134+o)}, {v(34+o)}, {v(134+o)}")
    e(f"v_add_f32 {v(34+o)}, {v(34+o)}, {v(18+o)}")
e("v_lshlrev_b32 v3, 3, v0")
e("ds_write_b64 v3, v[34:35]")
stamp(4)
lab(skB)
e("s_waitcnt vmcnt(0) lgkmcnt(0)")
e("s_barrier")
stamp(1)
gemv64m(64, 0, 2048, 52)
e("s_waitcnt lgkmcnt(0)")
e("s_barrier")
e("s_cmp_lg_u32 s3, 0")
e("s_cbranch_scc1 L_end")
sum64(2048, 24)
nop(1)
for k in range(4):
    e(f"v_mov_b32_dpp {v(28+k)}, v24 quad_perm:[{k},{k},{k},{k}] row_mask:0xf bank_mask:0xf")
e("v_cvt_pk_bf16_f32 v32, v28, v29")
e("v_cvt_pk_bf16_f32 v33, v30, v31")
e(f"v_mov_b32 v34, {T0}")
e(f"v_mov_b32 v35, {T1}")
e("v_lshl_add_u32 v3, v1, 2, s50")
set_exec(0x11111111, 0x11111111)
e(f"global_store_dwordx4 v3, v[32:35], {sp(WS)} sc1")
full_exec()
stamp(2)
e("s_branch L_end")

CK_ROW = 1040
QA = 128 * CK_ROW
PB = QA + 16 * CK_ROW
MX = PB + 16 * 272
lab("L_roleC")
e("v_lshrrev_b32 v2, 4, v1")
e("v_lshlrev_b32 v50, 18, v2")
e("v_and_b32 v3, 15, v1")
e("v_lshl_add_u32 v50, v3, 4, v50")
e("s_lshl_b32 s10, s49, 20")
e("s_lshl_b32 s11, s48, 11")
e("s_add_u32 s10, s10, s11")
e("s_lshl_b32 s11, s3, 8")
e("s_add_u32 s10, s10, s11")
e(f"s_add_u32 s10, s10, {HB3:#x}")
e("v_add_u32 v50, s10, v50")
for r in range(4):
    sadd64(54 + 2 * r, WS, r * 65536)
e("v_lshlrev_b32 v51, 9, v1")
e("s_lshl_b32 s10, s49, 13")
e("s_lshl_b32 s11, s48, 4")
e("s_add_u32 s10, s10, s11")
e(f"s_add_u32 s10, s10, {HB3ML:#x}")
e("v_add_u32 v51, s10, v51")
e("v_and_b32 v2, 127, v0")
e("v_lshlrev_b32 v52, 4, v2")
e("s_lshr_b32 s10, s3, 1")
e("s_lshl_b32 s11, s49, 4")
e("s_add_u32 s11, s11, s10")
e("s_lshl_b32 s11, s11, 11")
e(f"s_add_u32 s11, s11, {HB2:#x}")
e("v_add_u32 v52, s11, v52")
e(f"s_mul_i32 s10, s10, {CK_ROW}")
e("v_lshlrev_b32 v53, 3, v2")
e("v_add_u32 v53, s10, v53")
e(f"v_add_u32 v53, {QA}, v53")
for i in range(4):
    sadd64(62 + 2 * i, WS, i * 8192)
e("v_and_b32 v2, 15, v1")
e(f"s_movk_i32 s10, {CK_ROW}")
e("v_mul_lo_u32 v49, v2, s10")
e("v_lshrrev_b32 v3, 4, v1")
e("v_lshl_add_u32 v49, v3, 4, v49")
e(f"v_add_u32 v49, {QA}, v49")
e("v_lshlrev_b32 v54, 5, v2")
e(f"v_add_u32 v54, {MX}, v54")
e("s_lshl_b32 s10, s3, 2")
e("v_add_u32 v58, s10, v54")
e("s_movk_i32 s10, 272")
e("v_mul_lo_u32 v56, v2, s10")
e(f"v_add_u32 v56, {PB}, v56")
e("v_lshl_add_u32 v55, v3, 3, v56")
e("s_lshl_b32 s10, s3, 5")
e("v_add_u32 v55, s10, v55")
e("v_lshl_add_u32 v56, v3, 4, v56")
e("v_lshlrev_b32 v2, 4, v1")
e("s_lshl_b32 s10, s48, 17")
e("s_lshl_b32 s11, s3, 14")
e("s_add_u32 s10, s10, s11")
e(f"s_add_u32 s12, s{CKV}, s10")
e(f"s_addc_u32 s13, s{CKV+1}, 0")
e(f"s_mul_i32 s11, s3, {16*CK_ROW}")
for i in range(16):
    e("s_mov_b32 m0, s11")
    e("s_nop 0")
    e("global_load_lds_dwordx4 v2, s[12:13] nt")
    if i < 15:
        e("s_add_u32 s12, s12, 1024")
        e("s_addc_u32 s13, s13, 0")
        e(f"s_add_u32 s11, s11, {CK_ROW}")
e("s_waitcnt vmcnt(0)")
get_tags()
e("s_barrier")
stamp(4)
e("v_and_b32 v2, 15, v1")
e("s_lshl_b32 s10, s3, 4")
e("v_add_u32 v2, s10, v2")
e(f"s_movk_i32 s10, {CK_ROW}")
e("v_mul_lo_u32 v2, v2, s10")
e("v_lshrrev_b32 v3, 4, v1")
e("v_lshl_add_u32 v2, v3, 4, v2")
for j in range(16):
    e(f"ds_read_b128 {v(64+4*j,4)}, v2 offset:{64*j}")
e("v_lshrrev_b32 v2, 4, v1")
e("v_lshlrev_b32 v2, 3, v2")
e("v_and_b32 v3, 15, v1")
e("v_lshrrev_b32 v3, 2, v3")
e("v_add_u32 v2, v2, v3")
e("v_mul_lo_u32 v2, v2, s10")
e("v_and_b32 v3, 3, v1")
e("v_lshl_add_u32 v2, v3, 3, v2")
e("s_lshl_b32 s11, s3, 7")
e("v_add_u32 v2, s11, v2")
e(f"v_add_u32 v3, {64*CK_ROW}, v2")
for j in range(4):
    for jj in range(4):
        base = 2 if j < 2 else 3
        off = (j % 2) * 32 * CK_ROW + jj * 32
        d = 128 + (j * 4 + jj) * 4
        e(f"ds_read_b64_tr_b16 {v(d,2)}, {v(base)} offset:{off}")
        e(f"ds_read_b64_tr_b16 {v(d+2,2)}, {v(base)} offset:{off+4*CK_ROW}")
e("s_waitcnt lgkmcnt(0)")
e(f"s_mov_b32 s10, {HB1C:#x}")
def _c():
    e("v_lshlrev_b32 v20, 10, v1")
    e("s_lshl_b32 s10, s49, 15")
    e(f"s_add_u32 s10, s10, {HB2+1008:#x}")
    e("v_add_u32 v20, s10, v20")
wave0_hint2_barrier(10, _c, 0xffffffff, 0, 16)
stamp(1)
_ld = []
for i in range(4):
    _ld.append((f"global_load_dwordx4 {v(16+4*i,4)}, v52, s[{62+2*i}:{63+2*i}] sc1", 16 + 4 * i))
sweep_pending(_ld, 192)
stamp(3)
for i in range(4):
    e(f"ds_write_b64 v53, {v(16+4*i,2)} offset:{i*4*CK_ROW}")
e("s_waitcnt lgkmcnt(0)")
stamp(5)
e("s_barrier")
stamp(6)
for j in range(16):
    e(f"ds_read_b128 {v(192+4*j,4)}, v49 offset:{64*j}")
for j in range(16):
    e(f"s_waitcnt lgkmcnt({15-j})")
    c = "0" if j == 0 else "v[16:19]"
    e(f"v_mfma_f32_16x16x32_bf16 v[16:19], {v(64+4*j,4)}, {v(192+4*j,4)}, {c}")
nop(7)
SCL = 128 ** -0.5 * LOG2E
for r in range(4): e(f"v_mul_f32 {v(16+r)}, {fhex(SCL)}, {v(16+r)}")
e("v_max_f32 v20, v16, v17")
e("v_max3_f32 v20, v20, v18, v19")
e("v_mov_b32 v21, v20")
nop(1)
e("v_permlane16_swap_b32 v21, v20")
e("v_max_f32 v20, v20, v21")
e("v_mov_b32 v21, v20")
nop(1)
e("v_permlane32_swap_b32 v21, v20")
e("v_max_f32 v20, v20, v21")
set_exec(0xffff, 0)
e("ds_write_b32 v58, v20")
full_exec()
e("s_waitcnt lgkmcnt(0)")
stamp(7)
e("s_barrier")
stamp(8)
e("ds_read_b128 v[24:27], v54")
e("ds_read_b128 v[28:31], v54 offset:16")
e("s_waitcnt lgkmcnt(0)")
e("v_max3_f32 v20, v24, v25, v26")
e("v_max3_f32 v20, v20, v27, v28")
e("v_max3_f32 v20, v20, v29, v30")
e("v_max_f32 v20, v20, v31")
for r in range(4):
    e(f"v_sub_f32 {v(16+r)}, {v(16+r)}, v20")
for r in range(4):
    e(f"v_exp_f32 {v(16+r)}, {v(16+r)}")
nop(0)
e("v_cvt_pk_bf16_f32 v22, v16, v17")
e("v_cvt_pk_bf16_f32 v23, v18, v19")
e("ds_write_b64 v55, v[22:23]")
e("v_add_f32 v16, v16, v17")
e("v_add_f32 v18, v18, v19")
e("v_add_f32 v16, v16, v18")
e("v_mov_b32 v21, v16")
nop(1)
e("v_permlane16_swap_b32 v21, v16")
e("v_add_f32 v16, v16, v21")
e("v_mov_b32 v21, v16")
nop(1)
e("v_permlane32_swap_b32 v21, v16")
e("v_add_f32 v16, v16, v21")
set_exec(0xffff, 0)
e("ds_write_b32 v58, v16 offset:512")
full_exec()
e("s_waitcnt lgkmcnt(0)")
stamp(9)
e("s_barrier")
stamp(10)
for j in range(4):
    e(f"ds_read_b128 {v(192+4*j,4)}, v56 offset:{64*j}")
e("ds_read_b128 v[40:43], v54 offset:512")
e("ds_read_b128 v[44:47], v54 offset:528")
for j in range(4):
    e(f"s_waitcnt lgkmcnt({5-j})")
    for jj in range(4):
        c = "0" if j == 0 else v(24 + 4 * jj, 4)
        e(f"v_mfma_f32_16x16x32_bf16 {v(24+4*jj,4)}, {v(192+4*j,4)}, {v(128+(j*4+jj)*4,4)}, {c}")
e(f"v_mov_b32 v22, {T0}")
e(f"v_mov_b32 v23, {T1}")
e("s_waitcnt lgkmcnt(0)")
e("v_add_f32 v40, v40, v41"); e("v_add_f32 v42, v42, v43"); e("v_add_f32 v44, v44, v45"); e("v_add_f32 v46, v46, v47")
e("v_add_f32 v40, v40, v42"); e("v_add_f32 v44, v44, v46"); e("v_add_f32 v21, v40, v44")
nop(3)
pub_exec()
for r in range(4):
    d = 208 + 4 * r
    e(f"v_cvt_pk_bf16_f32 {v(d)}, {v(24+r)}, {v(28+r)}")
    e(f"v_cvt_pk_bf16_f32 {v(d+1)}, {v(32+r)}, {v(36+r)}")
    e(f"v_mov_b32 {v(d+2)}, {T0}")
    e(f"v_mov_b32 {v(d+3)}, {T1}")
    e(f"global_store_dwordx4 v50, {v(d,4)}, s[{54+2*r}:{55+2*r}] sc1")
sk = uid("c")
e("s_cmp_lg_u32 s3, 0")
e(f"s_cbranch_scc1 {sk}")
pub_exec(0xffff, 0)
e(f"global_store_dwordx4 v51, v[20:23], {sp(WS)} sc1")
lab(sk)
full_exec()
stamp(2)
e("s_branch L_end")


OB, CB = 133120, 134144
lab("L_roleA")
e("s_lshl_b32 s51, s48, 16")
e(f"s_add_u32 s51, s51, {HB3:#x}")
sweep8_addr(52, 51)
e("v_and_b32 v3, 31, v1")
e("s_lshl_b32 s10, s48, 9")
e(f"s_add_u32 s10, s10, {HB3ML:#x}")
e("v_lshl_add_u32 v54, v3, 4, s10")
e("v_lshrrev_b32 v55, 4, v1")
e("v_lshlrev_b32 v55, 5, v55")
col_of_lane(56, 3)
e("v_lshlrev_b32 v56, 1, v56")
e(f"v_add_u32 v56, {OB}, v56")
e("v_lshrrev_b32 v3, 4, v1")
e("v_lshlrev_b32 v57, 4, v3")
e(f"v_add_u32 v57, {OB}, v57")
e("v_and_b32 v3, 15, v1")
e("s_lshl_b32 s10, s3, 5")
e(f"s_add_u32 s10, s10, {CB}")
e("v_lshl_add_u32 v58, v3, 1, s10")
e("s_lshl_b32 s10, s48, 11")
e("s_lshl_b32 s11, s49, 10")
e("s_add_u32 s10, s10, s11")
e(f"s_add_u32 s10, s10, {HB4A:#x}")
e("v_lshl_add_u32 v59, v1, 4, s10")
e("s_lshl_b32 s10, s3, 6")
e(f"s_add_u32 s10, s10, {CB+256}")
e("v_lshl_add_u32 v60, v3, 2, s10")
e("v_lshrrev_b32 v61, 4, v1")
e("v_lshlrev_b32 v61, 7, v61")
e("v_lshl_add_u32 v61, v3, 2, v61")
e(f"v_add_u32 v61, {CB+256}, v61")
e("s_waitcnt vmcnt(0)")
get_tags()
e(f"s_mov_b32 s10, {HB1C:#x}")
wave0_hint_barrier(10, 16)
e("v_lshrrev_b32 v2, 4, v1")
e("v_lshlrev_b32 v2, 13, v2")
e("v_and_b32 v3, 15, v1")
e("v_lshl_add_u32 v2, v3, 4, v2")
e("s_lshl_b32 s10, s3, 19")
e("s_lshl_b32 s11, s48, 8")
e("s_add_u32 s10, s10, s11")
e("v_add_u32 v2, s10, v2")
e(f"s_mul_i32 s11, s3, {16*1040}")
e(f"s_mov_b32 s12, s{WUV}")
e(f"s_mov_b32 s13, s{WUV+1}")
for i in range(16):
    e("s_mov_b32 m0, s11")
    nop(0)
    e("global_load_lds_dwordx4 v2, s[12:13] nt")
    if i < 15:
        e("s_add_u32 s12, s12, 32768")
        e("s_addc_u32 s13, s13, 0")
        e("s_add_u32 s11, s11, 1040")
e("v_lshrrev_b32 v2, 4, v1")
e("s_movk_i32 s10, 2080")
e("v_mul_lo_u32 v2, v2, s10")
e("v_bfe_u32 v3, v1, 2, 2")
e("v_lshl_add_u32 v2, v3, 8, v2")
e("v_and_b32 v3, 3, v1")
e("v_lshl_add_u32 v2, v3, 3, v2")
e("s_lshl_b32 s10, s3, 5")
e("v_add_u32 v2, s10, v2")
e(f"v_add_u32 v3, {8*8320}, v2")
e("s_waitcnt vmcnt(0)")
e("s_barrier")
tr_frags(64, [2, 3], 16, 1, 8320, 0, 1040, jsplit=8)
e("s_waitcnt lgkmcnt(0)")
e("s_barrier")
e("v_lshrrev_b32 v2, 5, v1")
e("v_lshlrev_b32 v2, 10, v2")
e("v_and_b32 v3, 31, v1")
e("v_lshl_add_u32 v2, v3, 4, v2")
e("s_lshl_b32 s10, s48, 17")
e("s_lshl_b32 s11, s3, 14")
e("s_add_u32 s10, s10, s11")
e("s_lshl_b32 s11, s49, 9")
e("s_add_u32 s10, s10, s11")
e(f"s_add_u32 s12, s{WO}, s10")
e(f"s_addc_u32 s13, s{WO+1}, 0")
e(f"s_mul_i32 s11, s3, {8*1040}")
for i in range(8):
    e("s_mov_b32 m0, s11")
    nop(0)
    e("global_load_lds_dwordx4 v2, s[12:13] nt")
    if i < 7:
        e("s_add_u32 s12, s12, 2048")
        e("s_addc_u32 s13, s13, 0")
        e("s_add_u32 s11, s11, 1040")
e("v_lshrrev_b32 v2, 4, v1")
e("v_lshlrev_b32 v2, 2, v2")
e("v_bfe_u32 v3, v1, 3, 1")
e("v_add_u32 v2, v2, v3")
e("s_movk_i32 s10, 1040")
e("v_mul_lo_u32 v2, v2, s10")
e("v_bfe_u32 v3, v1, 2, 1")
e("v_lshl_add_u32 v2, v3, 9, v2")
e("v_and_b32 v3, 3, v1")
e("v_lshl_add_u32 v2, v3, 3, v2")
e("s_lshl_b32 s11, s3, 6")
e("v_add_u32 v2, s11, v2")
e("s_waitcnt vmcnt(0)")
e("s_barrier")
tr_frags(128, [2], 4, 2, 16 * 1040, 32, 2 * 1040)
e("s_waitcnt lgkmcnt(0)")
stamp(4)
e("s_lshl_b32 s10, s48, 11")
e(f"s_add_u32 s10, s10, {HB2:#x}")
def _a():
    e("v_mov_b32 v20, v54")
wave0_hint2_barrier(10, _a, 0xffffffff, 0, 16)
stamp(1)
stamp_s9(16)
sweep_pending(sweep8_list(52) + [(f"global_load_dwordx4 v[192:195], v54, {sp(WS)} sc1", 192)], 196)
stamp(3)
stamp_s9(17)
e("v_mov_b32 v196, v192")
wave_red("v_max_f32", 196, 197, half=True)
e("v_sub_f32 v192, v192, v196")
e("v_exp_f32 v192, v192")
nop(0)
e("v_mul_f32 v196, v192, v193")
wave_red("v_add_f32", 196, 197, half=True)
e("v_rcp_f32 v196, v196")
nop(0)
e("v_mul_f32 v192, v192, v196")
for i in range(8):
    e(f"ds_bpermute_b32 {v(200+i)}, v55, v192 offset:{4*i}")
for i in range(8):
    u = 16 + 4 * i
    e(f"s_waitcnt lgkmcnt({7-i})")
    for (src, a) in ((u, 208), (u + 1, 210)):
        e(f"v_lshlrev_b32 v196, 16, {v(src)}")
        e(f"v_and_b32 v197, 0xffff0000, {v(src)}")
        if i == 0:
            e(f"v_mul_f32 {v(a)}, {v(200+i)}, v196")
            e(f"v_mul_f32 {v(a+1)}, {v(200+i)}, v197")
        else:
            e(f"v_fmac_f32 {v(a)}, {v(200+i)}, v196")
            e(f"v_fmac_f32 {v(a+1)}, {v(200+i)}, v197")
red4_sg(208)
e("v_cvt_pk_bf16_f32 v208, v208, v208")
e("ds_write_b16 v56, v208")
e("s_waitcnt lgkmcnt(0)")
stamp(5)
e("s_barrier")
stamp(6)
for j in range(16):
    e(f"ds_read_b128 {v(192+4*j,4)}, v57 offset:{64*j}")
for j in range(16):
    e(f"s_waitcnt lgkmcnt({15-j})")
    c = "0" if j == 0 else "v[16:19]"
    e(f"v_mfma_f32_16x16x32_bf16 v[16:19], {v(192+4*j,4)}, {v(64+4*j,4)}, {c}")
nop(7)
e("v_cvt_pk_bf16_f32 v16, v16, v16")
set_exec(0xffff, 0)
e("ds_write_b16 v58, v16")
full_exec()
e("s_waitcnt lgkmcnt(0)")
e("s_barrier")
stamp(7)
for j in range(4):
    e(f"ds_read_b128 {v(192+4*j,4)}, v57 offset:{1024+64*j}")
for j in range(4):
    e(f"s_waitcnt lgkmcnt({3-j})")
    for t in range(2):
        c = "0" if j == 0 else v(24 + 4 * t, 4)
        e(f"v_mfma_f32_16x16x32_bf16 {v(24+4*t,4)}, {v(192+4*j,4)}, {v(128+(j*2+t)*4,4)}, {c}")
nop(7)
e("v_cvt_pk_bf16_f32 v24, v24, v28")
set_exec(0xffff, 0)
e("ds_write_b32 v60, v24")
full_exec()
e("s_waitcnt lgkmcnt(0)")
e("s_barrier")
sk = uid("a")
e("s_cmp_lg_u32 s3, 0")
e(f"s_cbranch_scc1 {sk}")
e("ds_read_b32 v16, v61")
e("ds_read_b32 v17, v61 offset:64")
e(f"v_mov_b32 v18, {T0}")
e(f"v_mov_b32 v19, {T1}")
e("s_waitcnt lgkmcnt(0)")
e(f"global_store_dwordx4 v59, v[16:19], {sp(WS)} sc1")
lab(sk)
stamp(2)

lab("L_end")
e("s_endpgm")
L.append('.section .rodata,"a"')
L.append(".p2align 6")
L.append(f".amdhsa_kernel {NAME}_kernel")
L.append("  .amdhsa_next_free_vgpr 256")
L.append("  .amdhsa_next_free_sgpr 102")
L.append("  .amdhsa_accum_offset 256")
L.append("  .amdhsa_group_segment_fixed_size 0")
L.append("  .amdhsa_kernarg_size 128")
L.append("  .amdhsa_user_sgpr_count 2")
L.append("  .amdhsa_user_sgpr_kernarg_segment_ptr 1")
L.append("  .amdhsa_system_sgpr_workgroup_id_x 1")
L.append(".end_amdhsa_kernel")
open(OUTF, "w").write("\n".join(L) + "\n")
print("wrote", OUTF, len(L), "lines")
```

```python
import sys, struct

DEBUG = "--debug" in sys.argv
NODRY = "--nodry" in sys.argv
OUTF = [a for a in sys.argv[1:] if not a.startswith("--")]
NAME = "adaLN_cond__compressed_kv_cla__mixer_channel_mlp__decode"
OUTF = OUTF[0] if OUTF else f"cdna_kernels/{NAME}.s"

HB1C = 0x8000
HBQ = 0x4000
PS3 = 0x308000
PSQ = 0x310000
PS4 = 0x320000
PSA = 0x330000
PS1 = 0x340000
HBQL = 0x350000
HB1, HB2, HB3, HB3ML, HB4A, HB4B, HB6, EPOCH = 0x0, 0x10000, 0x100000, 0x300000, 0x400000, 0x480000, 0x500000, 0x600000
TS = 0x2000000
X, CKV, WQ, WUK, WUV, WO, BX, W1, B1, W2, B2, C, WMOD, OUT, DBG, WS = [16 + 2 * i for i in range(16)]
def sp(b): return f"s[{b}:{b+1}]"
LDS_BYTES = 155136
SPIN = 400000
LOG2E = 1.4426950408889634
T0, T1 = "s8", "s93"
PM = "s[96:97]"

L = []
def e(s): L.append("    " + s)
def lab(s): L.append(s + ":")
_uid = [0]
def uid(p="L"):
    _uid[0] += 1
    return f"{p}_{_uid[0]}"
def v(a, n=1): return f"v{a}" if n == 1 else f"v[{a}:{a+n-1}]"
def nop(n): e(f"s_nop {n}")
def fhex(x): return "0x%08x" % struct.unpack("<I", struct.pack("<f", x))[0]

def stamp(k):
    if not DEBUG: return
    sk = uid("st")
    e("s_cmp_lg_u32 s3, 0")
    e(f"s_cbranch_scc1 {sk}")
    e("s_memrealtime s[90:91]")
    e("s_waitcnt lgkmcnt(0)")
    e("v_mov_b32 v255, s90")
    e("v_mov_b32 v254, s92")
    e(f"global_store_dword v254, v255, {sp(WS)} offset:{4*k}")
    lab(sk)

def stamp_w(k):
    if not DEBUG: return
    e("s_memrealtime s[90:91]")
    e("s_lshl_b32 s94, s3, 2")
    e("s_add_u32 s94, s94, s92")
    e("s_waitcnt lgkmcnt(0)")
    e("v_mov_b32 v255, s90")
    e("v_mov_b32 v254, s94")
    e(f"global_store_dword v254, v255, {sp(WS)} offset:{4*k}")

def stamp_s9(k):
    if not DEBUG: return
    sk = uid("st")
    e("s_cmp_lg_u32 s3, 0")
    e(f"s_cbranch_scc1 {sk}")
    e("v_mov_b32 v255, s9")
    e("v_mov_b32 v254, s92")
    e(f"global_store_dword v254, v255, {sp(WS)} offset:{4*k}")
    lab(sk)

def set_exec(lo, hi):
    e(f"s_mov_b32 exec_lo, {lo:#x}")
    e(f"s_mov_b32 exec_hi, {hi:#x}")
def full_exec(): e("s_mov_b64 exec, -1")
def pub_exec(lo=None, hi=None):
    if lo is None:
        e(f"s_mov_b64 exec, {PM}")
    else:
        set_exec(lo, hi)
        e(f"s_and_b64 exec, exec, {PM}")

def spin_bound():
    e("s_add_u32 s9, s9, 1")
    e(f"s_cmp_gt_u32 s9, {SPIN}")
    e("s_cbranch_scc1 L_end")

def tagcheck(units, t, retry):
    us = list(units)
    if len(us) % 2: us.append(us[-1])
    first = True
    for a, b in zip(us[0::2], us[1::2]):
        for k in (0, 1):
            if first:
                e(f"v_min_u32 {v(t+2*k)}, {v(a+2+k)}, {v(b+2+k)}")
                e(f"v_max_u32 {v(t+2*k+1)}, {v(a+2+k)}, {v(b+2+k)}")
            else:
                e(f"v_min3_u32 {v(t+2*k)}, {v(t+2*k)}, {v(a+2+k)}, {v(b+2+k)}")
                e(f"v_max3_u32 {v(t+2*k+1)}, {v(t+2*k+1)}, {v(a+2+k)}, {v(b+2+k)}")
        first = False
    e(f"v_xor_b32 {v(t)}, {T0}, {v(t)}")
    e(f"v_xor_b32 {v(t+1)}, {T0}, {v(t+1)}")
    e(f"v_xor_b32 {v(t+2)}, {T1}, {v(t+2)}")
    e(f"v_xor_b32 {v(t+3)}, {T1}, {v(t+3)}")
    e(f"v_or3_b32 {v(t)}, {v(t)}, {v(t+1)}, {v(t+2)}")
    e(f"v_or_b32 {v(t)}, {v(t)}, {v(t+3)}")
    e(f"v_cmp_ne_u32 vcc, 0, {v(t)}")
    ok = uid("ok")
    e(f"s_cbranch_vccz {ok}")
    spin_bound()
    e(f"s_branch {retry}")
    lab(ok)

def hint_wait(saddr_expr_sgpr, u, sleep=4):
    lp, dn = uid("hw"), uid("hd")
    e(f"v_mov_b32 {v(u+4)}, s{saddr_expr_sgpr}")
    set_exec(1, 0)
    lab(lp)
    e(f"global_load_dwordx4 {v(u,4)}, {v(u+4)}, {sp(WS)} sc1")
    e("s_waitcnt vmcnt(0)")
    e(f"v_xor_b32 {v(u)}, {T0}, {v(u+2)}")
    e(f"v_xor_b32 {v(u+1)}, {T1}, {v(u+3)}")
    e(f"v_or_b32 {v(u)}, {v(u)}, {v(u+1)}")
    e(f"v_cmp_ne_u32 vcc, 0, {v(u)}")
    e(f"s_cbranch_vccz {dn}")
    spin_bound()
    e(f"s_sleep {sleep}")
    e(f"s_branch {lp}")
    lab(dn)
    full_exec()

def hint_multi(addr_v, lo, hi, u, sleep=1, base=224):
    lp, dn = uid("hw"), uid("hd")
    set_exec(lo, hi)
    for k in range(3):
        e(f"global_load_dwordx4 {v(base+4*k,4)}, {v(addr_v)}, {sp(WS)} sc1")
        e(f"s_sleep {sleep+1}")
    lab(lp)
    for k in range(4):
        e(f"global_load_dwordx4 {v(base+4*((k+3)%4),4)}, {v(addr_v)}, {sp(WS)} sc1")
        e("s_waitcnt vmcnt(3)")
        e(f"v_xor_b32 {v(u)}, {T0}, {v(base+4*k+2)}")
        e(f"v_xor_b32 {v(u+1)}, {T1}, {v(base+4*k+3)}")
        e(f"v_or_b32 {v(u)}, {v(u)}, {v(u+1)}")
        e(f"v_cmp_ne_u32 vcc, 0, {v(u)}")
        e(f"s_cbranch_vccz {dn}")
        e(f"s_sleep {sleep}")
    spin_bound()
    e(f"s_branch {lp}")
    lab(dn)
    full_exec()

def wave0_hint2_barrier(sreg, addr_code, lo, hi, u):
    sk = uid("h")
    e("s_cmp_lg_u32 s3, 0")
    e(f"s_cbranch_scc1 {sk}")
    hint_wait(sreg, u)
    addr_code()
    hint_multi(u + 4, lo, hi, u)
    lab(sk)
    e("s_barrier")

def presignal(sreg, shift=0, nl=1, guard=True):
    sk = uid("ps")
    if guard:
        e("s_cmp_lg_u32 s3, 0")
        e(f"s_cbranch_scc1 {sk}")
    e(f"v_mov_b32 v246, {T0}")
    e(f"v_mov_b32 v247, {T1}")
    e(f"v_lshl_add_u32 v248, v1, {shift}, s{sreg}")
    m = (1 << nl) - 1
    set_exec(m & 0xffffffff, m >> 32)
    e(f"global_store_dwordx4 v248, v[244:247], {sp(WS)} sc1")
    full_exec()
    lab(sk)

def wave0_multi_barrier(addr_code, lo, hi, u):
    sk = uid("h")
    e("s_cmp_lg_u32 s3, 0")
    e(f"s_cbranch_scc1 {sk}")
    addr_code()
    hint_multi(u + 4, lo, hi, u)
    lab(sk)
    e("s_barrier")

def wave0_hint_barrier(sreg, u):
    sk = uid("h")
    e("s_cmp_lg_u32 s3, 0")
    e(f"s_cbranch_scc1 {sk}")
    hint_wait(sreg, u)
    lab(sk)
    e("s_barrier")

def dpp(op, d, s0, s1, ctrl):
    e(f"{op}_dpp {v(d)}, {v(s0)}, {v(s1)} {ctrl} row_mask:0xf bank_mask:0xf")

def wave_red(op, a, t, half=False):
    for r in (8, 4, 2, 1):
        nop(1)
        dpp(op, a, a, a, f"row_ror:{r}")
    e(f"v_mov_b32 {v(t)}, {v(a)}")
    nop(1)
    e(f"v_permlane16_swap_b32 {v(t)}, {v(a)}")
    e(f"{op} {v(a)}, {v(a)}, {v(t)}")
    if not half:
        e(f"v_mov_b32 {v(t)}, {v(a)}")
        nop(1)
        e(f"v_permlane32_swap_b32 {v(t)}, {v(a)}")
        e(f"{op} {v(a)}, {v(a)}, {v(t)}")

def red8_to2(acc):
    for k in range(4):
        e(f"v_permlane32_swap_b32 {v(acc+2*k)}, {v(acc+2*k+1)}")
    for k in range(4):
        e(f"v_add_f32 {v(acc+2*k)}, {v(acc+2*k)}, {v(acc+2*k+1)}")
    nop(1)
    e(f"v_permlane16_swap_b32 {v(acc+0)}, {v(acc+2)}")
    e(f"v_permlane16_swap_b32 {v(acc+4)}, {v(acc+6)}")
    e(f"v_add_f32 {v(acc+0)}, {v(acc+0)}, {v(acc+2)}")
    e(f"v_add_f32 {v(acc+4)}, {v(acc+4)}, {v(acc+6)}")

def bitswap_rho(dst, t):
    e(f"v_lshrrev_b32 {v(dst)}, 5, v1")
    e(f"v_lshrrev_b32 {v(t)}, 3, v1")
    e(f"v_and_b32 {v(t)}, 2, {v(t)}")
    e(f"v_or_b32 {v(dst)}, {v(dst)}, {v(t)}")

def gemv_row8(W, nrows, vf, acc, lo, hi):
    for i in range(nrows):
        e(f"v_cvt_pk_bf16_f32 {v(lo+i)}, {v(vf+i)}, 0")
        e(f"v_cvt_pk_bf16_f32 {v(hi+i)}, 0, {v(vf+i)}")
    for i in range(nrows):
        for k in range(4):
            c0 = "0" if i == 0 else v(acc + 2 * k)
            c1 = "0" if i == 0 else v(acc + 2 * k + 1)
            e(f"v_dot2_f32_bf16 {v(acc+2*k)}, {v(W+4*i+k)}, {v(lo+i)}, {c0}")
            e(f"v_dot2_f32_bf16 {v(acc+2*k+1)}, {v(W+4*i+k)}, {v(hi+i)}, {c1}")
    nop(2)

def sadd64(dst, src, imm):
    e(f"s_add_u32 s{dst}, s{src}, {imm}")
    e(f"s_addc_u32 s{dst+1}, s{src+1}, 0")

def unpack2(src, d):
    e(f"v_lshlrev_b32 {v(d)}, 16, {v(src)}")
    e(f"v_and_b32 {v(d+1)}, 0xffff0000, {v(src)}")

def gemv64(W, ldsV, ldsRW, nparts=1, pstride=0):
    e(f"ds_read_b128 v[16:19], v2 offset:{ldsV}")
    e(f"ds_read_b128 v[20:23], v2 offset:{ldsV+16}")
    for p in range(1, nparts):
        e(f"ds_read_b128 {v(24+8*(p-1),4)}, v2 offset:{ldsV+p*pstride}")
        e(f"ds_read_b128 {v(28+8*(p-1),4)}, v2 offset:{ldsV+p*pstride+16}")
    e("s_waitcnt lgkmcnt(0)")
    for p in range(1, nparts):
        for i in range(8):
            e(f"v_add_f32 {v(16+i)}, {v(16+i)}, {v(24+8*(p-1)+i)}")
    gemv_row8(W, 8, 16, 40, 24, 32)
    red8_to2(40)
    nop(0)
    dpp("v_add_f32", 40, 40, 40, "row_ror:8")
    dpp("v_add_f32", 44, 44, 44, "row_ror:8")
    set_exec(0x00ff00ff, 0x00ff00ff)
    e(f"ds_write_b32 v48, v40 offset:{ldsRW}")
    e(f"ds_write_b32 v48, v44 offset:{ldsRW+16}")
    full_exec()
def gemv64_setup():
    e("v_lshrrev_b32 v2, 3, v1")
    e("v_lshlrev_b32 v2, 5, v2")
    e("s_lshl_b32 s10, s3, 8")
    e("v_add_u32 v2, s10, v2")
    bitswap_rho(48, 3)
    e("v_and_b32 v3, 7, v1")
    e("v_lshl_add_u32 v48, v3, 3, v48")
    e("v_lshl_add_u32 v48, v48, 2, s10")
def sum64(ldsRW, dst):
    e("v_lshlrev_b32 v3, 2, v1")
    for w in range(8):
        e(f"ds_read_b32 {v(16+w)}, v3 offset:{ldsRW+256*w}")
    e("s_waitcnt lgkmcnt(0)")
    e("v_add_f32 v16, v16, v17"); e("v_add_f32 v18, v18, v19"); e("v_add_f32 v20, v20, v21"); e("v_add_f32 v22, v22, v23")
    e("v_add_f32 v16, v16, v18"); e("v_add_f32 v20, v20, v22")
    e(f"v_add_f32 {v(dst)}, v16, v20")
def load_seg64(ptr, dst, stride):
    for i in range(8):
        sadd64(12, ptr, i * stride)
        e(f"global_load_dwordx4 {v(dst+4*i,4)}, v10, s[12:13] nt")
def seg64_off():
    e("v_lshrrev_b32 v10, 3, v1")
    e("v_lshlrev_b32 v10, 16, v10")
    e("s_lshl_b32 s10, s3, 19")
    e("s_lshl_b32 s11, s48, 8")
    e("s_add_u32 s10, s10, s11")
    e("s_lshl_b32 s11, s49, 7")
    e("s_add_u32 s10, s10, s11")
    e("v_add_u32 v10, s10, v10")
    e("v_and_b32 v3, 7, v1")
    e("v_lshl_add_u32 v10, v3, 4, v10")
def out512_write(ldsO):
    e("v_lshlrev_b32 v3, 5, v1")
    e("s_lshl_b32 s10, s3, 11")
    e("v_add_u32 v3, s10, v3")
    e(f"ds_write_b128 v3, v[40:43] offset:{ldsO}")
    e(f"ds_write_b128 v3, v[44:47] offset:{ldsO+16}")
def publish512(ldsO, sbase):
    sk = uid("p")
    e("s_cmp_ge_u32 s3, 4")
    e(f"s_cbranch_scc1 {sk}")
    e("v_lshlrev_b32 v3, 3, v0")
    for w in range(8):
        e(f"ds_read_b64 {v(16+2*w,2)}, v3 offset:{ldsO+2048*w}")
    e(f"v_mov_b32 v42, {T0}")
    e(f"v_mov_b32 v43, {T1}")
    e("v_lshlrev_b32 v3, 4, v0")
    e(f"v_add_u32 v3, s{sbase}, v3")
    e("s_waitcnt lgkmcnt(0)")
    for o in (0, 1):
        e(f"v_add_f32 {v(16+o)}, {v(16+o)}, {v(18+o)}"); e(f"v_add_f32 {v(20+o)}, {v(20+o)}, {v(22+o)}")
        e(f"v_add_f32 {v(24+o)}, {v(24+o)}, {v(26+o)}"); e(f"v_add_f32 {v(28+o)}, {v(28+o)}, {v(30+o)}")
        e(f"v_add_f32 {v(16+o)}, {v(16+o)}, {v(20+o)}"); e(f"v_add_f32 {v(24+o)}, {v(24+o)}, {v(28+o)}")
        e(f"v_add_f32 {v(40+o)}, {v(16+o)}, {v(24+o)}")
    pub_exec()
    e(f"global_store_dwordx4 v3, v[40:43], {sp(WS)} sc1")
    full_exec()
    lab(sk)

def get_tags():
    e("v_readfirstlane_b32 s8, v253")
    nop(3)
    e("s_add_u32 s8, s8, 1")
    e("s_xor_b32 s93, s8, 0x5bd1e995")

def dry_begin(name):
    if NODRY:
        return
    e(f"s_mov_b64 {PM}, 0")
    e(f"s_branch {name}_crit")
    lab(f"{name}_ret")
    e(f"s_mov_b64 {PM}, -1")
def dry_end(name):
    if NODRY:
        return
    e(f"s_cmp_eq_u64 {PM}, 0")
    e(f"s_cbranch_scc1 {name}_ret")


def masks_setup(m):
    e("v_and_b32 v3, 1, v1")
    e("v_lshlrev_b32 v3, 4, v3")
    e(f"v_mov_b32 {v(m+3)}, 0xffff")
    e(f"v_lshlrev_b32 {v(m+3)}, v3, {v(m+3)}")
    e("v_bfe_u32 v3, v1, 1, 2")
    for r in range(3):
        e(f"v_cmp_eq_u32 vcc, {r}, v3")
        nop(1)
        e(f"v_cndmask_b32 {v(m+r)}, 0, {v(m+3)}, vcc")
    e("v_cmp_eq_u32 vcc, 3, v3")
    nop(1)
    e(f"v_cndmask_b32 {v(m+3)}, 0, {v(m+3)}, vcc")

def gemv64m_setup(m):
    e("v_lshrrev_b32 v2, 3, v1")
    e("v_lshlrev_b32 v2, 5, v2")
    e("s_lshl_b32 s10, s3, 8")
    e("v_add_u32 v2, s10, v2")
    e("v_and_b32 v48, 7, v1")
    e("v_lshlrev_b32 v48, 5, v48")
    e("v_and_b32 v3, 16, v1")
    e("v_add3_u32 v48, v48, v3, s10")
    masks_setup(m)

def gemv64m(W, ldsV, ldsRW, m, nl=8, va=2):
    if nl == 8:
        e(f"ds_read_b128 v[16:19], {v(va)} offset:{ldsV}")
        e(f"ds_read_b128 v[20:23], {v(va)} offset:{ldsV+16}")
    else:
        e(f"ds_read_b64 v[16:17], {v(va)} offset:{ldsV}")
    e("s_waitcnt lgkmcnt(0)")
    for i in range(nl):
        e(f"v_cvt_pk_bf16_f32 {v(16+i)}, {v(16+i)}, {v(16+i)}")
    for i in range(nl):
        a = 24 + 4 * (i % 3)
        for r in range(4):
            e(f"v_and_b32 {v(a+r)}, {v(16+i)}, {v(m+r)}")
        if i > 0:
            pa = 24 + 4 * ((i - 1) % 3)
            c = "0" if i == 1 else "v[40:43]"
            e(f"v_mfma_f32_16x16x32_bf16 v[40:43], {v(pa,4)}, {v(W+4*(i-1),4)}, {c}")
    nop(1)
    e(f"v_mfma_f32_16x16x32_bf16 v[40:43], {v(24+4*((nl-1)%3),4)}, {v(W+4*(nl-1),4)}, v[40:43]")
    nop(7)
    for r in range(4):
        e(f"v_mov_b32 {v(44+r)}, {v(40+r)}")
    nop(0)
    for r in range(4):
        e(f"v_permlane32_swap_b32 {v(40+r)}, {v(44+r)}")
    nop(0)
    for r in range(4):
        dpp("v_add_f32", 40 + r, 44 + r, 40 + r, "row_ror:8")
    set_exec(0x00ff00ff, 0)
    e(f"ds_write_b128 v48, v[40:43] offset:{ldsRW}")
    full_exec()

def tr_frags(dst, bases, njs, ntiles, jstep, tstep, half_off, jsplit=None):
    for j in range(njs):
        for t in range(ntiles):
            if jsplit is None: b, jj = bases[0], j
            else: b, jj = bases[j // jsplit], j % jsplit
            off = jj * jstep + t * tstep
            d = dst + (j * ntiles + t) * 4
            e(f"ds_read_b64_tr_b16 {v(d,2)}, {v(b)} offset:{off}")
            e(f"ds_read_b64_tr_b16 {v(d+2,2)}, {v(b)} offset:{off+half_off}")

def red4_sg(a):
    nop(1)
    e(f"v_permlane32_swap_b32 {v(a)}, {v(a+1)}")
    e(f"v_permlane32_swap_b32 {v(a+2)}, {v(a+3)}")
    e(f"v_add_f32 {v(a)}, {v(a)}, {v(a+1)}")
    e(f"v_add_f32 {v(a+2)}, {v(a+2)}, {v(a+3)}")
    nop(1)
    e(f"v_permlane16_swap_b32 {v(a)}, {v(a+2)}")
    e(f"v_add_f32 {v(a)}, {v(a)}, {v(a+2)}")

def col_of_lane(dst, t):
    bitswap_rho(dst, t)
    e(f"v_lshlrev_b32 {v(dst)}, 4, {v(dst)}")
    e(f"v_and_b32 {v(t)}, 15, v1")
    e("s_lshl_b32 s10, s3, 6")
    e(f"v_add3_u32 {v(dst)}, {v(dst)}, {v(t)}, s10")

def pub_tiles(D, addr):
    e(f"v_cvt_pk_bf16_f32 v16, {v(D)}, {v(D+4)}")
    e(f"v_cvt_pk_bf16_f32 v17, {v(D+8)}, {v(D+12)}")
    e(f"v_mov_b32 v18, {T0}")
    e(f"v_mov_b32 v19, {T1}")
    pub_exec(0xffff, 0)
    e(f"global_store_dwordx4 {v(addr)}, v[16:19], {sp(WS)} sc1")
    full_exec()

def sweep8_addr(dst, hb_sgpr):
    e(f"v_lshrrev_b32 {v(dst)}, 4, v1")
    e(f"v_lshlrev_b32 {v(dst)}, 14, {v(dst)}")
    e("v_and_b32 v3, 15, v1")
    e(f"v_lshl_add_u32 {v(dst)}, v3, 4, {v(dst)}")
    e("s_lshl_b32 s10, s3, 8")
    e(f"s_add_u32 s10, s10, s{hb_sgpr}")
    e(f"v_add_u32 {v(dst)}, s10, {v(dst)}")
    for k in range(4):
        sadd64(54 + 2 * k, WS, k * 4096)
def sweep_pending(loads, t):
    n = len(loads)
    e(f"s_mov_b32 s53, {(1 << n) - 1:#x}")
    lp, dn = uid("sw"), uid("sd")
    lab(lp)
    for i, (line, u) in enumerate(loads):
        sk = uid("sk")
        e(f"s_bitcmp1_b32 s53, {i}")
        e(f"s_cbranch_scc0 {sk}")
        e(line)
        lab(sk)
    e("s_waitcnt vmcnt(0)")
    for i, (line, u) in enumerate(loads):
        e(f"v_xor_b32 {v(t)}, {T0}, {v(u+2)}")
        e(f"v_xor_b32 {v(t+1)}, {T1}, {v(u+3)}")
        e(f"v_or_b32 {v(t)}, {v(t)}, {v(t+1)}")
        e(f"v_cmp_ne_u32 vcc, 0, {v(t)}")
        e("s_cmp_eq_u64 vcc, 0")
        e(f"s_cselect_b32 s10, {~(1 << i) & 0xffffffff:#x}, -1")
        e("s_and_b32 s53, s53, s10")
    e("s_cmp_eq_u32 s53, 0")
    e(f"s_cbranch_scc1 {dn}")
    spin_bound()
    e(f"s_branch {lp}")
    lab(dn)
def sweep8_list(addr):
    return [(f"global_load_dwordx4 {v(16+4*i,4)}, {v(addr)}, s[{54+2*(i//2)}:{55+2*(i//2)}] offset:{2048*(i%2)} sc1", 16 + 4 * i) for i in range(8)]
def sweep8_loads(addr):
    for i in range(8):
        e(f"global_load_dwordx4 {v(16+4*i,4)}, {v(addr)}, s[{54+2*(i//2)}:{55+2*(i//2)}] offset:{2048*(i%2)} sc1")

L.append(f"; @launch grid=(256,1,1) block=(512,1,1) lds={LDS_BYTES}")
L.append('.amdgcn_target "amdgcn-amd-amdhsa--gfx950"')
L.append(".text")
L.append(f".globl {NAME}_kernel")
L.append(".p2align 8")
L.append(f".type {NAME}_kernel,@function")
lab(f"{NAME}_kernel")
e("s_cmp_ge_u32 s2, 256")
e("s_cbranch_scc1 L_end")
e("s_load_dwordx16 s[16:31], s[0:1], 0")
e("s_load_dwordx16 s[32:47], s[0:1], 64")
e("v_and_b32 v1, 63, v0")
e("v_lshrrev_b32 v2, 6, v0")
e("s_and_b32 s4, s2, 7")
e("v_readfirstlane_b32 s3, v2")
e("s_lshr_b32 s5, s2, 3")
e("s_and_b32 s6, s5, 3")
e("s_lshr_b32 s7, s5, 2")
e("s_mov_b32 s9, 0")
e("s_mov_b32 s8, 0")
e("s_mov_b32 s93, 0")
e(f"s_mov_b64 {PM}, -1")
if DEBUG:
    e("s_lshl_b32 s92, s2, 8")
    e(f"s_add_u32 s92, s92, {TS:#x}")
e("s_lshr_b32 s48, s7, 1")
e("s_lshl_b32 s10, s4, 2")
e("s_add_u32 s48, s48, s10")
e("s_and_b32 s49, s7, 1")
e(f"v_mov_b32 v252, {EPOCH:#x}")
e("s_waitcnt lgkmcnt(0)")
e(f"global_load_dword v253, v252, {sp(WS)} sc1")
stamp(0)
if DEBUG:
    e("s_getreg_b32 s9, hwreg(HW_REG_XCC_ID)")
    stamp_s9(20)
    e("s_mov_b32 s9, 0")
e("s_cmp_eq_u32 s6, 1")
e("s_cbranch_scc1 L_roleB")
e("s_cmp_eq_u32 s6, 2")
e("s_cbranch_scc1 L_roleC")
e("s_cmp_eq_u32 s6, 3")
e("s_cbranch_scc1 L_roleA")


lab("L_roleD")
e("s_lshl_b32 s50, s7, 3")
e("s_add_u32 s50, s50, s4")
e("v_lshlrev_b32 v3, 1, v0")
e(f"global_load_ushort v8, v3, {sp(C)}")
e("s_lshr_b32 s51, s50, 4")
e("s_and_b32 s52, s50, 15")
e("v_lshrrev_b32 v10, 3, v1")
e("v_lshlrev_b32 v10, 1, v10")
e("s_lshl_b32 s10, s3, 4")
e("s_lshl_b32 s11, s51, 7")
e("s_add_u32 s10, s10, s11")
e("v_add_u32 v10, s10, v10")
e("v_lshlrev_b32 v49, 2, v10")
e("s_movk_i32 s10, 6144")
e("v_mul_lo_u32 v10, v10, s10")
e("v_and_b32 v3, 7, v1")
e("v_lshl_add_u32 v10, v3, 4, v10")
e("s_lshl_b32 s10, s52, 7")
e("v_add_u32 v10, s10, v10")
e(f"global_load_dwordx4 v[56:59], v10, {sp(WMOD)} nt")
sadd64(12, WMOD, 6144)
e("global_load_dwordx4 v[60:63], v10, s[12:13] nt")
gemv64m_setup(52)
e("s_waitcnt vmcnt(2)")
get_tags()
e("v_lshlrev_b32 v9, 16, v8")
e(f"v_mul_f32 v3, {fhex(-LOG2E)}, v9")
e("v_exp_f32 v3, v3")
nop(0)
e("v_add_f32 v3, 1.0, v3")
e("v_rcp_f32 v3, v3")
nop(0)
e("v_mul_f32 v9, v9, v3")
e("v_lshlrev_b32 v3, 2, v0")
e("ds_write_b32 v3, v9")
e("s_waitcnt vmcnt(0) lgkmcnt(0)")
e("s_barrier")
gemv64m(56, 0, 2048, 52, nl=2, va=49)
e("s_waitcnt lgkmcnt(0)")
e("s_barrier")
sk = uid("d")
e("s_cmp_lg_u32 s3, 0")
e(f"s_cbranch_scc1 {sk}")
sum64(2048, 24)
nop(1)
e("v_mov_b32_dpp v32, v24 quad_perm:[0,0,2,2] row_mask:0xf bank_mask:0xf")
e("v_mov_b32_dpp v33, v24 quad_perm:[1,1,3,3] row_mask:0xf bank_mask:0xf")
e(f"v_mov_b32 v34, {T0}")
e(f"v_mov_b32 v35, {T1}")
e("s_lshl_b32 s10, s51, 13")
e("s_lshl_b32 s11, s52, 9")
e("s_add_u32 s10, s10, s11")
e(f"s_add_u32 s10, s10, {HB1C:#x}")
e("v_lshl_add_u32 v3, v1, 3, s10")
set_exec(0x55555555, 0x55555555)
e(f"global_store_dwordx4 v3, v[32:35], {sp(WS)} sc1")
full_exec()
e("s_lshl_b32 s10, s50, 6")
e(f"s_add_u32 s10, s10, {PSA:#x}")
presignal(10, 0, 1, guard=False)
lab(sk)
stamp(1)
if DEBUG:
    e("s_waitcnt vmcnt(0)")
    stamp(9)
e("s_cmp_ge_u32 s50, 48")
e("s_cbranch_scc1 L_final")
e("s_cmp_ge_u32 s50, 32")
e("s_cbranch_scc1 L_ph5pre")
e("v_lshrrev_b32 v10, 3, v1")
e("v_lshlrev_b32 v10, 3, v10")
e("s_lshl_b32 s10, s3, 6")
e("v_add_u32 v10, s10, v10")
e("s_movk_i32 s10, 6144")
e("v_mul_lo_u32 v10, v10, s10")
e("v_and_b32 v3, 7, v1")
e("v_lshl_add_u32 v10, v3, 4, v10")
e("s_lshl_b32 s10, s50, 7")
e("s_add_u32 s10, s10, 2048")
e("v_add_u32 v10, s10, v10")
load_seg64(WMOD, 64, 6144)
e("s_waitcnt vmcnt(0)")
e("s_barrier")
gemv64m(64, 0, 2048, 52)
e("s_waitcnt lgkmcnt(0)")
e("s_barrier")
sk = uid("d")
e("s_cmp_lg_u32 s3, 0")
e(f"s_cbranch_scc1 {sk}")
sum64(2048, 24)
nop(1)
for k in range(4):
    e(f"v_mov_b32_dpp {v(28+k)}, v24 quad_perm:[{k},{k},{k},{k}] row_mask:0xf bank_mask:0xf")
e("v_cvt_pk_bf16_f32 v32, v28, v29")
e("v_cvt_pk_bf16_f32 v33, v30, v31")
e(f"v_mov_b32 v34, {T0}")
e(f"v_mov_b32 v35, {T1}")
e("s_lshl_b32 s10, s50, 8")
e("s_add_u32 s10, s10, 4096")
e("v_lshl_add_u32 v3, v1, 2, s10")
set_exec(0x11111111, 0x11111111)
e(f"global_store_dwordx4 v3, v[32:35], {sp(WS)} sc1")
full_exec()
lab(sk)
lab("L_ph5pre")
e("s_cmp_ge_u32 s50, 43")
e("s_cbranch_scc1 L_end")
e("s_barrier")

W1S, W2S, MODL, X1L, YL, HPL, HL = 0, 33280, 66560, 69632, 71680, 79872, 80896
e("v_lshrrev_b32 v2, 2, v1")
e("s_lshl_b32 s10, s3, 6")
e("v_add_u32 v2, s10, v2")
e("s_movk_i32 s10, 2752")
e("v_mul_lo_u32 v2, v2, s10")
e("v_and_b32 v3, 3, v1")
e("v_lshl_add_u32 v2, v3, 4, v2")
e("s_lshl_b32 s10, s50, 6")
e("v_add_u32 v2, s10, v2")
e(f"s_mul_i32 s11, s3, {4*1040}")
e(f"s_add_u32 s11, s11, {W1S}")
for i in range(4):
    sadd64(12, W1, i * 16 * 2752)
    e("s_mov_b32 m0, s11")
    nop(0)
    e("global_load_lds_dwordx4 v2, s[12:13] nt")
    e("s_add_u32 s11, s11, 1040")
e("s_lshl_b32 s10, s50, 5")
e("s_lshl_b32 s11, s3, 2")
e("s_add_u32 s10, s10, s11")
e("s_lshl_b32 s10, s10, 10")
e("v_lshlrev_b32 v2, 4, v1")
e("v_add_u32 v2, s10, v2")
e(f"s_mul_i32 s11, s3, {4*1040}")
e(f"s_add_u32 s11, s11, {W2S}")
for i in range(4):
    sadd64(12, W2, i * 1024)
    e("s_mov_b32 m0, s11")
    nop(0)
    e("global_load_lds_dwordx4 v2, s[12:13] nt")
    e("s_add_u32 s11, s11, 1040")
e("v_and_b32 v3, 31, v1")
e("s_lshl_b32 s10, s50, 6")
e("v_lshl_add_u32 v3, v3, 1, s10")
e(f"global_load_ushort v96, v3, {sp(B1)}")
col_of_lane(97, 3)
e("v_lshlrev_b32 v3, 1, v97")
e(f"global_load_ushort v98, v3, {sp(X)}")
e(f"s_mov_b32 s10, {HB1 + 4096 + 23*256}")
wave0_hint_barrier(10, 16)
skm = uid("d")
e("s_cmp_ge_u32 s3, 6")
e(f"s_cbranch_scc1 {skm}")
e("v_lshlrev_b32 v12, 4, v0")
e(f"v_add_u32 v12, {HB1 + 256*16}, v12")
lp = uid("g")
lab(lp)
e(f"global_load_dwordx4 v[16:19], v12, {sp(WS)} sc1")
e("s_waitcnt vmcnt(0)")
tagcheck([16], 40, lp)
e("v_lshlrev_b32 v3, 3, v0")
e(f"ds_write_b64 v3, v[16:17] offset:{MODL}" if MODL < 65536 else "")
if MODL >= 65536:
    L.pop()
    e(f"v_add_u32 v3, {MODL}, v3")
    e("ds_write_b64 v3, v[16:17]")
lab(skm)
e("s_waitcnt vmcnt(0) lgkmcnt(0)")
e("s_barrier")
e("v_lshrrev_b32 v2, 5, v1")
e("s_lshl_b32 s10, s3, 2")
e("v_add_u32 v2, s10, v2")
e("s_movk_i32 s10, 1040")
e("v_mul_lo_u32 v2, v2, s10")
e("v_bfe_u32 v3, v1, 4, 1")
e("v_lshl_add_u32 v2, v3, 9, v2")
e("v_bfe_u32 v3, v1, 2, 2")
e("v_lshl_add_u32 v2, v3, 6, v2")
e("v_and_b32 v3, 3, v1")
e("v_lshl_add_u32 v2, v3, 3, v2")
tr_frags(64, [2], 2, 2, 2 * 1040, 32, 256)
e("v_lshrrev_b32 v2, 4, v1")
e("v_lshlrev_b32 v2, 3, v2")
e("v_bfe_u32 v3, v1, 2, 2")
e("v_add_u32 v2, v2, v3")
e("v_mul_lo_u32 v2, v2, s10")
e("v_and_b32 v3, 3, v1")
e("v_lshl_add_u32 v2, v3, 3, v2")
e("s_lshl_b32 s11, s3, 7")
e(f"s_add_u32 s11, s11, {W2S}")
e("v_add_u32 v2, s11, v2")
tr_frags(80, [2], 1, 4, 0, 32, 4 * 1040)
e("v_lshlrev_b32 v3, 1, v97")
e(f"v_add_u32 v3, {MODL}, v3")
e("ds_read_u16 v99, v3")
e("v_lshlrev_b32 v3, 4, v1")
e(f"v_add_u32 v3, {MODL}, v3")
e("ds_read_b128 v[16:19], v3 offset:1024")
e("ds_read_b128 v[20:23], v3 offset:2048")
e("s_waitcnt lgkmcnt(0)")
for k in range(4):
    unpack2(16 + k, 100 + 2 * k)
    unpack2(20 + k, 108 + 2 * k)
for d in range(108, 116):
    e(f"v_add_f32 {v(d)}, 1.0, {v(d)}")
for d in (96, 98, 99):
    e(f"v_lshlrev_b32 {v(d)}, 16, {v(d)}")
e(f"s_mov_b32 s51, {HB4A:#x}")
sweep8_addr(52, 51)
e("v_lshlrev_b32 v53, 2, v97")
e(f"v_add_u32 v53, {X1L}, v53")
e("v_lshlrev_b32 v54, 5, v1")
e(f"v_add_u32 v54, {X1L}, v54")
e("s_lshl_b32 s10, s3, 10")
e(f"s_add_u32 s10, s10, {YL}")
e("v_lshl_add_u32 v55, v1, 4, s10")
e("v_lshrrev_b32 v3, 4, v1")
e("s_lshl_b32 s11, s3, 7")
e("s_add_u32 s10, s10, s11")
e("v_lshl_add_u32 v56, v3, 4, s10")
e("v_and_b32 v3, 15, v1")
e("s_lshl_b32 s10, s3, 7")
e(f"s_add_u32 s10, s10, {HPL}")
e("v_lshl_add_u32 v57, v3, 2, s10")
e("v_and_b32 v3, 31, v1")
e("v_lshlrev_b32 v58, 2, v3")
e(f"v_add_u32 v58, {HPL}, v58")
e("s_lshl_b32 s10, s3, 6")
e(f"s_add_u32 s10, s10, {HL}")
e("v_lshl_add_u32 v59, v3, 1, s10")
e("v_lshrrev_b32 v3, 4, v1")
e("v_lshl_add_u32 v60, v3, 4, s10")
e("v_and_b32 v3, 15, v1")
e("s_lshl_b32 s10, s50, 11")
e("s_lshl_b32 s11, s3, 8")
e("s_add_u32 s10, s10, s11")
e(f"s_add_u32 s10, s10, {HB6:#x}")
e("v_lshl_add_u32 v61, v3, 4, s10")
def _p():
    e("s_lshl_b32 s10, s50, 10")
    e(f"s_add_u32 s10, s10, {PS4:#x}")
    e("v_lshl_add_u32 v20, v1, 4, s10")
wave0_multi_barrier(_p, 0xffffffff, 0xffffffff, 16)
stamp(2)
sweep_pending(sweep8_list(52), 120)
stamp(8)
for i in range(8):
    u = 16 + 4 * i
    for (src, a) in ((u, 120), (u + 1, 122)):
        if i == 0:
            unpack2(src, a)
        else:
            e(f"v_lshlrev_b32 v124, 16, {v(src)}")
            e(f"v_and_b32 v125, 0xffff0000, {v(src)}")
            e(f"v_add_f32 {v(a)}, {v(a)}, v124")
            e(f"v_add_f32 {v(a+1)}, {v(a+1)}, v125")
red4_sg(120)
e("v_fma_f32 v120, v99, v120, v98")
e("v_cvt_pk_bf16_f32 v120, v120, v120")
e("v_lshlrev_b32 v120, 16, v120")
e("ds_write_b32 v53, v120")
e("s_waitcnt lgkmcnt(0)")
e("s_barrier")
e("ds_read_b128 v[16:19], v54")
e("ds_read_b128 v[20:23], v54 offset:16")
e("s_waitcnt lgkmcnt(0)")
def ln8():
    e("v_readfirstlane_b32 s10, v16")
    nop(1)
    for r in range(16, 24): e(f"v_subrev_f32 {v(r)}, s10, {v(r)}")
    e("v_add_f32 v40, v16, v17")
    e("v_mul_f32 v42, v16, v16")
    for r in range(18, 24): e(f"v_add_f32 v40, v40, {v(r)}")
    for r in range(17, 24): e(f"v_fmac_f32 v42, {v(r)}, {v(r)}")
    for r_ in (8, 4, 2, 1):
        nop(0)
        dpp("v_add_f32", 40, 40, 40, f"row_ror:{r_}")
        dpp("v_add_f32", 42, 42, 42, f"row_ror:{r_}")
    for sw in ("v_permlane16_swap_b32", "v_permlane32_swap_b32"):
        e("v_mov_b32 v41, v40")
        e("v_mov_b32 v43, v42")
        nop(0)
        e(f"{sw} v41, v40")
        e(f"{sw} v43, v42")
        e("v_add_f32 v40, v40, v41")
        e("v_add_f32 v42, v42, v43")
    e(f"v_mul_f32 v40, {fhex(1/512)}, v40")
    e(f"v_mul_f32 v42, {fhex(1/512)}, v42")
    e("v_fma_f32 v42, -v40, v40, v42")
    e("v_max_f32 v42, 0, v42")
    e(f"v_add_f32 v42, {fhex(1e-5)}, v42")
    e("v_rsq_f32 v42, v42")
    for r in range(16, 24): e(f"v_sub_f32 {v(r)}, {v(r)}, v40")
    for r in range(16, 24): e(f"v_mul_f32 {v(r)}, {v(r)}, v42")
ln8()
for i in range(8):
    e(f"v_fma_f32 {v(16+i)}, {v(16+i)}, {v(108+i)}, {v(100+i)}")
nop(0)
ln8()
for k in range(4):
    e(f"v_cvt_pk_bf16_f32 {v(24+k)}, {v(16+2*k)}, {v(17+2*k)}")
e("ds_write_b128 v55, v[24:27]")
e("s_waitcnt lgkmcnt(0)")
e("ds_read_b128 v[16:19], v56")
e("ds_read_b128 v[20:23], v56 offset:64")
e("s_waitcnt lgkmcnt(1)")
e("v_mfma_f32_16x16x32_bf16 v[24:27], v[16:19], v[64:67], 0")
e("v_mfma_f32_16x16x32_bf16 v[28:31], v[16:19], v[68:71], 0")
e("s_waitcnt lgkmcnt(0)")
e("v_mfma_f32_16x16x32_bf16 v[24:27], v[20:23], v[72:75], v[24:27]")
e("v_mfma_f32_16x16x32_bf16 v[28:31], v[20:23], v[76:79], v[28:31]")
nop(7)
set_exec(0xffff, 0)
e("ds_write_b32 v57, v24")
e("ds_write_b32 v57, v28 offset:64")
full_exec()
e("s_waitcnt lgkmcnt(0)")
e("s_barrier")
for w in range(8):
    e(f"ds_read_b32 {v(16+w)}, v58 offset:{128*w}")
e("s_waitcnt lgkmcnt(0)")
e("v_add_f32 v16, v16, v17"); e("v_add_f32 v18, v18, v19"); e("v_add_f32 v20, v20, v21"); e("v_add_f32 v22, v22, v23")
e("v_add_f32 v16, v16, v18"); e("v_add_f32 v20, v20, v22")
e("v_add3_u32 v24, 0, 0, 0") if False else None
e("v_add_f32 v24, v16, v20")
K1 = -2 * 0.7978845608028654 * LOG2E
e("v_add_f32 v24, v24, v96")
e("v_mul_f32 v20, v24, v24")
e(f"v_mul_f32 v20, {fhex(0.044715)}, v20")
e("v_fma_f32 v20, v20, v24, v24")
e(f"v_mul_f32 v20, {fhex(K1)}, v20")
e("v_exp_f32 v20, v20")
nop(0)
e("v_add_f32 v20, 1.0, v20")
e("v_rcp_f32 v20, v20")
nop(0)
e("v_mul_f32 v24, v24, v20")
e("v_cvt_pk_bf16_f32 v24, v24, v24")
e("ds_write_b16 v59, v24")
e("s_waitcnt lgkmcnt(0)")
e("ds_read_b128 v[16:19], v60")
e("s_waitcnt lgkmcnt(0)")
for t in range(4):
    e(f"v_mfma_f32_16x16x32_bf16 {v(24+4*t,4)}, v[16:19], {v(80+4*t,4)}, 0")
nop(7)
pub_tiles(24, 61)
stamp(3)
e("s_branch L_end")

lab("L_final")
e("s_barrier")
e("s_sub_u32 s52, s50, 48")
e("v_lshrrev_b32 v3, 3, v0")
e("v_lshlrev_b32 v72, 11, v3")
e("v_and_b32 v2, 7, v0")
e("v_lshl_add_u32 v72, v2, 4, v72")
e("s_lshl_b32 s10, s52, 7")
e("v_add_u32 v72, s10, v72")
e("v_cmp_gt_u32 vcc, 32, v3")
e("s_mov_b64 s[54:55], vcc")
e("v_cmp_gt_u32 vcc, 43, v3")
e("s_mov_b64 s[56:57], vcc")
bitswap_rho(48, 3)
e("v_lshl_add_u32 v48, v2, 2, v48")
e("s_lshl_b32 s10, s3, 7")
e("v_lshl_add_u32 v48, v48, 2, s10")
e("v_and_b32 v3, 3, v1")
e("v_lshlrev_b32 v70, 4, v3")
e("v_bfe_u32 v3, v1, 2, 3")
e("v_add_u32 v70, v70, v3")
e("s_lshr_b32 s10, s52, 1")
e("s_lshl_b32 s10, s10, 6")
e("s_and_b32 s11, s52, 1")
e("s_lshl_b32 s11, s11, 3")
e("s_add_u32 s10, s10, s11")
e("v_add_u32 v70, s10, v70")
e("v_lshlrev_b32 v71, 1, v70")
e(f"global_load_ushort v64, v71, {sp(X)}")
e(f"global_load_ushort v65, v71, {sp(B2)}")
e("s_waitcnt vmcnt(0)")
get_tags()
skr = uid("d")
e("s_cmp_lg_u32 s3, 0")
e(f"s_cbranch_scc1 {skr}")
e(f"s_mov_b32 s10, {HB1 + 4096 + 31*256}")
hint_wait(10, 16)
e("v_lshrrev_b32 v3, 2, v70")
e("v_lshlrev_b32 v3, 4, v3")
e(f"v_add_u32 v10, {HB1 + 256*16}, v3")
e(f"v_add_u32 v11, {HB1 + 640*16}, v3")
lp = uid("g")
lab(lp)
e(f"global_load_dwordx4 v[16:19], v10, {sp(WS)} sc1")
e(f"global_load_dwordx4 v[20:23], v11, {sp(WS)} sc1")
e("s_waitcnt vmcnt(0)")
tagcheck([16, 20], 40, lp)
e("v_and_b32 v3, 2, v70")
e("v_cmp_ne_u32 vcc, 0, v3")
nop(1)
e("v_cndmask_b32 v66, v16, v17, vcc")
e("v_cndmask_b32 v67, v20, v21, vcc")
e("v_and_b32 v3, 1, v70")
e("v_lshlrev_b32 v3, 4, v3")
e("v_lshrrev_b32 v66, v3, v66")
e("v_lshrrev_b32 v67, v3, v67")
for d in (64, 65, 66, 67):
    e(f"v_lshlrev_b32 {v(d)}, 16, {v(d)}")
lab(skr)
def fin_gather(hb, mask, ldsoff):
    e(f"v_add_u32 v10, {hb:#x}, v72")
    e("v_mov_b32 v16, 0"); e("v_mov_b32 v17, 0"); e(f"v_mov_b32 v18, {T0}"); e(f"v_mov_b32 v19, {T1}")
    lp = uid("g"); sk = uid("r")
    e(f"s_cmp_eq_u64 {mask}, 0")
    e(f"s_cbranch_scc1 {sk}")
    lab(lp)
    e(f"s_mov_b64 exec, {mask}")
    e(f"global_load_dwordx4 v[16:19], v10, {sp(WS)} sc1")
    full_exec()
    e("s_waitcnt vmcnt(0)")
    tagcheck([16], 40, lp)
    lab(sk)
    unpack2(16, 20); unpack2(17, 22)
    red4_sg(20)
    nop(1)
    dpp("v_add_f32", 20, 20, 20, "row_ror:8")
    set_exec(0x00ff00ff, 0x00ff00ff)
    e(f"ds_write_b32 v48, v20 offset:{ldsoff}")
    full_exec()
    e("s_waitcnt lgkmcnt(0)")
    e("s_barrier")
    e("s_cmp_lg_u32 s3, 0")
    skw = uid("rw")
    e(f"s_cbranch_scc1 {skw}")
    e("v_and_b32 v3, 31, v1")
    e("v_lshlrev_b32 v3, 2, v3")
    for w in range(8):
        e(f"ds_read_b32 {v(24+w)}, v3 offset:{ldsoff+128*w}")
    e("s_waitcnt lgkmcnt(0)")
    e("v_add_f32 v24, v24, v25"); e("v_add_f32 v26, v26, v27"); e("v_add_f32 v28, v28, v29"); e("v_add_f32 v30, v30, v31")
    e("v_add_f32 v24, v24, v26"); e("v_add_f32 v28, v28, v30"); e("v_add_f32 v16, v24, v28")
    return skw
def _f():
    e("s_add_u32 s10, s52, 43")
    e("s_lshl_b32 s10, s10, 10")
    e(f"s_add_u32 s10, s10, {PS4:#x}")
    e("v_lshl_add_u32 v20, v1, 4, s10")
wave0_multi_barrier(_f, 0xffffffff, 0xffffffff, 16)
skw = fin_gather(HB4A, "s[54:55]", 0)
e("v_fma_f32 v68, v66, v16, v64")
e("v_cvt_pk_bf16_f32 v68, v68, v68")
e("v_lshlrev_b32 v68, 16, v68")
lab(skw)
stamp(3)
skw = fin_gather(HB6, "s[56:57]", 1024)
e("v_add_f32 v16, v16, v65")
e("v_fma_f32 v16, v67, v16, v68")
e("v_cvt_pk_bf16_f32 v16, v16, v16")
set_exec(0xffffffff, 0)
e(f"global_store_short v71, v16, {sp(OUT)}")
e("s_cmp_lg_u32 s52, 0")
e(f"s_cbranch_scc1 {skw}")
set_exec(1, 0)
e(f"v_mov_b32 v3, {EPOCH:#x}")
e(f"v_mov_b32 v24, {T0}")
e(f"global_store_dword v3, v24, {sp(WS)} sc1")
lab(skw)
full_exec()
stamp(5)
e("s_branch L_end")

lab("L_roleB")
e("s_lshl_b32 s50, s48, 1")
e("s_add_u32 s50, s50, s49")
e("s_lshl_b32 s50, s50, 8")
e(f"s_add_u32 s50, s50, {HBQ:#x}")
e("s_cmp_ge_u32 s3, 4")
e("s_cbranch_scc1 L_Bload")
e("v_lshlrev_b32 v2, 4, v1")
e(f"global_load_dwordx4 v[128:131], v2, {sp(X)}")
e("v_lshlrev_b32 v2, 2, v0")
e(f"global_load_dword v132, v2, {sp(X)}")
e("s_waitcnt vmcnt(0)")
get_tags()
for k in range(4): unpack2(128 + k, 16 + 2 * k)
unpack2(132, 134)
e("v_add_f32 v40, v16, v17")
for r in range(18, 24): e(f"v_add_f32 v40, v40, {v(r)}")
wave_red("v_add_f32", 40, 41)
e(f"v_mul_f32 v40, {fhex(1/512)}, v40")
for r in list(range(16, 24)) + [134, 135]: e(f"v_sub_f32 {v(r)}, {v(r)}, v40")
e("v_mul_f32 v42, v16, v16")
for r in range(17, 24): e(f"v_fmac_f32 v42, {v(r)}, {v(r)}")
wave_red("v_add_f32", 42, 41)
e(f"v_mov_b32 v41, {fhex(1e-5)}")
e(f"v_fmac_f32 v41, {fhex(1/512)}, v42")
e("v_rsq_f32 v41, v41")
nop(0)
for r in (134, 135): e(f"v_mul_f32 {v(r)}, {v(r)}, v41")
stamp(5)
e("s_lshl_b32 s10, s48, 11")
e("s_lshl_b32 s11, s49, 10")
e("s_add_u32 s10, s10, s11")
e(f"s_add_u32 s10, s10, {PS1:#x}")
stamp(3)
e("v_lshlrev_b32 v3, 4, v0")
e(f"v_add_u32 v3, {HB1C:#x}, v3")
for k in range(4):
    sadd64(54 + 2 * k, WS, k * 8192)
    sadd64(62 + 2 * k, WS, k * 8192 + 4096)
_ld = []
for k in range(4):
    _ld.append((f"global_load_dwordx4 {v(16+4*k,4)}, v3, s[{54+2*k}:{55+2*k}] sc1", 16 + 4 * k))
    _ld.append((f"global_load_dwordx4 {v(32+4*k,4)}, v3, s[{62+2*k}:{63+2*k}] sc1", 32 + 4 * k))
sweep_pending(_ld, 136)
stamp(6)
for base in (16, 32):
    for o in (0, 1):
        e(f"v_add_f32 {v(base+o)}, {v(base+o)}, {v(base+4+o)}")
        e(f"v_add_f32 {v(base+8+o)}, {v(base+8+o)}, {v(base+12+o)}")
        e(f"v_add_f32 {v(base+o)}, {v(base+o)}, {v(base+8+o)}")
    e(f"v_cvt_pk_bf16_f32 {v(base)}, {v(base)}, {v(base+1)}")
    unpack2(base, base + 2)
for o in (0, 1):
    e(f"v_fma_f32 {v(34+o)}, {v(134+o)}, {v(34+o)}, {v(134+o)}")
    e(f"v_add_f32 {v(34+o)}, {v(34+o)}, {v(18+o)}")
e("v_lshlrev_b32 v3, 3, v0")
e("ds_write_b64 v3, v[34:35]")
stamp(4)
e("s_waitcnt lgkmcnt(0)")
e("s_barrier")
stamp(1)
e("s_barrier")
e("s_cmp_lg_u32 s3, 0")
e("s_cbranch_scc1 L_B2")
e("v_lshlrev_b32 v3, 2, v1")
for w in range(4):
    e(f"ds_read_b32 {v(16+w)}, v3 offset:{2048+256*w}")
e("s_waitcnt lgkmcnt(0)")
e("v_add_f32 v16, v16, v17"); e("v_add_f32 v18, v18, v19")
e("v_add_f32 v24, v16, v18")
nop(1)
for k in range(4):
    e(f"v_mov_b32_dpp {v(28+k)}, v24 quad_perm:[{k},{k},{k},{k}] row_mask:0xf bank_mask:0xf")
e("v_cvt_pk_bf16_f32 v32, v28, v29")
e("v_cvt_pk_bf16_f32 v33, v30, v31")
e(f"v_mov_b32 v34, {T0}")
e(f"v_mov_b32 v35, {T1}")
e("v_lshl_add_u32 v3, v1, 2, s50")
e(f"v_add_u32 v2, {HBQL-HBQ:#x}, v3")
set_exec(0x11111111, 0x11111111)
e(f"global_store_dwordx4 v2, v[32:35], {sp(WS)}")
e(f"global_store_dwordx4 v3, v[32:35], {sp(WS)} sc1")
full_exec()
e("s_lshr_b32 s10, s48, 4")
e("s_lshl_b32 s10, s10, 9")
e("s_and_b32 s11, s48, 15")
e("s_lshl_b32 s11, s11, 5")
e("s_add_u32 s10, s10, s11")
e("s_lshl_b32 s11, s49, 4")
e("s_add_u32 s10, s10, s11")
e(f"s_add_u32 s10, s10, {PSQ:#x}")
presignal(10, 10, 32, guard=False)
stamp(2)
lab("L_B2")
e("s_barrier")
stamp(7)
WK = 8192
e("v_bfe_u32 v3, v1, 2, 2")
e("s_lshl_b32 s10, s3, 3")
e("v_add_u32 v3, s10, v3")
e("s_movk_i32 s10, 1040")
e("v_mul_lo_u32 v10, v3, s10")
e("v_and_b32 v3, 3, v1")
e("v_lshl_add_u32 v10, v3, 8, v10")
e("v_lshrrev_b32 v3, 4, v1")
e("v_lshl_add_u32 v10, v3, 4, v10")
e(f"v_add_u32 v10, {WK}, v10")
e("s_lshl_b32 s10, s48, 9")
e(f"s_add_u32 s10, s10, {HBQ:#x}")
e("v_lshl_add_u32 v11, v3, 5, s10")
e(f"v_add_u32 v13, {HBQL-HBQ:#x}, v11")
e("s_lshl_b32 s10, s48, 11")
e("s_lshl_b32 s11, s49, 10")
e("s_add_u32 s10, s10, s11")
e("s_lshl_b32 s11, s3, 7")
e("s_add_u32 s10, s10, s11")
e(f"s_add_u32 s10, s10, {HB2:#x}")
e("v_lshl_add_u32 v12, v3, 4, s10")
for rt in range(2):
    for ks in range(4):
        e(f"ds_read_b128 {v(64+(rt*4+ks)*4,4)}, v10 offset:{rt*4160+ks*64}")
lpq, okL, okG = uid("q"), uid("q"), uid("q")
lab(lpq)
for k in range(8):
    e(f"global_load_dwordx4 {v(16+4*k,4)}, v13, {sp(WS)} offset:{128*(k//2)+16*(k%2)} sc1")
for k in range(8):
    e(f"global_load_dwordx4 {v(112+4*k,4)}, v11, {sp(WS)} offset:{128*(k//2)+16*(k%2)} sc1")
e("s_waitcnt vmcnt(8)")
def _chk(base, t):
    for k in range(8):
        u = base + 4 * k
        e(f"v_xor_b32 {v(t+1)}, {T0}, {v(u+2)}")
        e(f"v_xor_b32 {v(t+2)}, {T1}, {v(u+3)}")
        if k == 0: e(f"v_or_b32 {v(t)}, {v(t+1)}, {v(t+2)}")
        else: e(f"v_or3_b32 {v(t)}, {v(t)}, {v(t+1)}, {v(t+2)}")
    e(f"v_cmp_ne_u32 vcc, 0, {v(t)}")
_chk(16, 96)
e(f"s_cbranch_vccz {okL}")
e("s_waitcnt vmcnt(0)")
_chk(112, 96)
e(f"s_cbranch_vccz {okG}")
spin_bound()
e(f"s_branch {lpq}")
lab(okG)
stamp(10)
for k in range(8):
    e(f"v_mov_b32 {v(16+4*k)}, {v(112+4*k)}")
    e(f"v_mov_b32 {v(17+4*k)}, {v(113+4*k)}")
lab(okL)
stamp(8)
for ks in range(4):
    e(f"v_mov_b32 {v(18+8*ks)}, {v(20+8*ks)}")
    e(f"v_mov_b32 {v(19+8*ks)}, {v(21+8*ks)}")
e("s_waitcnt lgkmcnt(0)")
nop(0)
for ks in range(4):
    for rt in range(2):
        c = "0" if ks == 0 else v(96 + 4 * rt, 4)
        e(f"v_mfma_f32_16x16x32_bf16 {v(96+4*rt,4)}, {v(64+(rt*4+ks)*4,4)}, {v(16+8*ks,4)}, {c}")
nop(6)
set_exec(0x00010001, 0x00010001)
for rt in range(2):
    d = 104 + 4 * rt
    e(f"v_cvt_pk_bf16_f32 {v(d)}, {v(96+4*rt)}, {v(97+4*rt)}")
    e(f"v_cvt_pk_bf16_f32 {v(d+1)}, {v(98+4*rt)}, {v(99+4*rt)}")
    e(f"v_mov_b32 {v(d+2)}, {T0}")
    e(f"v_mov_b32 {v(d+3)}, {T1}")
    e(f"global_store_dwordx4 v12, {v(d,4)}, {sp(WS)} offset:{64*rt} sc1")
full_exec()
stamp(9)
e("s_branch L_end")
lab("L_Bload")
e("s_sub_u32 s51, s3, 4")
e("v_lshrrev_b32 v10, 3, v1")
e("v_lshlrev_b32 v10, 17, v10")
e("s_lshl_b32 s10, s51, 20")
e("s_lshl_b32 s11, s48, 8")
e("s_add_u32 s10, s10, s11")
e("s_lshl_b32 s11, s49, 7")
e("s_add_u32 s10, s10, s11")
e("v_add_u32 v10, s10, v10")
e("v_and_b32 v3, 7, v1")
e("v_lshl_add_u32 v10, v3, 4, v10")
for i in range(16):
    sadd64(12, WQ, i * 8192)
    e(f"global_load_dwordx4 {v(64+4*i,4)}, v10, s[12:13] nt")
e("v_lshrrev_b32 v10, 4, v1")
e("v_lshlrev_b32 v10, 13, v10")
e("v_and_b32 v3, 15, v1")
e("v_lshl_add_u32 v10, v3, 4, v10")
e("s_lshl_b32 s10, s49, 21")
e("s_lshl_b32 s11, s51, 19")
e("s_add_u32 s10, s10, s11")
e("s_lshl_b32 s11, s48, 8")
e("s_add_u32 s10, s10, s11")
e("v_add_u32 v10, s10, v10")
e(f"s_mul_i32 s11, s51, {16*1040}")
e("s_add_u32 s11, s11, 8192")
for i in range(16):
    sadd64(12, WUK, i * 4 * 8192)
    e("s_mov_b32 m0, s11")
    nop(0)
    e("global_load_lds_dwordx4 v10, s[12:13] nt")
    e("s_add_u32 s11, s11, 1040")
masks_setup(52)
e("v_lshrrev_b32 v2, 3, v1")
e("v_lshlrev_b32 v2, 6, v2")
e("s_lshl_b32 s10, s51, 9")
e("v_add_u32 v2, s10, v2")
e("v_and_b32 v48, 7, v1")
e("v_lshlrev_b32 v48, 5, v48")
e("v_and_b32 v3, 16, v1")
e("s_lshl_b32 s10, s51, 8")
e("v_add3_u32 v48, v48, v3, s10")
e("s_waitcnt vmcnt(16)")
get_tags()
e("s_barrier")
for k in range(4):
    e(f"ds_read_b128 {v(136+4*k,4)}, v2 offset:{16*k}")
e("s_waitcnt lgkmcnt(0)")
for i in range(16):
    e(f"v_cvt_pk_bf16_f32 {v(136+i)}, {v(136+i)}, {v(136+i)}")
for i in range(16):
    a_ = 24 + 4 * (i % 3)
    for r in range(4):
        e(f"v_and_b32 {v(a_+r)}, {v(136+i)}, {v(52+r)}")
    if i > 0:
        pa = 24 + 4 * ((i - 1) % 3)
        c = "0" if i == 1 else "v[40:43]"
        e(f"v_mfma_f32_16x16x32_bf16 v[40:43], {v(pa,4)}, {v(64+4*(i-1),4)}, {c}")
nop(1)
e(f"v_mfma_f32_16x16x32_bf16 v[40:43], {v(24+4*(15%3),4)}, {v(64+60,4)}, v[40:43]")
nop(7)
for r in range(4):
    e(f"v_mov_b32 {v(44+r)}, {v(40+r)}")
nop(0)
for r in range(4):
    e(f"v_permlane32_swap_b32 {v(40+r)}, {v(44+r)}")
nop(0)
for r in range(4):
    dpp("v_add_f32", 40 + r, 44 + r, 40 + r, "row_ror:8")
set_exec(0x00ff00ff, 0)
e("ds_write_b128 v48, v[40:43] offset:2048")
full_exec()
e("s_waitcnt lgkmcnt(0)")
e("s_barrier")
e("s_waitcnt vmcnt(0)")
e("s_branch L_B2")

CK_ROW = 1040
QA = 128 * CK_ROW
PB = QA + 16 * CK_ROW
MX = PB + 16 * 272
lab("L_roleC")
e("v_lshrrev_b32 v2, 4, v1")
e("v_lshlrev_b32 v50, 18, v2")
e("v_and_b32 v3, 15, v1")
e("v_lshl_add_u32 v50, v3, 4, v50")
e("s_lshl_b32 s10, s49, 20")
e("s_lshl_b32 s11, s48, 11")
e("s_add_u32 s10, s10, s11")
e("s_lshl_b32 s11, s3, 8")
e("s_add_u32 s10, s10, s11")
e(f"s_add_u32 s10, s10, {HB3:#x}")
e("v_add_u32 v50, s10, v50")
for r in range(4):
    sadd64(54 + 2 * r, WS, r * 65536)
e("v_lshlrev_b32 v51, 9, v1")
e("s_lshl_b32 s10, s49, 13")
e("s_lshl_b32 s11, s48, 4")
e("s_add_u32 s10, s10, s11")
e(f"s_add_u32 s10, s10, {HB3ML:#x}")
e("v_add_u32 v51, s10, v51")
e("v_and_b32 v2, 127, v0")
e("v_lshlrev_b32 v52, 4, v2")
e("s_lshr_b32 s10, s3, 1")
e("s_lshl_b32 s11, s49, 4")
e("s_add_u32 s11, s11, s10")
e("s_lshl_b32 s11, s11, 11")
e(f"s_add_u32 s11, s11, {HB2:#x}")
e("v_add_u32 v52, s11, v52")
e(f"s_mul_i32 s10, s10, {CK_ROW}")
e("v_lshlrev_b32 v53, 3, v2")
e("v_add_u32 v53, s10, v53")
e(f"v_add_u32 v53, {QA}, v53")
for i in range(4):
    sadd64(62 + 2 * i, WS, i * 8192)
e("v_and_b32 v2, 15, v1")
e(f"s_movk_i32 s10, {CK_ROW}")
e("v_mul_lo_u32 v49, v2, s10")
e("v_lshrrev_b32 v3, 4, v1")
e("v_lshl_add_u32 v49, v3, 4, v49")
e(f"v_add_u32 v49, {QA}, v49")
e("v_lshlrev_b32 v54, 5, v2")
e(f"v_add_u32 v54, {MX}, v54")
e("s_lshl_b32 s10, s3, 2")
e("v_add_u32 v58, s10, v54")
e("s_movk_i32 s10, 272")
e("v_mul_lo_u32 v56, v2, s10")
e(f"v_add_u32 v56, {PB}, v56")
e("v_lshl_add_u32 v55, v3, 3, v56")
e("s_lshl_b32 s10, s3, 5")
e("v_add_u32 v55, s10, v55")
e("v_lshl_add_u32 v56, v3, 4, v56")
e("v_lshlrev_b32 v2, 4, v1")
e("s_lshl_b32 s10, s48, 17")
e("s_lshl_b32 s11, s3, 14")
e("s_add_u32 s10, s10, s11")
e(f"s_add_u32 s12, s{CKV}, s10")
e(f"s_addc_u32 s13, s{CKV+1}, 0")
e(f"s_mul_i32 s11, s3, {16*CK_ROW}")
for i in range(16):
    e("s_mov_b32 m0, s11")
    e("s_nop 0")
    e("global_load_lds_dwordx4 v2, s[12:13] nt")
    if i < 15:
        e("s_add_u32 s12, s12, 1024")
        e("s_addc_u32 s13, s13, 0")
        e(f"s_add_u32 s11, s11, {CK_ROW}")
e("s_waitcnt vmcnt(0)")
get_tags()
e("s_barrier")
stamp(4)
e("v_and_b32 v2, 15, v1")
e("s_lshl_b32 s10, s3, 4")
e("v_add_u32 v2, s10, v2")
e(f"s_movk_i32 s10, {CK_ROW}")
e("v_mul_lo_u32 v2, v2, s10")
e("v_lshrrev_b32 v3, 4, v1")
e("v_lshl_add_u32 v2, v3, 4, v2")
for j in range(16):
    e(f"ds_read_b128 {v(64+4*j,4)}, v2 offset:{64*j}")
e("v_lshrrev_b32 v2, 4, v1")
e("v_lshlrev_b32 v2, 3, v2")
e("v_and_b32 v3, 15, v1")
e("v_lshrrev_b32 v3, 2, v3")
e("v_add_u32 v2, v2, v3")
e("v_mul_lo_u32 v2, v2, s10")
e("v_and_b32 v3, 3, v1")
e("v_lshl_add_u32 v2, v3, 3, v2")
e("s_lshl_b32 s11, s3, 7")
e("v_add_u32 v2, s11, v2")
e(f"v_add_u32 v3, {64*CK_ROW}, v2")
for j in range(4):
    for jj in range(4):
        base = 2 if j < 2 else 3
        off = (j % 2) * 32 * CK_ROW + jj * 32
        d = 128 + (j * 4 + jj) * 4
        e(f"ds_read_b64_tr_b16 {v(d,2)}, {v(base)} offset:{off}")
        e(f"ds_read_b64_tr_b16 {v(d+2,2)}, {v(base)} offset:{off+4*CK_ROW}")
e("s_waitcnt lgkmcnt(0)")
def _c():
    e("s_lshl_b32 s10, s48, 10")
    e("s_lshl_b32 s11, s49, 9")
    e("s_add_u32 s10, s10, s11")
    e(f"s_add_u32 s10, s10, {PSQ:#x}")
    e("v_lshl_add_u32 v20, v1, 4, s10")
wave0_multi_barrier(_c, 0xffffffff, 0, 16)
stamp(1)
_ld = []
for i in range(4):
    _ld.append((f"global_load_dwordx4 {v(16+4*i,4)}, v52, s[{62+2*i}:{63+2*i}] sc1", 16 + 4 * i))
sweep_pending(_ld, 192)
stamp(3)
for i in range(4):
    e(f"ds_write_b64 v53, {v(16+4*i,2)} offset:{i*4*CK_ROW}")
e("s_waitcnt lgkmcnt(0)")
stamp(5)
e("s_barrier")
stamp(6)
for j in range(16):
    e(f"ds_read_b128 {v(192+4*j,4)}, v49 offset:{64*j}")
for j in range(16):
    e(f"s_waitcnt lgkmcnt({15-j})")
    c = "0" if j == 0 else "v[16:19]"
    e(f"v_mfma_f32_16x16x32_bf16 v[16:19], {v(64+4*j,4)}, {v(192+4*j,4)}, {c}")
nop(7)
SCL = 128 ** -0.5 * LOG2E
for r in range(4): e(f"v_mul_f32 {v(16+r)}, {fhex(SCL)}, {v(16+r)}")
e("v_max_f32 v20, v16, v17")
e("v_max3_f32 v20, v20, v18, v19")
e("v_mov_b32 v21, v20")
nop(1)
e("v_permlane16_swap_b32 v21, v20")
e("v_max_f32 v20, v20, v21")
e("v_mov_b32 v21, v20")
nop(1)
e("v_permlane32_swap_b32 v21, v20")
e("v_max_f32 v20, v20, v21")
set_exec(0xffff, 0)
e("ds_write_b32 v58, v20")
full_exec()
e("s_waitcnt lgkmcnt(0)")
stamp(7)
e("s_barrier")
stamp(8)
e("s_lshl_b32 s10, s49, 13")
e("s_lshl_b32 s11, s48, 4")
e("s_add_u32 s10, s10, s11")
e(f"s_add_u32 s10, s10, {PS3:#x}")
presignal(10, 9, 16)
e("ds_read_b128 v[24:27], v54")
e("ds_read_b128 v[28:31], v54 offset:16")
e("s_waitcnt lgkmcnt(0)")
e("v_max3_f32 v20, v24, v25, v26")
e("v_max3_f32 v20, v20, v27, v28")
e("v_max3_f32 v20, v20, v29, v30")
e("v_max_f32 v20, v20, v31")
for r in range(4):
    e(f"v_sub_f32 {v(16+r)}, {v(16+r)}, v20")
for r in range(4):
    e(f"v_exp_f32 {v(16+r)}, {v(16+r)}")
nop(0)
e("v_cvt_pk_bf16_f32 v22, v16, v17")
e("v_cvt_pk_bf16_f32 v23, v18, v19")
e("ds_write_b64 v55, v[22:23]")
e("v_add_f32 v16, v16, v17")
e("v_add_f32 v18, v18, v19")
e("v_add_f32 v16, v16, v18")
e("v_mov_b32 v21, v16")
nop(1)
e("v_permlane16_swap_b32 v21, v16")
e("v_add_f32 v16, v16, v21")
e("v_mov_b32 v21, v16")
nop(1)
e("v_permlane32_swap_b32 v21, v16")
e("v_add_f32 v16, v16, v21")
set_exec(0xffff, 0)
e("ds_write_b32 v58, v16 offset:512")
full_exec()
e("s_waitcnt lgkmcnt(0)")
stamp(9)
e("s_barrier")
stamp(10)
for j in range(4):
    e(f"ds_read_b128 {v(192+4*j,4)}, v56 offset:{64*j}")
e("ds_read_b128 v[40:43], v54 offset:512")
e("ds_read_b128 v[44:47], v54 offset:528")
for j in range(4):
    e(f"s_waitcnt lgkmcnt({5-j})")
    for jj in range(4):
        c = "0" if j == 0 else v(24 + 4 * jj, 4)
        e(f"v_mfma_f32_16x16x32_bf16 {v(24+4*jj,4)}, {v(192+4*j,4)}, {v(128+(j*4+jj)*4,4)}, {c}")
e(f"v_mov_b32 v22, {T0}")
e(f"v_mov_b32 v23, {T1}")
e("s_waitcnt lgkmcnt(0)")
e("v_add_f32 v40, v40, v41"); e("v_add_f32 v42, v42, v43"); e("v_add_f32 v44, v44, v45"); e("v_add_f32 v46, v46, v47")
e("v_add_f32 v40, v40, v42"); e("v_add_f32 v44, v44, v46"); e("v_add_f32 v21, v40, v44")
nop(3)
pub_exec()
for r in range(4):
    d = 208 + 4 * r
    e(f"v_cvt_pk_bf16_f32 {v(d)}, {v(24+r)}, {v(28+r)}")
    e(f"v_cvt_pk_bf16_f32 {v(d+1)}, {v(32+r)}, {v(36+r)}")
    e(f"v_mov_b32 {v(d+2)}, {T0}")
    e(f"v_mov_b32 {v(d+3)}, {T1}")
    e(f"global_store_dwordx4 v50, {v(d,4)}, s[{54+2*r}:{55+2*r}] sc1")
sk = uid("c")
e("s_cmp_lg_u32 s3, 0")
e(f"s_cbranch_scc1 {sk}")
pub_exec(0xffff, 0)
e(f"global_store_dwordx4 v51, v[20:23], {sp(WS)} sc1")
lab(sk)
full_exec()
stamp(2)
e("s_branch L_end")


OB, CB = 133120, 134144
lab("L_roleA")
e("s_lshl_b32 s51, s48, 16")
e(f"s_add_u32 s51, s51, {HB3:#x}")
sweep8_addr(52, 51)
e("v_and_b32 v3, 31, v1")
e("s_lshl_b32 s10, s48, 9")
e(f"s_add_u32 s10, s10, {HB3ML:#x}")
e("v_lshl_add_u32 v54, v3, 4, s10")
e("v_lshrrev_b32 v55, 4, v1")
e("v_lshlrev_b32 v55, 5, v55")
col_of_lane(56, 3)
e("v_lshlrev_b32 v56, 1, v56")
e(f"v_add_u32 v56, {OB}, v56")
e("v_lshrrev_b32 v3, 4, v1")
e("v_lshlrev_b32 v57, 4, v3")
e(f"v_add_u32 v57, {OB}, v57")
e("v_and_b32 v3, 15, v1")
e("s_lshl_b32 s10, s3, 5")
e(f"s_add_u32 s10, s10, {CB}")
e("v_lshl_add_u32 v58, v3, 1, s10")
e("s_lshl_b32 s10, s48, 11")
e("s_lshl_b32 s11, s49, 10")
e("s_add_u32 s10, s10, s11")
e(f"s_add_u32 s10, s10, {HB4A:#x}")
e("v_lshl_add_u32 v59, v1, 4, s10")
e("s_lshl_b32 s10, s3, 6")
e(f"s_add_u32 s10, s10, {CB+256}")
e("v_lshl_add_u32 v60, v3, 2, s10")
e("v_lshrrev_b32 v61, 4, v1")
e("v_lshlrev_b32 v61, 7, v61")
e("v_lshl_add_u32 v61, v3, 2, v61")
e(f"v_add_u32 v61, {CB+256}, v61")
e("s_waitcnt vmcnt(0)")
get_tags()
e("s_lshl_b32 s10, s48, 7")
e("s_lshl_b32 s11, s49, 6")
e("s_add_u32 s10, s10, s11")
e(f"s_add_u32 s10, s10, {PSA:#x}")
wave0_hint_barrier(10, 16)
e("v_lshrrev_b32 v2, 4, v1")
e("v_lshlrev_b32 v2, 13, v2")
e("v_and_b32 v3, 15, v1")
e("v_lshl_add_u32 v2, v3, 4, v2")
e("s_lshl_b32 s10, s3, 19")
e("s_lshl_b32 s11, s48, 8")
e("s_add_u32 s10, s10, s11")
e("v_add_u32 v2, s10, v2")
e(f"s_mul_i32 s11, s3, {16*1040}")
e(f"s_mov_b32 s12, s{WUV}")
e(f"s_mov_b32 s13, s{WUV+1}")
for i in range(16):
    e("s_mov_b32 m0, s11")
    nop(0)
    e("global_load_lds_dwordx4 v2, s[12:13] nt")
    if i < 15:
        e("s_add_u32 s12, s12, 32768")
        e("s_addc_u32 s13, s13, 0")
        e("s_add_u32 s11, s11, 1040")
e("v_lshrrev_b32 v2, 4, v1")
e("s_movk_i32 s10, 2080")
e("v_mul_lo_u32 v2, v2, s10")
e("v_bfe_u32 v3, v1, 2, 2")
e("v_lshl_add_u32 v2, v3, 8, v2")
e("v_and_b32 v3, 3, v1")
e("v_lshl_add_u32 v2, v3, 3, v2")
e("s_lshl_b32 s10, s3, 5")
e("v_add_u32 v2, s10, v2")
e(f"v_add_u32 v3, {8*8320}, v2")
e("s_waitcnt vmcnt(0)")
e("s_barrier")
tr_frags(64, [2, 3], 16, 1, 8320, 0, 1040, jsplit=8)
e("s_waitcnt lgkmcnt(0)")
e("s_barrier")
e("v_lshrrev_b32 v2, 5, v1")
e("v_lshlrev_b32 v2, 10, v2")
e("v_and_b32 v3, 31, v1")
e("v_lshl_add_u32 v2, v3, 4, v2")
e("s_lshl_b32 s10, s48, 17")
e("s_lshl_b32 s11, s3, 14")
e("s_add_u32 s10, s10, s11")
e("s_lshl_b32 s11, s49, 9")
e("s_add_u32 s10, s10, s11")
e(f"s_add_u32 s12, s{WO}, s10")
e(f"s_addc_u32 s13, s{WO+1}, 0")
e(f"s_mul_i32 s11, s3, {8*1040}")
for i in range(8):
    e("s_mov_b32 m0, s11")
    nop(0)
    e("global_load_lds_dwordx4 v2, s[12:13] nt")
    if i < 7:
        e("s_add_u32 s12, s12, 2048")
        e("s_addc_u32 s13, s13, 0")
        e("s_add_u32 s11, s11, 1040")
e("v_lshrrev_b32 v2, 4, v1")
e("v_lshlrev_b32 v2, 2, v2")
e("v_bfe_u32 v3, v1, 3, 1")
e("v_add_u32 v2, v2, v3")
e("s_movk_i32 s10, 1040")
e("v_mul_lo_u32 v2, v2, s10")
e("v_bfe_u32 v3, v1, 2, 1")
e("v_lshl_add_u32 v2, v3, 9, v2")
e("v_and_b32 v3, 3, v1")
e("v_lshl_add_u32 v2, v3, 3, v2")
e("s_lshl_b32 s11, s3, 6")
e("v_add_u32 v2, s11, v2")
e("s_waitcnt vmcnt(0)")
e("s_barrier")
tr_frags(128, [2], 4, 2, 16 * 1040, 32, 2 * 1040)
e("s_waitcnt lgkmcnt(0)")
stamp(4)
def _a():
    e("s_lshl_b32 s10, s48, 9")
    e(f"s_add_u32 s10, s10, {PS3:#x}")
    e("v_lshl_add_u32 v20, v1, 4, s10")
wave0_multi_barrier(_a, 0xffffffff, 0, 16)
stamp(1)
stamp_s9(16)
sweep_pending(sweep8_list(52) + [(f"global_load_dwordx4 v[192:195], v54, {sp(WS)} sc1", 192)], 196)
stamp(3)
stamp_s9(17)
e("v_mov_b32 v196, v192")
wave_red("v_max_f32", 196, 197, half=True)
e("v_sub_f32 v192, v192, v196")
e("v_exp_f32 v192, v192")
nop(0)
e("v_mul_f32 v196, v192, v193")
wave_red("v_add_f32", 196, 197, half=True)
e("v_rcp_f32 v196, v196")
nop(0)
e("v_mul_f32 v192, v192, v196")
for i in range(8):
    e(f"ds_bpermute_b32 {v(200+i)}, v55, v192 offset:{4*i}")
for i in range(8):
    u = 16 + 4 * i
    e(f"s_waitcnt lgkmcnt({7-i})")
    for (src, a) in ((u, 208), (u + 1, 210)):
        e(f"v_lshlrev_b32 v196, 16, {v(src)}")
        e(f"v_and_b32 v197, 0xffff0000, {v(src)}")
        if i == 0:
            e(f"v_mul_f32 {v(a)}, {v(200+i)}, v196")
            e(f"v_mul_f32 {v(a+1)}, {v(200+i)}, v197")
        else:
            e(f"v_fmac_f32 {v(a)}, {v(200+i)}, v196")
            e(f"v_fmac_f32 {v(a+1)}, {v(200+i)}, v197")
red4_sg(208)
e("v_cvt_pk_bf16_f32 v208, v208, v208")
e("ds_write_b16 v56, v208")
e("s_waitcnt lgkmcnt(0)")
stamp(5)
e("s_barrier")
stamp(6)
e("s_lshl_b32 s10, s48, 5")
e("s_lshl_b32 s11, s49, 4")
e("s_add_u32 s10, s10, s11")
e(f"s_add_u32 s10, s10, {PS4:#x}")
presignal(10, 10, 59)
for j in range(16):
    e(f"ds_read_b128 {v(192+4*j,4)}, v57 offset:{64*j}")
for j in range(16):
    e(f"s_waitcnt lgkmcnt({15-j})")
    c = "0" if j == 0 else "v[16:19]"
    e(f"v_mfma_f32_16x16x32_bf16 v[16:19], {v(192+4*j,4)}, {v(64+4*j,4)}, {c}")
nop(7)
e("v_cvt_pk_bf16_f32 v16, v16, v16")
set_exec(0xffff, 0)
e("ds_write_b16 v58, v16")
full_exec()
e("s_waitcnt lgkmcnt(0)")
e("s_barrier")
stamp(7)
for j in range(4):
    e(f"ds_read_b128 {v(192+4*j,4)}, v57 offset:{1024+64*j}")
for j in range(4):
    e(f"s_waitcnt lgkmcnt({3-j})")
    for t in range(2):
        c = "0" if j == 0 else v(24 + 4 * t, 4)
        e(f"v_mfma_f32_16x16x32_bf16 {v(24+4*t,4)}, {v(192+4*j,4)}, {v(128+(j*2+t)*4,4)}, {c}")
nop(7)
e("v_cvt_pk_bf16_f32 v24, v24, v28")
set_exec(0xffff, 0)
e("ds_write_b32 v60, v24")
full_exec()
e("s_waitcnt lgkmcnt(0)")
e("s_barrier")
sk = uid("a")
e("s_cmp_lg_u32 s3, 0")
e(f"s_cbranch_scc1 {sk}")
e("ds_read_b32 v16, v61")
e("ds_read_b32 v17, v61 offset:64")
e(f"v_mov_b32 v18, {T0}")
e(f"v_mov_b32 v19, {T1}")
e("s_waitcnt lgkmcnt(0)")
e(f"global_store_dwordx4 v59, v[16:19], {sp(WS)} sc1")
lab(sk)
stamp(2)

lab("L_end")
e("s_endpgm")
L.append('.section .rodata,"a"')
L.append(".p2align 6")
L.append(f".amdhsa_kernel {NAME}_kernel")
L.append("  .amdhsa_next_free_vgpr 256")
L.append("  .amdhsa_next_free_sgpr 102")
L.append("  .amdhsa_accum_offset 256")
L.append("  .amdhsa_group_segment_fixed_size 0")
L.append("  .amdhsa_kernarg_size 128")
L.append("  .amdhsa_user_sgpr_count 2")
L.append("  .amdhsa_user_sgpr_kernarg_segment_ptr 1")
L.append("  .amdhsa_system_sgpr_workgroup_id_x 1")
L.append(".end_amdhsa_kernel")
open(OUTF, "w").write("\n".join(L) + "\n")
print("wrote", OUTF, len(L), "lines")
```

```python
import sys, struct

DEBUG = "--debug" in sys.argv
NODRY = "--nodry" in sys.argv
OUTF = [a for a in sys.argv[1:] if not a.startswith("--")]
NAME = "adaLN_cond__compressed_kv_cla__mixer_channel_mlp__decode"
OUTF = OUTF[0] if OUTF else f"cdna_kernels/{NAME}.s"

HB1C = 0x8000
HBQ = 0x4000
PS3 = 0x308000
PSQ = 0x310000
PS4 = 0x320000
PSA = 0x330000
PS1 = 0x340000
HBQL = 0x350000
HB1, HB2, HB3, HB3ML, HB4A, HB4B, HB6, EPOCH = 0x0, 0x10000, 0x100000, 0x300000, 0x400000, 0x480000, 0x500000, 0x600000
TS = 0x2000000
X, CKV, WQ, WUK, WUV, WO, BX, W1, B1, W2, B2, C, WMOD, OUT, DBG, WS = [16 + 2 * i for i in range(16)]
def sp(b): return f"s[{b}:{b+1}]"
LDS_BYTES = 155136
SPIN = 400000
LOG2E = 1.4426950408889634
T0, T1 = "s8", "s93"
PM = "s[96:97]"

L = []
def e(s): L.append("    " + s)
def lab(s): L.append(s + ":")
_uid = [0]
def uid(p="L"):
    _uid[0] += 1
    return f"{p}_{_uid[0]}"
def v(a, n=1): return f"v{a}" if n == 1 else f"v[{a}:{a+n-1}]"
def nop(n): e(f"s_nop {n}")
def fhex(x): return "0x%08x" % struct.unpack("<I", struct.pack("<f", x))[0]

def stamp(k):
    if not DEBUG: return
    sk = uid("st")
    e("s_cmp_lg_u32 s3, 0")
    e(f"s_cbranch_scc1 {sk}")
    e("s_memrealtime s[90:91]")
    e("s_waitcnt lgkmcnt(0)")
    e("v_mov_b32 v255, s90")
    e("v_mov_b32 v254, s92")
    e(f"global_store_dword v254, v255, {sp(WS)} offset:{4*k}")
    lab(sk)

def stamp_w(k):
    if not DEBUG: return
    e("s_memrealtime s[90:91]")
    e("s_lshl_b32 s94, s3, 2")
    e("s_add_u32 s94, s94, s92")
    e("s_waitcnt lgkmcnt(0)")
    e("v_mov_b32 v255, s90")
    e("v_mov_b32 v254, s94")
    e(f"global_store_dword v254, v255, {sp(WS)} offset:{4*k}")

def stamp_s9(k):
    if not DEBUG: return
    sk = uid("st")
    e("s_cmp_lg_u32 s3, 0")
    e(f"s_cbranch_scc1 {sk}")
    e("v_mov_b32 v255, s9")
    e("v_mov_b32 v254, s92")
    e(f"global_store_dword v254, v255, {sp(WS)} offset:{4*k}")
    lab(sk)

def set_exec(lo, hi):
    e(f"s_mov_b32 exec_lo, {lo:#x}")
    e(f"s_mov_b32 exec_hi, {hi:#x}")
def full_exec(): e("s_mov_b64 exec, -1")
def pub_exec(lo=None, hi=None):
    if lo is None:
        e(f"s_mov_b64 exec, {PM}")
    else:
        set_exec(lo, hi)
        e(f"s_and_b64 exec, exec, {PM}")

def spin_bound():
    e("s_add_u32 s9, s9, 1")
    e(f"s_cmp_gt_u32 s9, {SPIN}")
    e("s_cbranch_scc1 L_end")

def tagcheck(units, t, retry):
    us = list(units)
    if len(us) % 2: us.append(us[-1])
    first = True
    for a, b in zip(us[0::2], us[1::2]):
        for k in (0, 1):
            if first:
                e(f"v_min_u32 {v(t+2*k)}, {v(a+2+k)}, {v(b+2+k)}")
                e(f"v_max_u32 {v(t+2*k+1)}, {v(a+2+k)}, {v(b+2+k)}")
            else:
                e(f"v_min3_u32 {v(t+2*k)}, {v(t+2*k)}, {v(a+2+k)}, {v(b+2+k)}")
                e(f"v_max3_u32 {v(t+2*k+1)}, {v(t+2*k+1)}, {v(a+2+k)}, {v(b+2+k)}")
        first = False
    e(f"v_xor_b32 {v(t)}, {T0}, {v(t)}")
    e(f"v_xor_b32 {v(t+1)}, {T0}, {v(t+1)}")
    e(f"v_xor_b32 {v(t+2)}, {T1}, {v(t+2)}")
    e(f"v_xor_b32 {v(t+3)}, {T1}, {v(t+3)}")
    e(f"v_or3_b32 {v(t)}, {v(t)}, {v(t+1)}, {v(t+2)}")
    e(f"v_or_b32 {v(t)}, {v(t)}, {v(t+3)}")
    e(f"v_cmp_ne_u32 vcc, 0, {v(t)}")
    ok = uid("ok")
    e(f"s_cbranch_vccz {ok}")
    spin_bound()
    e(f"s_branch {retry}")
    lab(ok)

def hint_wait(saddr_expr_sgpr, u, sleep=4):
    lp, dn = uid("hw"), uid("hd")
    e(f"v_mov_b32 {v(u+4)}, s{saddr_expr_sgpr}")
    set_exec(1, 0)
    lab(lp)
    e(f"global_load_dwordx4 {v(u,4)}, {v(u+4)}, {sp(WS)} sc1")
    e("s_waitcnt vmcnt(0)")
    e(f"v_xor_b32 {v(u)}, {T0}, {v(u+2)}")
    e(f"v_xor_b32 {v(u+1)}, {T1}, {v(u+3)}")
    e(f"v_or_b32 {v(u)}, {v(u)}, {v(u+1)}")
    e(f"v_cmp_ne_u32 vcc, 0, {v(u)}")
    e(f"s_cbranch_vccz {dn}")
    spin_bound()
    e(f"s_sleep {sleep}")
    e(f"s_branch {lp}")
    lab(dn)
    full_exec()

def hint_multi(addr_v, lo, hi, u, sleep=1, base=224):
    lp, dn = uid("hw"), uid("hd")
    set_exec(lo, hi)
    for k in range(3):
        e(f"global_load_dwordx4 {v(base+4*k,4)}, {v(addr_v)}, {sp(WS)} sc1")
        e(f"s_sleep {sleep+1}")
    lab(lp)
    for k in range(4):
        e(f"global_load_dwordx4 {v(base+4*((k+3)%4),4)}, {v(addr_v)}, {sp(WS)} sc1")
        e("s_waitcnt vmcnt(3)")
        e(f"v_xor_b32 {v(u)}, {T0}, {v(base+4*k+2)}")
        e(f"v_xor_b32 {v(u+1)}, {T1}, {v(base+4*k+3)}")
        e(f"v_or_b32 {v(u)}, {v(u)}, {v(u+1)}")
        e(f"v_cmp_ne_u32 vcc, 0, {v(u)}")
        e(f"s_cbranch_vccz {dn}")
        e(f"s_sleep {sleep}")
    spin_bound()
    e(f"s_branch {lp}")
    lab(dn)
    full_exec()

def wave0_hint2_barrier(sreg, addr_code, lo, hi, u):
    sk = uid("h")
    e("s_cmp_lg_u32 s3, 0")
    e(f"s_cbranch_scc1 {sk}")
    hint_wait(sreg, u)
    addr_code()
    hint_multi(u + 4, lo, hi, u)
    lab(sk)
    e("s_barrier")

def presignal(sreg, shift=0, nl=1, guard=True):
    sk = uid("ps")
    if guard:
        e("s_cmp_lg_u32 s3, 0")
        e(f"s_cbranch_scc1 {sk}")
    e(f"v_mov_b32 v246, {T0}")
    e(f"v_mov_b32 v247, {T1}")
    e(f"v_lshl_add_u32 v248, v1, {shift}, s{sreg}")
    m = (1 << nl) - 1
    set_exec(m & 0xffffffff, m >> 32)
    e(f"global_store_dwordx4 v248, v[244:247], {sp(WS)} sc1")
    full_exec()
    lab(sk)

def wave0_multi_barrier(addr_code, lo, hi, u):
    sk = uid("h")
    e("s_cmp_lg_u32 s3, 0")
    e(f"s_cbranch_scc1 {sk}")
    addr_code()
    hint_multi(u + 4, lo, hi, u)
    lab(sk)
    e("s_barrier")

def wave0_hint_barrier(sreg, u):
    sk = uid("h")
    e("s_cmp_lg_u32 s3, 0")
    e(f"s_cbranch_scc1 {sk}")
    hint_wait(sreg, u)
    lab(sk)
    e("s_barrier")

def dpp(op, d, s0, s1, ctrl):
    e(f"{op}_dpp {v(d)}, {v(s0)}, {v(s1)} {ctrl} row_mask:0xf bank_mask:0xf")

def wave_red(op, a, t, half=False):
    for r in (8, 4, 2, 1):
        nop(1)
        dpp(op, a, a, a, f"row_ror:{r}")
    e(f"v_mov_b32 {v(t)}, {v(a)}")
    nop(1)
    e(f"v_permlane16_swap_b32 {v(t)}, {v(a)}")
    e(f"{op} {v(a)}, {v(a)}, {v(t)}")
    if not half:
        e(f"v_mov_b32 {v(t)}, {v(a)}")
        nop(1)
        e(f"v_permlane32_swap_b32 {v(t)}, {v(a)}")
        e(f"{op} {v(a)}, {v(a)}, {v(t)}")

def red8_to2(acc):
    for k in range(4):
        e(f"v_permlane32_swap_b32 {v(acc+2*k)}, {v(acc+2*k+1)}")
    for k in range(4):
        e(f"v_add_f32 {v(acc+2*k)}, {v(acc+2*k)}, {v(acc+2*k+1)}")
    nop(1)
    e(f"v_permlane16_swap_b32 {v(acc+0)}, {v(acc+2)}")
    e(f"v_permlane16_swap_b32 {v(acc+4)}, {v(acc+6)}")
    e(f"v_add_f32 {v(acc+0)}, {v(acc+0)}, {v(acc+2)}")
    e(f"v_add_f32 {v(acc+4)}, {v(acc+4)}, {v(acc+6)}")

def bitswap_rho(dst, t):
    e(f"v_lshrrev_b32 {v(dst)}, 5, v1")
    e(f"v_lshrrev_b32 {v(t)}, 3, v1")
    e(f"v_and_b32 {v(t)}, 2, {v(t)}")
    e(f"v_or_b32 {v(dst)}, {v(dst)}, {v(t)}")

def gemv_row8(W, nrows, vf, acc, lo, hi):
    for i in range(nrows):
        e(f"v_cvt_pk_bf16_f32 {v(lo+i)}, {v(vf+i)}, 0")
        e(f"v_cvt_pk_bf16_f32 {v(hi+i)}, 0, {v(vf+i)}")
    for i in range(nrows):
        for k in range(4):
            c0 = "0" if i == 0 else v(acc + 2 * k)
            c1 = "0" if i == 0 else v(acc + 2 * k + 1)
            e(f"v_dot2_f32_bf16 {v(acc+2*k)}, {v(W+4*i+k)}, {v(lo+i)}, {c0}")
            e(f"v_dot2_f32_bf16 {v(acc+2*k+1)}, {v(W+4*i+k)}, {v(hi+i)}, {c1}")
    nop(2)

def sadd64(dst, src, imm):
    e(f"s_add_u32 s{dst}, s{src}, {imm}")
    e(f"s_addc_u32 s{dst+1}, s{src+1}, 0")

def unpack2(src, d):
    e(f"v_lshlrev_b32 {v(d)}, 16, {v(src)}")
    e(f"v_and_b32 {v(d+1)}, 0xffff0000, {v(src)}")

def gemv64(W, ldsV, ldsRW, nparts=1, pstride=0):
    e(f"ds_read_b128 v[16:19], v2 offset:{ldsV}")
    e(f"ds_read_b128 v[20:23], v2 offset:{ldsV+16}")
    for p in range(1, nparts):
        e(f"ds_read_b128 {v(24+8*(p-1),4)}, v2 offset:{ldsV+p*pstride}")
        e(f"ds_read_b128 {v(28+8*(p-1),4)}, v2 offset:{ldsV+p*pstride+16}")
    e("s_waitcnt lgkmcnt(0)")
    for p in range(1, nparts):
        for i in range(8):
            e(f"v_add_f32 {v(16+i)}, {v(16+i)}, {v(24+8*(p-1)+i)}")
    gemv_row8(W, 8, 16, 40, 24, 32)
    red8_to2(40)
    nop(0)
    dpp("v_add_f32", 40, 40, 40, "row_ror:8")
    dpp("v_add_f32", 44, 44, 44, "row_ror:8")
    set_exec(0x00ff00ff, 0x00ff00ff)
    e(f"ds_write_b32 v48, v40 offset:{ldsRW}")
    e(f"ds_write_b32 v48, v44 offset:{ldsRW+16}")
    full_exec()
def gemv64_setup():
    e("v_lshrrev_b32 v2, 3, v1")
    e("v_lshlrev_b32 v2, 5, v2")
    e("s_lshl_b32 s10, s3, 8")
    e("v_add_u32 v2, s10, v2")
    bitswap_rho(48, 3)
    e("v_and_b32 v3, 7, v1")
    e("v_lshl_add_u32 v48, v3, 3, v48")
    e("v_lshl_add_u32 v48, v48, 2, s10")
def sum64(ldsRW, dst):
    e("v_lshlrev_b32 v3, 2, v1")
    for w in range(8):
        e(f"ds_read_b32 {v(16+w)}, v3 offset:{ldsRW+256*w}")
    e("s_waitcnt lgkmcnt(0)")
    e("v_add_f32 v16, v16, v17"); e("v_add_f32 v18, v18, v19"); e("v_add_f32 v20, v20, v21"); e("v_add_f32 v22, v22, v23")
    e("v_add_f32 v16, v16, v18"); e("v_add_f32 v20, v20, v22")
    e(f"v_add_f32 {v(dst)}, v16, v20")
def load_seg64(ptr, dst, stride):
    for i in range(8):
        sadd64(12, ptr, i * stride)
        e(f"global_load_dwordx4 {v(dst+4*i,4)}, v10, s[12:13] nt")
def seg64_off():
    e("v_lshrrev_b32 v10, 3, v1")
    e("v_lshlrev_b32 v10, 16, v10")
    e("s_lshl_b32 s10, s3, 19")
    e("s_lshl_b32 s11, s48, 8")
    e("s_add_u32 s10, s10, s11")
    e("s_lshl_b32 s11, s49, 7")
    e("s_add_u32 s10, s10, s11")
    e("v_add_u32 v10, s10, v10")
    e("v_and_b32 v3, 7, v1")
    e("v_lshl_add_u32 v10, v3, 4, v10")
def out512_write(ldsO):
    e("v_lshlrev_b32 v3, 5, v1")
    e("s_lshl_b32 s10, s3, 11")
    e("v_add_u32 v3, s10, v3")
    e(f"ds_write_b128 v3, v[40:43] offset:{ldsO}")
    e(f"ds_write_b128 v3, v[44:47] offset:{ldsO+16}")
def publish512(ldsO, sbase):
    sk = uid("p")
    e("s_cmp_ge_u32 s3, 4")
    e(f"s_cbranch_scc1 {sk}")
    e("v_lshlrev_b32 v3, 3, v0")
    for w in range(8):
        e(f"ds_read_b64 {v(16+2*w,2)}, v3 offset:{ldsO+2048*w}")
    e(f"v_mov_b32 v42, {T0}")
    e(f"v_mov_b32 v43, {T1}")
    e("v_lshlrev_b32 v3, 4, v0")
    e(f"v_add_u32 v3, s{sbase}, v3")
    e("s_waitcnt lgkmcnt(0)")
    for o in (0, 1):
        e(f"v_add_f32 {v(16+o)}, {v(16+o)}, {v(18+o)}"); e(f"v_add_f32 {v(20+o)}, {v(20+o)}, {v(22+o)}")
        e(f"v_add_f32 {v(24+o)}, {v(24+o)}, {v(26+o)}"); e(f"v_add_f32 {v(28+o)}, {v(28+o)}, {v(30+o)}")
        e(f"v_add_f32 {v(16+o)}, {v(16+o)}, {v(20+o)}"); e(f"v_add_f32 {v(24+o)}, {v(24+o)}, {v(28+o)}")
        e(f"v_add_f32 {v(40+o)}, {v(16+o)}, {v(24+o)}")
    pub_exec()
    e(f"global_store_dwordx4 v3, v[40:43], {sp(WS)} sc1")
    full_exec()
    lab(sk)

def get_tags():
    e("v_readfirstlane_b32 s8, v253")
    nop(3)
    e("s_add_u32 s8, s8, 1")
    e("s_xor_b32 s93, s8, 0x5bd1e995")

def dry_begin(name):
    if NODRY:
        return
    e(f"s_mov_b64 {PM}, 0")
    e(f"s_branch {name}_crit")
    lab(f"{name}_ret")
    e(f"s_mov_b64 {PM}, -1")
def dry_end(name):
    if NODRY:
        return
    e(f"s_cmp_eq_u64 {PM}, 0")
    e(f"s_cbranch_scc1 {name}_ret")


def masks_setup(m):
    e("v_and_b32 v3, 1, v1")
    e("v_lshlrev_b32 v3, 4, v3")
    e(f"v_mov_b32 {v(m+3)}, 0xffff")
    e(f"v_lshlrev_b32 {v(m+3)}, v3, {v(m+3)}")
    e("v_bfe_u32 v3, v1, 1, 2")
    for r in range(3):
        e(f"v_cmp_eq_u32 vcc, {r}, v3")
        nop(1)
        e(f"v_cndmask_b32 {v(m+r)}, 0, {v(m+3)}, vcc")
    e("v_cmp_eq_u32 vcc, 3, v3")
    nop(1)
    e(f"v_cndmask_b32 {v(m+3)}, 0, {v(m+3)}, vcc")

def gemv64m_setup(m):
    e("v_lshrrev_b32 v2, 3, v1")
    e("v_lshlrev_b32 v2, 5, v2")
    e("s_lshl_b32 s10, s3, 8")
    e("v_add_u32 v2, s10, v2")
    e("v_and_b32 v48, 7, v1")
    e("v_lshlrev_b32 v48, 5, v48")
    e("v_and_b32 v3, 16, v1")
    e("v_add3_u32 v48, v48, v3, s10")
    masks_setup(m)

def gemv64m(W, ldsV, ldsRW, m, nl=8, va=2):
    if nl == 8:
        e(f"ds_read_b128 v[16:19], {v(va)} offset:{ldsV}")
        e(f"ds_read_b128 v[20:23], {v(va)} offset:{ldsV+16}")
    else:
        e(f"ds_read_b64 v[16:17], {v(va)} offset:{ldsV}")
    e("s_waitcnt lgkmcnt(0)")
    for i in range(nl):
        e(f"v_cvt_pk_bf16_f32 {v(16+i)}, {v(16+i)}, {v(16+i)}")
    for i in range(nl):
        a = 24 + 4 * (i % 3)
        for r in range(4):
            e(f"v_and_b32 {v(a+r)}, {v(16+i)}, {v(m+r)}")
        if i > 0:
            pa = 24 + 4 * ((i - 1) % 3)
            c = "0" if i == 1 else "v[40:43]"
            e(f"v_mfma_f32_16x16x32_bf16 v[40:43], {v(pa,4)}, {v(W+4*(i-1),4)}, {c}")
    nop(1)
    e(f"v_mfma_f32_16x16x32_bf16 v[40:43], {v(24+4*((nl-1)%3),4)}, {v(W+4*(nl-1),4)}, v[40:43]")
    nop(7)
    for r in range(4):
        e(f"v_mov_b32 {v(44+r)}, {v(40+r)}")
    nop(0)
    for r in range(4):
        e(f"v_permlane32_swap_b32 {v(40+r)}, {v(44+r)}")
    nop(0)
    for r in range(4):
        dpp("v_add_f32", 40 + r, 44 + r, 40 + r, "row_ror:8")
    set_exec(0x00ff00ff, 0)
    e(f"ds_write_b128 v48, v[40:43] offset:{ldsRW}")
    full_exec()

def tr_frags(dst, bases, njs, ntiles, jstep, tstep, half_off, jsplit=None):
    for j in range(njs):
        for t in range(ntiles):
            if jsplit is None: b, jj = bases[0], j
            else: b, jj = bases[j // jsplit], j % jsplit
            off = jj * jstep + t * tstep
            d = dst + (j * ntiles + t) * 4
            e(f"ds_read_b64_tr_b16 {v(d,2)}, {v(b)} offset:{off}")
            e(f"ds_read_b64_tr_b16 {v(d+2,2)}, {v(b)} offset:{off+half_off}")

def red4_sg(a):
    nop(1)
    e(f"v_permlane32_swap_b32 {v(a)}, {v(a+1)}")
    e(f"v_permlane32_swap_b32 {v(a+2)}, {v(a+3)}")
    e(f"v_add_f32 {v(a)}, {v(a)}, {v(a+1)}")
    e(f"v_add_f32 {v(a+2)}, {v(a+2)}, {v(a+3)}")
    nop(1)
    e(f"v_permlane16_swap_b32 {v(a)}, {v(a+2)}")
    e(f"v_add_f32 {v(a)}, {v(a)}, {v(a+2)}")

def col_of_lane(dst, t):
    bitswap_rho(dst, t)
    e(f"v_lshlrev_b32 {v(dst)}, 4, {v(dst)}")
    e(f"v_and_b32 {v(t)}, 15, v1")
    e("s_lshl_b32 s10, s3, 6")
    e(f"v_add3_u32 {v(dst)}, {v(dst)}, {v(t)}, s10")

def pub_tiles(D, addr):
    e(f"v_cvt_pk_bf16_f32 v16, {v(D)}, {v(D+4)}")
    e(f"v_cvt_pk_bf16_f32 v17, {v(D+8)}, {v(D+12)}")
    e(f"v_mov_b32 v18, {T0}")
    e(f"v_mov_b32 v19, {T1}")
    pub_exec(0xffff, 0)
    e(f"global_store_dwordx4 {v(addr)}, v[16:19], {sp(WS)} sc1")
    full_exec()

def sweep8_addr(dst, hb_sgpr):
    e(f"v_lshrrev_b32 {v(dst)}, 4, v1")
    e(f"v_lshlrev_b32 {v(dst)}, 14, {v(dst)}")
    e("v_and_b32 v3, 15, v1")
    e(f"v_lshl_add_u32 {v(dst)}, v3, 4, {v(dst)}")
    e("s_lshl_b32 s10, s3, 8")
    e(f"s_add_u32 s10, s10, s{hb_sgpr}")
    e(f"v_add_u32 {v(dst)}, s10, {v(dst)}")
    for k in range(4):
        sadd64(54 + 2 * k, WS, k * 4096)
def sweep_pending(loads, t):
    n = len(loads)
    e(f"s_mov_b32 s53, {(1 << n) - 1:#x}")
    lp, dn = uid("sw"), uid("sd")
    lab(lp)
    for i, (line, u) in enumerate(loads):
        sk = uid("sk")
        e(f"s_bitcmp1_b32 s53, {i}")
        e(f"s_cbranch_scc0 {sk}")
        e(line)
        lab(sk)
    e("s_waitcnt vmcnt(0)")
    for i, (line, u) in enumerate(loads):
        e(f"v_xor_b32 {v(t)}, {T0}, {v(u+2)}")
        e(f"v_xor_b32 {v(t+1)}, {T1}, {v(u+3)}")
        e(f"v_or_b32 {v(t)}, {v(t)}, {v(t+1)}")
        e(f"v_cmp_ne_u32 vcc, 0, {v(t)}")
        e("s_cmp_eq_u64 vcc, 0")
        e(f"s_cselect_b32 s10, {~(1 << i) & 0xffffffff:#x}, -1")
        e("s_and_b32 s53, s53, s10")
    e("s_cmp_eq_u32 s53, 0")
    e(f"s_cbranch_scc1 {dn}")
    spin_bound()
    e(f"s_branch {lp}")
    lab(dn)
def sweep8_list(addr):
    return [(f"global_load_dwordx4 {v(16+4*i,4)}, {v(addr)}, s[{54+2*(i//2)}:{55+2*(i//2)}] offset:{2048*(i%2)} sc1", 16 + 4 * i) for i in range(8)]
def sweep8_loads(addr):
    for i in range(8):
        e(f"global_load_dwordx4 {v(16+4*i,4)}, {v(addr)}, s[{54+2*(i//2)}:{55+2*(i//2)}] offset:{2048*(i%2)} sc1")

L.append(f"; @launch grid=(256,1,1) block=(512,1,1) lds={LDS_BYTES}")
L.append('.amdgcn_target "amdgcn-amd-amdhsa--gfx950"')
L.append(".text")
L.append(f".globl {NAME}_kernel")
L.append(".p2align 8")
L.append(f".type {NAME}_kernel,@function")
lab(f"{NAME}_kernel")
e("s_cmp_ge_u32 s2, 256")
e("s_cbranch_scc1 L_end")
e("s_load_dwordx16 s[16:31], s[0:1], 0")
e("s_load_dwordx16 s[32:47], s[0:1], 64")
e("v_and_b32 v1, 63, v0")
e("v_lshrrev_b32 v2, 6, v0")
e("s_and_b32 s4, s2, 7")
e("v_readfirstlane_b32 s3, v2")
e("s_lshr_b32 s5, s2, 3")
e("s_and_b32 s6, s5, 3")
e("s_lshr_b32 s7, s5, 2")
e("s_mov_b32 s9, 0")
e("s_mov_b32 s8, 0")
e("s_mov_b32 s93, 0")
e(f"s_mov_b64 {PM}, -1")
if DEBUG:
    e("s_lshl_b32 s92, s2, 8")
    e(f"s_add_u32 s92, s92, {TS:#x}")
e("s_lshr_b32 s48, s7, 1")
e("s_lshl_b32 s10, s4, 2")
e("s_add_u32 s48, s48, s10")
e("s_and_b32 s49, s7, 1")
e(f"v_mov_b32 v252, {EPOCH:#x}")
e("s_waitcnt lgkmcnt(0)")
e(f"global_load_dword v253, v252, {sp(WS)} sc1")
stamp(0)
if DEBUG:
    e("s_getreg_b32 s9, hwreg(HW_REG_XCC_ID)")
    stamp_s9(20)
    e("s_mov_b32 s9, 0")
e("s_cmp_eq_u32 s6, 1")
e("s_cbranch_scc1 L_roleB")
e("s_cmp_eq_u32 s6, 2")
e("s_cbranch_scc1 L_roleC")
e("s_cmp_eq_u32 s6, 3")
e("s_cbranch_scc1 L_roleA")


lab("L_roleD")
e("s_lshl_b32 s50, s7, 3")
e("s_add_u32 s50, s50, s4")
e("v_lshlrev_b32 v3, 1, v0")
e(f"global_load_ushort v8, v3, {sp(C)}")
e("s_lshr_b32 s51, s50, 4")
e("s_and_b32 s52, s50, 15")
e("v_lshrrev_b32 v10, 3, v1")
e("v_lshlrev_b32 v10, 1, v10")
e("s_lshl_b32 s10, s3, 4")
e("s_lshl_b32 s11, s51, 7")
e("s_add_u32 s10, s10, s11")
e("v_add_u32 v10, s10, v10")
e("v_lshlrev_b32 v49, 2, v10")
e("s_movk_i32 s10, 6144")
e("v_mul_lo_u32 v10, v10, s10")
e("v_and_b32 v3, 7, v1")
e("v_lshl_add_u32 v10, v3, 4, v10")
e("s_lshl_b32 s10, s52, 7")
e("v_add_u32 v10, s10, v10")
e(f"global_load_dwordx4 v[56:59], v10, {sp(WMOD)} nt")
sadd64(12, WMOD, 6144)
e("global_load_dwordx4 v[60:63], v10, s[12:13] nt")
gemv64m_setup(52)
e("s_waitcnt vmcnt(2)")
get_tags()
e("v_lshlrev_b32 v9, 16, v8")
e(f"v_mul_f32 v3, {fhex(-LOG2E)}, v9")
e("v_exp_f32 v3, v3")
nop(0)
e("v_add_f32 v3, 1.0, v3")
e("v_rcp_f32 v3, v3")
nop(0)
e("v_mul_f32 v9, v9, v3")
e("v_lshlrev_b32 v3, 2, v0")
e("ds_write_b32 v3, v9")
e("s_waitcnt vmcnt(0) lgkmcnt(0)")
e("s_barrier")
gemv64m(56, 0, 2048, 52, nl=2, va=49)
e("s_waitcnt lgkmcnt(0)")
e("s_barrier")
sk = uid("d")
e("s_cmp_lg_u32 s3, 0")
e(f"s_cbranch_scc1 {sk}")
sum64(2048, 24)
nop(1)
e("v_mov_b32_dpp v32, v24 quad_perm:[0,0,2,2] row_mask:0xf bank_mask:0xf")
e("v_mov_b32_dpp v33, v24 quad_perm:[1,1,3,3] row_mask:0xf bank_mask:0xf")
e(f"v_mov_b32 v34, {T0}")
e(f"v_mov_b32 v35, {T1}")
e("s_lshl_b32 s10, s51, 13")
e("s_lshl_b32 s11, s52, 9")
e("s_add_u32 s10, s10, s11")
e(f"s_add_u32 s10, s10, {HB1C:#x}")
e("v_lshl_add_u32 v3, v1, 3, s10")
set_exec(0x55555555, 0x55555555)
e(f"global_store_dwordx4 v3, v[32:35], {sp(WS)} sc1")
full_exec()
e("s_lshl_b32 s10, s50, 6")
e(f"s_add_u32 s10, s10, {PSA:#x}")
presignal(10, 0, 1, guard=False)
lab(sk)
stamp(1)
if DEBUG:
    e("s_waitcnt vmcnt(0)")
    stamp(9)
e("s_barrier")
WK = 8192
e("v_lshrrev_b32 v10, 4, v1")
e("v_lshlrev_b32 v10, 13, v10")
e("v_and_b32 v3, 15, v1")
e("v_lshl_add_u32 v10, v3, 4, v10")
e("s_lshl_b32 s10, s49, 21")
e("s_lshl_b32 s11, s3, 18")
e("s_add_u32 s10, s10, s11")
e("s_lshl_b32 s11, s48, 8")
e("s_add_u32 s10, s10, s11")
e("v_add_u32 v10, s10, v10")
e(f"s_mul_i32 s11, s3, {8*1040}")
e(f"s_add_u32 s11, s11, {WK}")
for i in range(8):
    sadd64(12, WUK, i * 4 * 8192)
    e("s_mov_b32 m0, s11")
    nop(0)
    e("global_load_lds_dwordx4 v10, s[12:13] nt")
    e("s_add_u32 s11, s11, 1040")
e("v_bfe_u32 v3, v1, 2, 2")
e("s_lshl_b32 s10, s3, 3")
e("v_add_u32 v3, s10, v3")
e("s_movk_i32 s10, 1040")
e("v_mul_lo_u32 v10, v3, s10")
e("v_and_b32 v3, 3, v1")
e("v_lshl_add_u32 v10, v3, 8, v10")
e("v_lshrrev_b32 v3, 4, v1")
e("v_lshl_add_u32 v10, v3, 4, v10")
e(f"v_add_u32 v10, {WK}, v10")
e("s_lshl_b32 s10, s48, 9")
e(f"s_add_u32 s10, s10, {HBQ:#x}")
e("v_lshl_add_u32 v11, v3, 5, s10")
e(f"v_add_u32 v13, {HBQL-HBQ:#x}, v11")
e("s_lshl_b32 s10, s48, 11")
e("s_lshl_b32 s11, s49, 10")
e("s_add_u32 s10, s10, s11")
e("s_lshl_b32 s11, s3, 7")
e("s_add_u32 s10, s10, s11")
e(f"s_add_u32 s10, s10, {HB2:#x}")
e("v_lshl_add_u32 v12, v3, 4, s10")
e("s_waitcnt vmcnt(0)")
for rt in range(2):
    for ks in range(4):
        e(f"ds_read_b128 {v(64+(rt*4+ks)*4,4)}, v10 offset:{rt*4160+ks*64}")
lpq, okL, okG = uid("q"), uid("q"), uid("q")
lab(lpq)
for k in range(8):
    e(f"global_load_dwordx4 {v(16+4*k,4)}, v13, {sp(WS)} offset:{128*(k//2)+16*(k%2)} sc1")
for k in range(8):
    e(f"global_load_dwordx4 {v(112+4*k,4)}, v11, {sp(WS)} offset:{128*(k//2)+16*(k%2)} sc1")
e("s_waitcnt vmcnt(8)")
def _chk(base, t):
    for k in range(8):
        u = base + 4 * k
        e(f"v_xor_b32 {v(t+1)}, {T0}, {v(u+2)}")
        e(f"v_xor_b32 {v(t+2)}, {T1}, {v(u+3)}")
        if k == 0: e(f"v_or_b32 {v(t)}, {v(t+1)}, {v(t+2)}")
        else: e(f"v_or3_b32 {v(t)}, {v(t)}, {v(t+1)}, {v(t+2)}")
    e(f"v_cmp_ne_u32 vcc, 0, {v(t)}")
_chk(16, 96)
e(f"s_cbranch_vccz {okL}")
e("s_waitcnt vmcnt(0)")
_chk(112, 96)
e(f"s_cbranch_vccz {okG}")
spin_bound()
e(f"s_branch {lpq}")
lab(okG)
for k in range(8):
    e(f"v_mov_b32 {v(16+4*k)}, {v(112+4*k)}")
    e(f"v_mov_b32 {v(17+4*k)}, {v(113+4*k)}")
lab(okL)
stamp(6)
for ks in range(4):
    e(f"v_mov_b32 {v(18+8*ks)}, {v(20+8*ks)}")
    e(f"v_mov_b32 {v(19+8*ks)}, {v(21+8*ks)}")
e("s_waitcnt lgkmcnt(0)")
nop(0)
for ks in range(4):
    for rt in range(2):
        c = "0" if ks == 0 else v(96 + 4 * rt, 4)
        e(f"v_mfma_f32_16x16x32_bf16 {v(96+4*rt,4)}, {v(64+(rt*4+ks)*4,4)}, {v(16+8*ks,4)}, {c}")
nop(6)
set_exec(0x00010001, 0x00010001)
for rt in range(2):
    d = 104 + 4 * rt
    e(f"v_cvt_pk_bf16_f32 {v(d)}, {v(96+4*rt)}, {v(97+4*rt)}")
    e(f"v_cvt_pk_bf16_f32 {v(d+1)}, {v(98+4*rt)}, {v(99+4*rt)}")
    e(f"v_mov_b32 {v(d+2)}, {T0}")
    e(f"v_mov_b32 {v(d+3)}, {T1}")
    e(f"global_store_dwordx4 v12, {v(d,4)}, {sp(WS)} offset:{64*rt} sc1")
full_exec()
stamp(7)
e("s_cmp_ge_u32 s50, 48")
e("s_cbranch_scc1 L_final")
e("s_cmp_ge_u32 s50, 32")
e("s_cbranch_scc1 L_ph5pre")
e("v_lshrrev_b32 v10, 3, v1")
e("v_lshlrev_b32 v10, 3, v10")
e("s_lshl_b32 s10, s3, 6")
e("v_add_u32 v10, s10, v10")
e("s_movk_i32 s10, 6144")
e("v_mul_lo_u32 v10, v10, s10")
e("v_and_b32 v3, 7, v1")
e("v_lshl_add_u32 v10, v3, 4, v10")
e("s_lshl_b32 s10, s50, 7")
e("s_add_u32 s10, s10, 2048")
e("v_add_u32 v10, s10, v10")
load_seg64(WMOD, 64, 6144)
e("s_waitcnt vmcnt(0)")
e("s_barrier")
gemv64m(64, 0, 2048, 52)
e("s_waitcnt lgkmcnt(0)")
e("s_barrier")
sk = uid("d")
e("s_cmp_lg_u32 s3, 0")
e(f"s_cbranch_scc1 {sk}")
sum64(2048, 24)
nop(1)
for k in range(4):
    e(f"v_mov_b32_dpp {v(28+k)}, v24 quad_perm:[{k},{k},{k},{k}] row_mask:0xf bank_mask:0xf")
e("v_cvt_pk_bf16_f32 v32, v28, v29")
e("v_cvt_pk_bf16_f32 v33, v30, v31")
e(f"v_mov_b32 v34, {T0}")
e(f"v_mov_b32 v35, {T1}")
e("s_lshl_b32 s10, s50, 8")
e("s_add_u32 s10, s10, 4096")
e("v_lshl_add_u32 v3, v1, 2, s10")
set_exec(0x11111111, 0x11111111)
e(f"global_store_dwordx4 v3, v[32:35], {sp(WS)} sc1")
full_exec()
lab(sk)
lab("L_ph5pre")
e("s_cmp_ge_u32 s50, 43")
e("s_cbranch_scc1 L_end")
e("s_barrier")

W1S, W2S, MODL, X1L, YL, HPL, HL = 0, 33280, 66560, 69632, 71680, 79872, 80896
e("v_lshrrev_b32 v2, 2, v1")
e("s_lshl_b32 s10, s3, 6")
e("v_add_u32 v2, s10, v2")
e("s_movk_i32 s10, 2752")
e("v_mul_lo_u32 v2, v2, s10")
e("v_and_b32 v3, 3, v1")
e("v_lshl_add_u32 v2, v3, 4, v2")
e("s_lshl_b32 s10, s50, 6")
e("v_add_u32 v2, s10, v2")
e(f"s_mul_i32 s11, s3, {4*1040}")
e(f"s_add_u32 s11, s11, {W1S}")
for i in range(4):
    sadd64(12, W1, i * 16 * 2752)
    e("s_mov_b32 m0, s11")
    nop(0)
    e("global_load_lds_dwordx4 v2, s[12:13] nt")
    e("s_add_u32 s11, s11, 1040")
e("s_lshl_b32 s10, s50, 5")
e("s_lshl_b32 s11, s3, 2")
e("s_add_u32 s10, s10, s11")
e("s_lshl_b32 s10, s10, 10")
e("v_lshlrev_b32 v2, 4, v1")
e("v_add_u32 v2, s10, v2")
e(f"s_mul_i32 s11, s3, {4*1040}")
e(f"s_add_u32 s11, s11, {W2S}")
for i in range(4):
    sadd64(12, W2, i * 1024)
    e("s_mov_b32 m0, s11")
    nop(0)
    e("global_load_lds_dwordx4 v2, s[12:13] nt")
    e("s_add_u32 s11, s11, 1040")
e("v_and_b32 v3, 31, v1")
e("s_lshl_b32 s10, s50, 6")
e("v_lshl_add_u32 v3, v3, 1, s10")
e(f"global_load_ushort v96, v3, {sp(B1)}")
col_of_lane(97, 3)
e("v_lshlrev_b32 v3, 1, v97")
e(f"global_load_ushort v98, v3, {sp(X)}")
e(f"s_mov_b32 s10, {HB1 + 4096 + 23*256}")
wave0_hint_barrier(10, 16)
skm = uid("d")
e("s_cmp_ge_u32 s3, 6")
e(f"s_cbranch_scc1 {skm}")
e("v_lshlrev_b32 v12, 4, v0")
e(f"v_add_u32 v12, {HB1 + 256*16}, v12")
lp = uid("g")
lab(lp)
e(f"global_load_dwordx4 v[16:19], v12, {sp(WS)} sc1")
e("s_waitcnt vmcnt(0)")
tagcheck([16], 40, lp)
e("v_lshlrev_b32 v3, 3, v0")
e(f"ds_write_b64 v3, v[16:17] offset:{MODL}" if MODL < 65536 else "")
if MODL >= 65536:
    L.pop()
    e(f"v_add_u32 v3, {MODL}, v3")
    e("ds_write_b64 v3, v[16:17]")
lab(skm)
e("s_waitcnt vmcnt(0) lgkmcnt(0)")
e("s_barrier")
e("v_lshrrev_b32 v2, 5, v1")
e("s_lshl_b32 s10, s3, 2")
e("v_add_u32 v2, s10, v2")
e("s_movk_i32 s10, 1040")
e("v_mul_lo_u32 v2, v2, s10")
e("v_bfe_u32 v3, v1, 4, 1")
e("v_lshl_add_u32 v2, v3, 9, v2")
e("v_bfe_u32 v3, v1, 2, 2")
e("v_lshl_add_u32 v2, v3, 6, v2")
e("v_and_b32 v3, 3, v1")
e("v_lshl_add_u32 v2, v3, 3, v2")
tr_frags(64, [2], 2, 2, 2 * 1040, 32, 256)
e("v_lshrrev_b32 v2, 4, v1")
e("v_lshlrev_b32 v2, 3, v2")
e("v_bfe_u32 v3, v1, 2, 2")
e("v_add_u32 v2, v2, v3")
e("v_mul_lo_u32 v2, v2, s10")
e("v_and_b32 v3, 3, v1")
e("v_lshl_add_u32 v2, v3, 3, v2")
e("s_lshl_b32 s11, s3, 7")
e(f"s_add_u32 s11, s11, {W2S}")
e("v_add_u32 v2, s11, v2")
tr_frags(80, [2], 1, 4, 0, 32, 4 * 1040)
e("v_lshlrev_b32 v3, 1, v97")
e(f"v_add_u32 v3, {MODL}, v3")
e("ds_read_u16 v99, v3")
e("v_lshlrev_b32 v3, 4, v1")
e(f"v_add_u32 v3, {MODL}, v3")
e("ds_read_b128 v[16:19], v3 offset:1024")
e("ds_read_b128 v[20:23], v3 offset:2048")
e("s_waitcnt lgkmcnt(0)")
for k in range(4):
    unpack2(16 + k, 100 + 2 * k)
    unpack2(20 + k, 108 + 2 * k)
for d in range(108, 116):
    e(f"v_add_f32 {v(d)}, 1.0, {v(d)}")
for d in (96, 98, 99):
    e(f"v_lshlrev_b32 {v(d)}, 16, {v(d)}")
e(f"s_mov_b32 s51, {HB4A:#x}")
sweep8_addr(52, 51)
e("v_lshlrev_b32 v53, 2, v97")
e(f"v_add_u32 v53, {X1L}, v53")
e("v_lshlrev_b32 v54, 5, v1")
e(f"v_add_u32 v54, {X1L}, v54")
e("s_lshl_b32 s10, s3, 10")
e(f"s_add_u32 s10, s10, {YL}")
e("v_lshl_add_u32 v55, v1, 4, s10")
e("v_lshrrev_b32 v3, 4, v1")
e("s_lshl_b32 s11, s3, 7")
e("s_add_u32 s10, s10, s11")
e("v_lshl_add_u32 v56, v3, 4, s10")
e("v_and_b32 v3, 15, v1")
e("s_lshl_b32 s10, s3, 7")
e(f"s_add_u32 s10, s10, {HPL}")
e("v_lshl_add_u32 v57, v3, 2, s10")
e("v_and_b32 v3, 31, v1")
e("v_lshlrev_b32 v58, 2, v3")
e(f"v_add_u32 v58, {HPL}, v58")
e("s_lshl_b32 s10, s3, 6")
e(f"s_add_u32 s10, s10, {HL}")
e("v_lshl_add_u32 v59, v3, 1, s10")
e("v_lshrrev_b32 v3, 4, v1")
e("v_lshl_add_u32 v60, v3, 4, s10")
e("v_and_b32 v3, 15, v1")
e("s_lshl_b32 s10, s50, 11")
e("s_lshl_b32 s11, s3, 8")
e("s_add_u32 s10, s10, s11")
e(f"s_add_u32 s10, s10, {HB6:#x}")
e("v_lshl_add_u32 v61, v3, 4, s10")
def _p():
    e("s_lshl_b32 s10, s50, 10")
    e(f"s_add_u32 s10, s10, {PS4:#x}")
    e("v_lshl_add_u32 v20, v1, 4, s10")
wave0_multi_barrier(_p, 0xffffffff, 0xffffffff, 16)
stamp(2)
sweep_pending(sweep8_list(52), 120)
stamp(8)
for i in range(8):
    u = 16 + 4 * i
    for (src, a) in ((u, 120), (u + 1, 122)):
        if i == 0:
            unpack2(src, a)
        else:
            e(f"v_lshlrev_b32 v124, 16, {v(src)}")
            e(f"v_and_b32 v125, 0xffff0000, {v(src)}")
            e(f"v_add_f32 {v(a)}, {v(a)}, v124")
            e(f"v_add_f32 {v(a+1)}, {v(a+1)}, v125")
red4_sg(120)
e("v_fma_f32 v120, v99, v120, v98")
e("v_cvt_pk_bf16_f32 v120, v120, v120")
e("v_lshlrev_b32 v120, 16, v120")
e("ds_write_b32 v53, v120")
e("s_waitcnt lgkmcnt(0)")
e("s_barrier")
e("ds_read_b128 v[16:19], v54")
e("ds_read_b128 v[20:23], v54 offset:16")
e("s_waitcnt lgkmcnt(0)")
def ln8():
    e("v_readfirstlane_b32 s10, v16")
    nop(1)
    for r in range(16, 24): e(f"v_subrev_f32 {v(r)}, s10, {v(r)}")
    e("v_add_f32 v40, v16, v17")
    e("v_mul_f32 v42, v16, v16")
    for r in range(18, 24): e(f"v_add_f32 v40, v40, {v(r)}")
    for r in range(17, 24): e(f"v_fmac_f32 v42, {v(r)}, {v(r)}")
    for r_ in (8, 4, 2, 1):
        nop(0)
        dpp("v_add_f32", 40, 40, 40, f"row_ror:{r_}")
        dpp("v_add_f32", 42, 42, 42, f"row_ror:{r_}")
    for sw in ("v_permlane16_swap_b32", "v_permlane32_swap_b32"):
        e("v_mov_b32 v41, v40")
        e("v_mov_b32 v43, v42")
        nop(0)
        e(f"{sw} v41, v40")
        e(f"{sw} v43, v42")
        e("v_add_f32 v40, v40, v41")
        e("v_add_f32 v42, v42, v43")
    e(f"v_mul_f32 v40, {fhex(1/512)}, v40")
    e(f"v_mul_f32 v42, {fhex(1/512)}, v42")
    e("v_fma_f32 v42, -v40, v40, v42")
    e("v_max_f32 v42, 0, v42")
    e(f"v_add_f32 v42, {fhex(1e-5)}, v42")
    e("v_rsq_f32 v42, v42")
    for r in range(16, 24): e(f"v_sub_f32 {v(r)}, {v(r)}, v40")
    for r in range(16, 24): e(f"v_mul_f32 {v(r)}, {v(r)}, v42")
ln8()
for i in range(8):
    e(f"v_fma_f32 {v(16+i)}, {v(16+i)}, {v(108+i)}, {v(100+i)}")
nop(0)
ln8()
for k in range(4):
    e(f"v_cvt_pk_bf16_f32 {v(24+k)}, {v(16+2*k)}, {v(17+2*k)}")
e("ds_write_b128 v55, v[24:27]")
e("s_waitcnt lgkmcnt(0)")
e("ds_read_b128 v[16:19], v56")
e("ds_read_b128 v[20:23], v56 offset:64")
e("s_waitcnt lgkmcnt(1)")
e("v_mfma_f32_16x16x32_bf16 v[24:27], v[16:19], v[64:67], 0")
e("v_mfma_f32_16x16x32_bf16 v[28:31], v[16:19], v[68:71], 0")
e("s_waitcnt lgkmcnt(0)")
e("v_mfma_f32_16x16x32_bf16 v[24:27], v[20:23], v[72:75], v[24:27]")
e("v_mfma_f32_16x16x32_bf16 v[28:31], v[20:23], v[76:79], v[28:31]")
nop(7)
set_exec(0xffff, 0)
e("ds_write_b32 v57, v24")
e("ds_write_b32 v57, v28 offset:64")
full_exec()
e("s_waitcnt lgkmcnt(0)")
e("s_barrier")
for w in range(8):
    e(f"ds_read_b32 {v(16+w)}, v58 offset:{128*w}")
e("s_waitcnt lgkmcnt(0)")
e("v_add_f32 v16, v16, v17"); e("v_add_f32 v18, v18, v19"); e("v_add_f32 v20, v20, v21"); e("v_add_f32 v22, v22, v23")
e("v_add_f32 v16, v16, v18"); e("v_add_f32 v20, v20, v22")
e("v_add3_u32 v24, 0, 0, 0") if False else None
e("v_add_f32 v24, v16, v20")
K1 = -2 * 0.7978845608028654 * LOG2E
e("v_add_f32 v24, v24, v96")
e("v_mul_f32 v20, v24, v24")
e(f"v_mul_f32 v20, {fhex(0.044715)}, v20")
e("v_fma_f32 v20, v20, v24, v24")
e(f"v_mul_f32 v20, {fhex(K1)}, v20")
e("v_exp_f32 v20, v20")
nop(0)
e("v_add_f32 v20, 1.0, v20")
e("v_rcp_f32 v20, v20")
nop(0)
e("v_mul_f32 v24, v24, v20")
e("v_cvt_pk_bf16_f32 v24, v24, v24")
e("ds_write_b16 v59, v24")
e("s_waitcnt lgkmcnt(0)")
e("ds_read_b128 v[16:19], v60")
e("s_waitcnt lgkmcnt(0)")
for t in range(4):
    e(f"v_mfma_f32_16x16x32_bf16 {v(24+4*t,4)}, v[16:19], {v(80+4*t,4)}, 0")
nop(7)
pub_tiles(24, 61)
stamp(3)
e("s_branch L_end")

lab("L_final")
e("s_barrier")
e("s_sub_u32 s52, s50, 48")
e("v_lshrrev_b32 v3, 3, v0")
e("v_lshlrev_b32 v72, 11, v3")
e("v_and_b32 v2, 7, v0")
e("v_lshl_add_u32 v72, v2, 4, v72")
e("s_lshl_b32 s10, s52, 7")
e("v_add_u32 v72, s10, v72")
e("v_cmp_gt_u32 vcc, 32, v3")
e("s_mov_b64 s[54:55], vcc")
e("v_cmp_gt_u32 vcc, 43, v3")
e("s_mov_b64 s[56:57], vcc")
bitswap_rho(48, 3)
e("v_lshl_add_u32 v48, v2, 2, v48")
e("s_lshl_b32 s10, s3, 7")
e("v_lshl_add_u32 v48, v48, 2, s10")
e("v_and_b32 v3, 3, v1")
e("v_lshlrev_b32 v70, 4, v3")
e("v_bfe_u32 v3, v1, 2, 3")
e("v_add_u32 v70, v70, v3")
e("s_lshr_b32 s10, s52, 1")
e("s_lshl_b32 s10, s10, 6")
e("s_and_b32 s11, s52, 1")
e("s_lshl_b32 s11, s11, 3")
e("s_add_u32 s10, s10, s11")
e("v_add_u32 v70, s10, v70")
e("v_lshlrev_b32 v71, 1, v70")
e(f"global_load_ushort v64, v71, {sp(X)}")
e(f"global_load_ushort v65, v71, {sp(B2)}")
e("s_waitcnt vmcnt(0)")
get_tags()
skr = uid("d")
e("s_cmp_lg_u32 s3, 0")
e(f"s_cbranch_scc1 {skr}")
e(f"s_mov_b32 s10, {HB1 + 4096 + 31*256}")
hint_wait(10, 16)
e("v_lshrrev_b32 v3, 2, v70")
e("v_lshlrev_b32 v3, 4, v3")
e(f"v_add_u32 v10, {HB1 + 256*16}, v3")
e(f"v_add_u32 v11, {HB1 + 640*16}, v3")
lp = uid("g")
lab(lp)
e(f"global_load_dwordx4 v[16:19], v10, {sp(WS)} sc1")
e(f"global_load_dwordx4 v[20:23], v11, {sp(WS)} sc1")
e("s_waitcnt vmcnt(0)")
tagcheck([16, 20], 40, lp)
e("v_and_b32 v3, 2, v70")
e("v_cmp_ne_u32 vcc, 0, v3")
nop(1)
e("v_cndmask_b32 v66, v16, v17, vcc")
e("v_cndmask_b32 v67, v20, v21, vcc")
e("v_and_b32 v3, 1, v70")
e("v_lshlrev_b32 v3, 4, v3")
e("v_lshrrev_b32 v66, v3, v66")
e("v_lshrrev_b32 v67, v3, v67")
for d in (64, 65, 66, 67):
    e(f"v_lshlrev_b32 {v(d)}, 16, {v(d)}")
lab(skr)
def fin_gather(hb, mask, ldsoff):
    e(f"v_add_u32 v10, {hb:#x}, v72")
    e("v_mov_b32 v16, 0"); e("v_mov_b32 v17, 0"); e(f"v_mov_b32 v18, {T0}"); e(f"v_mov_b32 v19, {T1}")
    lp = uid("g"); sk = uid("r")
    e(f"s_cmp_eq_u64 {mask}, 0")
    e(f"s_cbranch_scc1 {sk}")
    lab(lp)
    e(f"s_mov_b64 exec, {mask}")
    e(f"global_load_dwordx4 v[16:19], v10, {sp(WS)} sc1")
    full_exec()
    e("s_waitcnt vmcnt(0)")
    tagcheck([16], 40, lp)
    lab(sk)
    unpack2(16, 20); unpack2(17, 22)
    red4_sg(20)
    nop(1)
    dpp("v_add_f32", 20, 20, 20, "row_ror:8")
    set_exec(0x00ff00ff, 0x00ff00ff)
    e(f"ds_write_b32 v48, v20 offset:{ldsoff}")
    full_exec()
    e("s_waitcnt lgkmcnt(0)")
    e("s_barrier")
    e("s_cmp_lg_u32 s3, 0")
    skw = uid("rw")
    e(f"s_cbranch_scc1 {skw}")
    e("v_and_b32 v3, 31, v1")
    e("v_lshlrev_b32 v3, 2, v3")
    for w in range(8):
        e(f"ds_read_b32 {v(24+w)}, v3 offset:{ldsoff+128*w}")
    e("s_waitcnt lgkmcnt(0)")
    e("v_add_f32 v24, v24, v25"); e("v_add_f32 v26, v26, v27"); e("v_add_f32 v28, v28, v29"); e("v_add_f32 v30, v30, v31")
    e("v_add_f32 v24, v24, v26"); e("v_add_f32 v28, v28, v30"); e("v_add_f32 v16, v24, v28")
    return skw
def _f():
    e("s_add_u32 s10, s52, 43")
    e("s_lshl_b32 s10, s10, 10")
    e(f"s_add_u32 s10, s10, {PS4:#x}")
    e("v_lshl_add_u32 v20, v1, 4, s10")
wave0_multi_barrier(_f, 0xffffffff, 0xffffffff, 16)
skw = fin_gather(HB4A, "s[54:55]", 0)
e("v_fma_f32 v68, v66, v16, v64")
e("v_cvt_pk_bf16_f32 v68, v68, v68")
e("v_lshlrev_b32 v68, 16, v68")
lab(skw)
stamp(3)
skw = fin_gather(HB6, "s[56:57]", 1024)
e("v_add_f32 v16, v16, v65")
e("v_fma_f32 v16, v67, v16, v68")
e("v_cvt_pk_bf16_f32 v16, v16, v16")
set_exec(0xffffffff, 0)
e(f"global_store_short v71, v16, {sp(OUT)}")
e("s_cmp_lg_u32 s52, 0")
e(f"s_cbranch_scc1 {skw}")
set_exec(1, 0)
e(f"v_mov_b32 v3, {EPOCH:#x}")
e(f"v_mov_b32 v24, {T0}")
e(f"global_store_dword v3, v24, {sp(WS)} sc1")
lab(skw)
full_exec()
stamp(5)
e("s_branch L_end")

lab("L_roleB")
e("s_lshl_b32 s50, s48, 1")
e("s_add_u32 s50, s50, s49")
e("s_lshl_b32 s50, s50, 8")
e(f"s_add_u32 s50, s50, {HBQ:#x}")
e("s_cmp_ge_u32 s3, 4")
e("s_cbranch_scc1 L_Bload")
e("v_lshlrev_b32 v2, 4, v1")
e(f"global_load_dwordx4 v[128:131], v2, {sp(X)}")
e("v_lshlrev_b32 v2, 2, v0")
e(f"global_load_dword v132, v2, {sp(X)}")
e("s_waitcnt vmcnt(0)")
get_tags()
for k in range(4): unpack2(128 + k, 16 + 2 * k)
unpack2(132, 134)
e("v_add_f32 v40, v16, v17")
for r in range(18, 24): e(f"v_add_f32 v40, v40, {v(r)}")
wave_red("v_add_f32", 40, 41)
e(f"v_mul_f32 v40, {fhex(1/512)}, v40")
for r in list(range(16, 24)) + [134, 135]: e(f"v_sub_f32 {v(r)}, {v(r)}, v40")
e("v_mul_f32 v42, v16, v16")
for r in range(17, 24): e(f"v_fmac_f32 v42, {v(r)}, {v(r)}")
wave_red("v_add_f32", 42, 41)
e(f"v_mov_b32 v41, {fhex(1e-5)}")
e(f"v_fmac_f32 v41, {fhex(1/512)}, v42")
e("v_rsq_f32 v41, v41")
nop(0)
for r in (134, 135): e(f"v_mul_f32 {v(r)}, {v(r)}, v41")
stamp(5)
e("s_lshl_b32 s10, s48, 11")
e("s_lshl_b32 s11, s49, 10")
e("s_add_u32 s10, s10, s11")
e(f"s_add_u32 s10, s10, {PS1:#x}")
stamp(3)
e("v_lshlrev_b32 v3, 4, v0")
e(f"v_add_u32 v3, {HB1C:#x}, v3")
for k in range(4):
    sadd64(54 + 2 * k, WS, k * 8192)
    sadd64(62 + 2 * k, WS, k * 8192 + 4096)
_ld = []
for k in range(4):
    _ld.append((f"global_load_dwordx4 {v(16+4*k,4)}, v3, s[{54+2*k}:{55+2*k}] sc1", 16 + 4 * k))
    _ld.append((f"global_load_dwordx4 {v(32+4*k,4)}, v3, s[{62+2*k}:{63+2*k}] sc1", 32 + 4 * k))
sweep_pending(_ld, 136)
stamp(6)
for base in (16, 32):
    for o in (0, 1):
        e(f"v_add_f32 {v(base+o)}, {v(base+o)}, {v(base+4+o)}")
        e(f"v_add_f32 {v(base+8+o)}, {v(base+8+o)}, {v(base+12+o)}")
        e(f"v_add_f32 {v(base+o)}, {v(base+o)}, {v(base+8+o)}")
    e(f"v_cvt_pk_bf16_f32 {v(base)}, {v(base)}, {v(base+1)}")
    unpack2(base, base + 2)
for o in (0, 1):
    e(f"v_fma_f32 {v(34+o)}, {v(134+o)}, {v(34+o)}, {v(134+o)}")
    e(f"v_add_f32 {v(34+o)}, {v(34+o)}, {v(18+o)}")
e("v_lshlrev_b32 v3, 3, v0")
e("ds_write_b64 v3, v[34:35]")
stamp(4)
e("s_waitcnt lgkmcnt(0)")
e("s_barrier")
stamp(1)
e("s_barrier")
e("s_cmp_lg_u32 s3, 0")
e("s_cbranch_scc1 L_end")
e("v_lshlrev_b32 v3, 2, v1")
for w in range(4):
    e(f"ds_read_b32 {v(16+w)}, v3 offset:{2048+256*w}")
e("s_waitcnt lgkmcnt(0)")
e("v_add_f32 v16, v16, v17"); e("v_add_f32 v18, v18, v19")
e("v_add_f32 v24, v16, v18")
nop(1)
for k in range(4):
    e(f"v_mov_b32_dpp {v(28+k)}, v24 quad_perm:[{k},{k},{k},{k}] row_mask:0xf bank_mask:0xf")
e("v_cvt_pk_bf16_f32 v32, v28, v29")
e("v_cvt_pk_bf16_f32 v33, v30, v31")
e(f"v_mov_b32 v34, {T0}")
e(f"v_mov_b32 v35, {T1}")
e("v_lshl_add_u32 v3, v1, 2, s50")
e(f"v_add_u32 v2, {HBQL-HBQ:#x}, v3")
set_exec(0x11111111, 0x11111111)
e(f"global_store_dwordx4 v2, v[32:35], {sp(WS)}")
e(f"global_store_dwordx4 v3, v[32:35], {sp(WS)} sc1")
full_exec()
e("s_lshr_b32 s10, s48, 4")
e("s_lshl_b32 s10, s10, 9")
e("s_and_b32 s11, s48, 15")
e("s_lshl_b32 s11, s11, 5")
e("s_add_u32 s10, s10, s11")
e("s_lshl_b32 s11, s49, 4")
e("s_add_u32 s10, s10, s11")
e(f"s_add_u32 s10, s10, {PSQ:#x}")
presignal(10, 10, 32, guard=False)
stamp(2)
e("s_branch L_end")
lab("L_Bload")
e("s_sub_u32 s51, s3, 4")
e("v_lshrrev_b32 v10, 3, v1")
e("v_lshlrev_b32 v10, 17, v10")
e("s_lshl_b32 s10, s51, 20")
e("s_lshl_b32 s11, s48, 8")
e("s_add_u32 s10, s10, s11")
e("s_lshl_b32 s11, s49, 7")
e("s_add_u32 s10, s10, s11")
e("v_add_u32 v10, s10, v10")
e("v_and_b32 v3, 7, v1")
e("v_lshl_add_u32 v10, v3, 4, v10")
for i in range(16):
    sadd64(12, WQ, i * 8192)
    e(f"global_load_dwordx4 {v(64+4*i,4)}, v10, s[12:13] nt")
masks_setup(52)
e("v_lshrrev_b32 v2, 3, v1")
e("v_lshlrev_b32 v2, 6, v2")
e("s_lshl_b32 s10, s51, 9")
e("v_add_u32 v2, s10, v2")
e("v_and_b32 v48, 7, v1")
e("v_lshlrev_b32 v48, 5, v48")
e("v_and_b32 v3, 16, v1")
e("s_lshl_b32 s10, s51, 8")
e("v_add3_u32 v48, v48, v3, s10")
e("s_waitcnt vmcnt(0)")
e("s_barrier")
for k in range(4):
    e(f"ds_read_b128 {v(136+4*k,4)}, v2 offset:{16*k}")
e("s_waitcnt lgkmcnt(0)")
for i in range(16):
    e(f"v_cvt_pk_bf16_f32 {v(136+i)}, {v(136+i)}, {v(136+i)}")
for i in range(16):
    a_ = 24 + 4 * (i % 3)
    for r in range(4):
        e(f"v_and_b32 {v(a_+r)}, {v(136+i)}, {v(52+r)}")
    if i > 0:
        pa = 24 + 4 * ((i - 1) % 3)
        c = "0" if i == 1 else "v[40:43]"
        e(f"v_mfma_f32_16x16x32_bf16 v[40:43], {v(pa,4)}, {v(64+4*(i-1),4)}, {c}")
nop(1)
e(f"v_mfma_f32_16x16x32_bf16 v[40:43], {v(24+4*(15%3),4)}, {v(64+60,4)}, v[40:43]")
nop(7)
for r in range(4):
    e(f"v_mov_b32 {v(44+r)}, {v(40+r)}")
nop(0)
for r in range(4):
    e(f"v_permlane32_swap_b32 {v(40+r)}, {v(44+r)}")
nop(0)
for r in range(4):
    dpp("v_add_f32", 40 + r, 44 + r, 40 + r, "row_ror:8")
set_exec(0x00ff00ff, 0)
e("ds_write_b128 v48, v[40:43] offset:2048")
full_exec()
e("s_waitcnt lgkmcnt(0)")
e("s_barrier")
e("s_branch L_end")

CK_ROW = 1040
QA = 128 * CK_ROW
PB = QA + 16 * CK_ROW
MX = PB + 16 * 272
lab("L_roleC")
e("v_lshrrev_b32 v2, 4, v1")
e("v_lshlrev_b32 v50, 18, v2")
e("v_and_b32 v3, 15, v1")
e("v_lshl_add_u32 v50, v3, 4, v50")
e("s_lshl_b32 s10, s49, 20")
e("s_lshl_b32 s11, s48, 11")
e("s_add_u32 s10, s10, s11")
e("s_lshl_b32 s11, s3, 8")
e("s_add_u32 s10, s10, s11")
e(f"s_add_u32 s10, s10, {HB3:#x}")
e("v_add_u32 v50, s10, v50")
for r in range(4):
    sadd64(54 + 2 * r, WS, r * 65536)
e("v_lshlrev_b32 v51, 9, v1")
e("s_lshl_b32 s10, s49, 13")
e("s_lshl_b32 s11, s48, 4")
e("s_add_u32 s10, s10, s11")
e(f"s_add_u32 s10, s10, {HB3ML:#x}")
e("v_add_u32 v51, s10, v51")
e("v_and_b32 v2, 127, v0")
e("v_lshlrev_b32 v52, 4, v2")
e("s_lshr_b32 s10, s3, 1")
e("s_lshl_b32 s11, s49, 4")
e("s_add_u32 s11, s11, s10")
e("s_lshl_b32 s11, s11, 11")
e(f"s_add_u32 s11, s11, {HB2:#x}")
e("v_add_u32 v52, s11, v52")
e(f"s_mul_i32 s10, s10, {CK_ROW}")
e("v_lshlrev_b32 v53, 3, v2")
e("v_add_u32 v53, s10, v53")
e(f"v_add_u32 v53, {QA}, v53")
for i in range(4):
    sadd64(62 + 2 * i, WS, i * 8192)
e("v_and_b32 v2, 15, v1")
e(f"s_movk_i32 s10, {CK_ROW}")
e("v_mul_lo_u32 v49, v2, s10")
e("v_lshrrev_b32 v3, 4, v1")
e("v_lshl_add_u32 v49, v3, 4, v49")
e(f"v_add_u32 v49, {QA}, v49")
e("v_lshlrev_b32 v54, 5, v2")
e(f"v_add_u32 v54, {MX}, v54")
e("s_lshl_b32 s10, s3, 2")
e("v_add_u32 v58, s10, v54")
e("s_movk_i32 s10, 272")
e("v_mul_lo_u32 v56, v2, s10")
e(f"v_add_u32 v56, {PB}, v56")
e("v_lshl_add_u32 v55, v3, 3, v56")
e("s_lshl_b32 s10, s3, 5")
e("v_add_u32 v55, s10, v55")
e("v_lshl_add_u32 v56, v3, 4, v56")
e("v_lshlrev_b32 v2, 4, v1")
e("s_lshl_b32 s10, s48, 17")
e("s_lshl_b32 s11, s3, 14")
e("s_add_u32 s10, s10, s11")
e(f"s_add_u32 s12, s{CKV}, s10")
e(f"s_addc_u32 s13, s{CKV+1}, 0")
e(f"s_mul_i32 s11, s3, {16*CK_ROW}")
for i in range(16):
    e("s_mov_b32 m0, s11")
    e("s_nop 0")
    e("global_load_lds_dwordx4 v2, s[12:13] nt")
    if i < 15:
        e("s_add_u32 s12, s12, 1024")
        e("s_addc_u32 s13, s13, 0")
        e(f"s_add_u32 s11, s11, {CK_ROW}")
e("s_waitcnt vmcnt(0)")
get_tags()
e("s_barrier")
stamp(4)
e("v_and_b32 v2, 15, v1")
e("s_lshl_b32 s10, s3, 4")
e("v_add_u32 v2, s10, v2")
e(f"s_movk_i32 s10, {CK_ROW}")
e("v_mul_lo_u32 v2, v2, s10")
e("v_lshrrev_b32 v3, 4, v1")
e("v_lshl_add_u32 v2, v3, 4, v2")
for j in range(16):
    e(f"ds_read_b128 {v(64+4*j,4)}, v2 offset:{64*j}")
e("v_lshrrev_b32 v2, 4, v1")
e("v_lshlrev_b32 v2, 3, v2")
e("v_and_b32 v3, 15, v1")
e("v_lshrrev_b32 v3, 2, v3")
e("v_add_u32 v2, v2, v3")
e("v_mul_lo_u32 v2, v2, s10")
e("v_and_b32 v3, 3, v1")
e("v_lshl_add_u32 v2, v3, 3, v2")
e("s_lshl_b32 s11, s3, 7")
e("v_add_u32 v2, s11, v2")
e(f"v_add_u32 v3, {64*CK_ROW}, v2")
for j in range(4):
    for jj in range(4):
        base = 2 if j < 2 else 3
        off = (j % 2) * 32 * CK_ROW + jj * 32
        d = 128 + (j * 4 + jj) * 4
        e(f"ds_read_b64_tr_b16 {v(d,2)}, {v(base)} offset:{off}")
        e(f"ds_read_b64_tr_b16 {v(d+2,2)}, {v(base)} offset:{off+4*CK_ROW}")
e("s_waitcnt lgkmcnt(0)")
def _c():
    e("s_lshl_b32 s10, s48, 10")
    e("s_lshl_b32 s11, s49, 9")
    e("s_add_u32 s10, s10, s11")
    e(f"s_add_u32 s10, s10, {PSQ:#x}")
    e("v_lshl_add_u32 v20, v1, 4, s10")
wave0_multi_barrier(_c, 0xffffffff, 0, 16)
stamp(1)
_ld = []
for i in range(4):
    _ld.append((f"global_load_dwordx4 {v(16+4*i,4)}, v52, s[{62+2*i}:{63+2*i}] sc1", 16 + 4 * i))
sweep_pending(_ld, 192)
stamp(3)
for i in range(4):
    e(f"ds_write_b64 v53, {v(16+4*i,2)} offset:{i*4*CK_ROW}")
e("s_waitcnt lgkmcnt(0)")
stamp(5)
e("s_barrier")
stamp(6)
for j in range(16):
    e(f"ds_read_b128 {v(192+4*j,4)}, v49 offset:{64*j}")
for j in range(16):
    e(f"s_waitcnt lgkmcnt({15-j})")
    c = "0" if j == 0 else "v[16:19]"
    e(f"v_mfma_f32_16x16x32_bf16 v[16:19], {v(64+4*j,4)}, {v(192+4*j,4)}, {c}")
nop(7)
SCL = 128 ** -0.5 * LOG2E
for r in range(4): e(f"v_mul_f32 {v(16+r)}, {fhex(SCL)}, {v(16+r)}")
e("v_max_f32 v20, v16, v17")
e("v_max3_f32 v20, v20, v18, v19")
e("v_mov_b32 v21, v20")
nop(1)
e("v_permlane16_swap_b32 v21, v20")
e("v_max_f32 v20, v20, v21")
e("v_mov_b32 v21, v20")
nop(1)
e("v_permlane32_swap_b32 v21, v20")
e("v_max_f32 v20, v20, v21")
set_exec(0xffff, 0)
e("ds_write_b32 v58, v20")
full_exec()
e("s_waitcnt lgkmcnt(0)")
stamp(7)
e("s_barrier")
stamp(8)
e("s_lshl_b32 s10, s49, 13")
e("s_lshl_b32 s11, s48, 4")
e("s_add_u32 s10, s10, s11")
e(f"s_add_u32 s10, s10, {PS3:#x}")
presignal(10, 9, 16)
e("ds_read_b128 v[24:27], v54")
e("ds_read_b128 v[28:31], v54 offset:16")
e("s_waitcnt lgkmcnt(0)")
e("v_max3_f32 v20, v24, v25, v26")
e("v_max3_f32 v20, v20, v27, v28")
e("v_max3_f32 v20, v20, v29, v30")
e("v_max_f32 v20, v20, v31")
for r in range(4):
    e(f"v_sub_f32 {v(16+r)}, {v(16+r)}, v20")
for r in range(4):
    e(f"v_exp_f32 {v(16+r)}, {v(16+r)}")
nop(0)
e("v_cvt_pk_bf16_f32 v22, v16, v17")
e("v_cvt_pk_bf16_f32 v23, v18, v19")
e("ds_write_b64 v55, v[22:23]")
e("v_add_f32 v16, v16, v17")
e("v_add_f32 v18, v18, v19")
e("v_add_f32 v16, v16, v18")
e("v_mov_b32 v21, v16")
nop(1)
e("v_permlane16_swap_b32 v21, v16")
e("v_add_f32 v16, v16, v21")
e("v_mov_b32 v21, v16")
nop(1)
e("v_permlane32_swap_b32 v21, v16")
e("v_add_f32 v16, v16, v21")
set_exec(0xffff, 0)
e("ds_write_b32 v58, v16 offset:512")
full_exec()
e("s_waitcnt lgkmcnt(0)")
stamp(9)
e("s_barrier")
stamp(10)
for j in range(4):
    e(f"ds_read_b128 {v(192+4*j,4)}, v56 offset:{64*j}")
e("ds_read_b128 v[40:43], v54 offset:512")
e("ds_read_b128 v[44:47], v54 offset:528")
for j in range(4):
    e(f"s_waitcnt lgkmcnt({5-j})")
    for jj in range(4):
        c = "0" if j == 0 else v(24 + 4 * jj, 4)
        e(f"v_mfma_f32_16x16x32_bf16 {v(24+4*jj,4)}, {v(192+4*j,4)}, {v(128+(j*4+jj)*4,4)}, {c}")
e(f"v_mov_b32 v22, {T0}")
e(f"v_mov_b32 v23, {T1}")
e("s_waitcnt lgkmcnt(0)")
e("v_add_f32 v40, v40, v41"); e("v_add_f32 v42, v42, v43"); e("v_add_f32 v44, v44, v45"); e("v_add_f32 v46, v46, v47")
e("v_add_f32 v40, v40, v42"); e("v_add_f32 v44, v44, v46"); e("v_add_f32 v21, v40, v44")
nop(3)
pub_exec()
for r in range(4):
    d = 208 + 4 * r
    e(f"v_cvt_pk_bf16_f32 {v(d)}, {v(24+r)}, {v(28+r)}")
    e(f"v_cvt_pk_bf16_f32 {v(d+1)}, {v(32+r)}, {v(36+r)}")
    e(f"v_mov_b32 {v(d+2)}, {T0}")
    e(f"v_mov_b32 {v(d+3)}, {T1}")
    e(f"global_store_dwordx4 v50, {v(d,4)}, s[{54+2*r}:{55+2*r}] sc1")
sk = uid("c")
e("s_cmp_lg_u32 s3, 0")
e(f"s_cbranch_scc1 {sk}")
pub_exec(0xffff, 0)
e(f"global_store_dwordx4 v51, v[20:23], {sp(WS)} sc1")
lab(sk)
full_exec()
stamp(2)
e("s_branch L_end")


OB, CB = 133120, 134144
lab("L_roleA")
e("s_lshl_b32 s51, s48, 16")
e(f"s_add_u32 s51, s51, {HB3:#x}")
sweep8_addr(52, 51)
e("v_and_b32 v3, 31, v1")
e("s_lshl_b32 s10, s48, 9")
e(f"s_add_u32 s10, s10, {HB3ML:#x}")
e("v_lshl_add_u32 v54, v3, 4, s10")
e("v_lshrrev_b32 v55, 4, v1")
e("v_lshlrev_b32 v55, 5, v55")
col_of_lane(56, 3)
e("v_lshlrev_b32 v56, 1, v56")
e(f"v_add_u32 v56, {OB}, v56")
e("v_lshrrev_b32 v3, 4, v1")
e("v_lshlrev_b32 v57, 4, v3")
e(f"v_add_u32 v57, {OB}, v57")
e("v_and_b32 v3, 15, v1")
e("s_lshl_b32 s10, s3, 5")
e(f"s_add_u32 s10, s10, {CB}")
e("v_lshl_add_u32 v58, v3, 1, s10")
e("s_lshl_b32 s10, s48, 11")
e("s_lshl_b32 s11, s49, 10")
e("s_add_u32 s10, s10, s11")
e(f"s_add_u32 s10, s10, {HB4A:#x}")
e("v_lshl_add_u32 v59, v1, 4, s10")
e("s_lshl_b32 s10, s3, 6")
e(f"s_add_u32 s10, s10, {CB+256}")
e("v_lshl_add_u32 v60, v3, 2, s10")
e("v_lshrrev_b32 v61, 4, v1")
e("v_lshlrev_b32 v61, 7, v61")
e("v_lshl_add_u32 v61, v3, 2, v61")
e(f"v_add_u32 v61, {CB+256}, v61")
e("s_waitcnt vmcnt(0)")
get_tags()
e("s_lshl_b32 s10, s48, 7")
e("s_lshl_b32 s11, s49, 6")
e("s_add_u32 s10, s10, s11")
e(f"s_add_u32 s10, s10, {PSA:#x}")
wave0_hint_barrier(10, 16)
e("v_lshrrev_b32 v2, 4, v1")
e("v_lshlrev_b32 v2, 13, v2")
e("v_and_b32 v3, 15, v1")
e("v_lshl_add_u32 v2, v3, 4, v2")
e("s_lshl_b32 s10, s3, 19")
e("s_lshl_b32 s11, s48, 8")
e("s_add_u32 s10, s10, s11")
e("v_add_u32 v2, s10, v2")
e(f"s_mul_i32 s11, s3, {16*1040}")
e(f"s_mov_b32 s12, s{WUV}")
e(f"s_mov_b32 s13, s{WUV+1}")
for i in range(16):
    e("s_mov_b32 m0, s11")
    nop(0)
    e("global_load_lds_dwordx4 v2, s[12:13] nt")
    if i < 15:
        e("s_add_u32 s12, s12, 32768")
        e("s_addc_u32 s13, s13, 0")
        e("s_add_u32 s11, s11, 1040")
e("v_lshrrev_b32 v2, 4, v1")
e("s_movk_i32 s10, 2080")
e("v_mul_lo_u32 v2, v2, s10")
e("v_bfe_u32 v3, v1, 2, 2")
e("v_lshl_add_u32 v2, v3, 8, v2")
e("v_and_b32 v3, 3, v1")
e("v_lshl_add_u32 v2, v3, 3, v2")
e("s_lshl_b32 s10, s3, 5")
e("v_add_u32 v2, s10, v2")
e(f"v_add_u32 v3, {8*8320}, v2")
e("s_waitcnt vmcnt(0)")
e("s_barrier")
tr_frags(64, [2, 3], 16, 1, 8320, 0, 1040, jsplit=8)
e("s_waitcnt lgkmcnt(0)")
e("s_barrier")
e("v_lshrrev_b32 v2, 5, v1")
e("v_lshlrev_b32 v2, 10, v2")
e("v_and_b32 v3, 31, v1")
e("v_lshl_add_u32 v2, v3, 4, v2")
e("s_lshl_b32 s10, s48, 17")
e("s_lshl_b32 s11, s3, 14")
e("s_add_u32 s10, s10, s11")
e("s_lshl_b32 s11, s49, 9")
e("s_add_u32 s10, s10, s11")
e(f"s_add_u32 s12, s{WO}, s10")
e(f"s_addc_u32 s13, s{WO+1}, 0")
e(f"s_mul_i32 s11, s3, {8*1040}")
for i in range(8):
    e("s_mov_b32 m0, s11")
    nop(0)
    e("global_load_lds_dwordx4 v2, s[12:13] nt")
    if i < 7:
        e("s_add_u32 s12, s12, 2048")
        e("s_addc_u32 s13, s13, 0")
        e("s_add_u32 s11, s11, 1040")
e("v_lshrrev_b32 v2, 4, v1")
e("v_lshlrev_b32 v2, 2, v2")
e("v_bfe_u32 v3, v1, 3, 1")
e("v_add_u32 v2, v2, v3")
e("s_movk_i32 s10, 1040")
e("v_mul_lo_u32 v2, v2, s10")
e("v_bfe_u32 v3, v1, 2, 1")
e("v_lshl_add_u32 v2, v3, 9, v2")
e("v_and_b32 v3, 3, v1")
e("v_lshl_add_u32 v2, v3, 3, v2")
e("s_lshl_b32 s11, s3, 6")
e("v_add_u32 v2, s11, v2")
e("s_waitcnt vmcnt(0)")
e("s_barrier")
tr_frags(128, [2], 4, 2, 16 * 1040, 32, 2 * 1040)
e("s_waitcnt lgkmcnt(0)")
stamp(4)
def _a():
    e("s_lshl_b32 s10, s48, 9")
    e(f"s_add_u32 s10, s10, {PS3:#x}")
    e("v_lshl_add_u32 v20, v1, 4, s10")
wave0_multi_barrier(_a, 0xffffffff, 0, 16)
stamp(1)
stamp_s9(16)
sweep_pending(sweep8_list(52) + [(f"global_load_dwordx4 v[192:195], v54, {sp(WS)} sc1", 192)], 196)
stamp(3)
stamp_s9(17)
e("v_mov_b32 v196, v192")
wave_red("v_max_f32", 196, 197, half=True)
e("v_sub_f32 v192, v192, v196")
e("v_exp_f32 v192, v192")
nop(0)
e("v_mul_f32 v196, v192, v193")
wave_red("v_add_f32", 196, 197, half=True)
e("v_rcp_f32 v196, v196")
nop(0)
e("v_mul_f32 v192, v192, v196")
for i in range(8):
    e(f"ds_bpermute_b32 {v(200+i)}, v55, v192 offset:{4*i}")
for i in range(8):
    u = 16 + 4 * i
    e(f"s_waitcnt lgkmcnt({7-i})")
    for (src, a) in ((u, 208), (u + 1, 210)):
        e(f"v_lshlrev_b32 v196, 16, {v(src)}")
        e(f"v_and_b32 v197, 0xffff0000, {v(src)}")
        if i == 0:
            e(f"v_mul_f32 {v(a)}, {v(200+i)}, v196")
            e(f"v_mul_f32 {v(a+1)}, {v(200+i)}, v197")
        else:
            e(f"v_fmac_f32 {v(a)}, {v(200+i)}, v196")
            e(f"v_fmac_f32 {v(a+1)}, {v(200+i)}, v197")
red4_sg(208)
e("v_cvt_pk_bf16_f32 v208, v208, v208")
e("ds_write_b16 v56, v208")
e("s_waitcnt lgkmcnt(0)")
stamp(5)
e("s_barrier")
stamp(6)
e("s_lshl_b32 s10, s48, 5")
e("s_lshl_b32 s11, s49, 4")
e("s_add_u32 s10, s10, s11")
e(f"s_add_u32 s10, s10, {PS4:#x}")
presignal(10, 10, 59)
for j in range(16):
    e(f"ds_read_b128 {v(192+4*j,4)}, v57 offset:{64*j}")
for j in range(16):
    e(f"s_waitcnt lgkmcnt({15-j})")
    c = "0" if j == 0 else "v[16:19]"
    e(f"v_mfma_f32_16x16x32_bf16 v[16:19], {v(192+4*j,4)}, {v(64+4*j,4)}, {c}")
nop(7)
e("v_cvt_pk_bf16_f32 v16, v16, v16")
set_exec(0xffff, 0)
e("ds_write_b16 v58, v16")
full_exec()
e("s_waitcnt lgkmcnt(0)")
e("s_barrier")
stamp(7)
for j in range(4):
    e(f"ds_read_b128 {v(192+4*j,4)}, v57 offset:{1024+64*j}")
for j in range(4):
    e(f"s_waitcnt lgkmcnt({3-j})")
    for t in range(2):
        c = "0" if j == 0 else v(24 + 4 * t, 4)
        e(f"v_mfma_f32_16x16x32_bf16 {v(24+4*t,4)}, {v(192+4*j,4)}, {v(128+(j*2+t)*4,4)}, {c}")
nop(7)
e("v_cvt_pk_bf16_f32 v24, v24, v28")
set_exec(0xffff, 0)
e("ds_write_b32 v60, v24")
full_exec()
e("s_waitcnt lgkmcnt(0)")
e("s_barrier")
sk = uid("a")
e("s_cmp_lg_u32 s3, 0")
e(f"s_cbranch_scc1 {sk}")
e("ds_read_b32 v16, v61")
e("ds_read_b32 v17, v61 offset:64")
e(f"v_mov_b32 v18, {T0}")
e(f"v_mov_b32 v19, {T1}")
e("s_waitcnt lgkmcnt(0)")
e(f"global_store_dwordx4 v59, v[16:19], {sp(WS)} sc1")
lab(sk)
stamp(2)

lab("L_end")
e("s_endpgm")
L.append('.section .rodata,"a"')
L.append(".p2align 6")
L.append(f".amdhsa_kernel {NAME}_kernel")
L.append("  .amdhsa_next_free_vgpr 256")
L.append("  .amdhsa_next_free_sgpr 102")
L.append("  .amdhsa_accum_offset 256")
L.append("  .amdhsa_group_segment_fixed_size 0")
L.append("  .amdhsa_kernarg_size 128")
L.append("  .amdhsa_user_sgpr_count 2")
L.append("  .amdhsa_user_sgpr_kernarg_segment_ptr 1")
L.append("  .amdhsa_system_sgpr_workgroup_id_x 1")
L.append(".end_amdhsa_kernel")
open(OUTF, "w").write("\n".join(L) + "\n")
print("wrote", OUTF, len(L), "lines")
```

```python
import sys, struct

DEBUG = "--debug" in sys.argv
NODRY = "--nodry" in sys.argv
DIAG = "--diag" in sys.argv
OUTF = [a for a in sys.argv[1:] if not a.startswith("--")]
NAME = "adaLN_cond__compressed_kv_cla__mixer_channel_mlp__decode"
OUTF = OUTF[0] if OUTF else f"cdna_kernels/{NAME}.s"

HB1C = 0x8000
HBQ = 0x4000
PS3 = 0x308000
PSQ = 0x310000
PS4 = 0x320000
PSA = 0x330000
PS1 = 0x340000
HBQL = 0x350000
HB1, HB2, HB3, HB3ML, HB4A, HB4B, HB6, EPOCH = 0x0, 0x10000, 0x100000, 0x300000, 0x400000, 0x480000, 0x500000, 0x600000
TS = 0x2000000
X, CKV, WQ, WUK, WUV, WO, BX, W1, B1, W2, B2, C, WMOD, OUT, DBG, WS = [16 + 2 * i for i in range(16)]
def sp(b): return f"s[{b}:{b+1}]"
LDS_BYTES = 155136
SPIN = 400000
LOG2E = 1.4426950408889634
T0, T1 = "s8", "s93"
PM = "s[96:97]"

L = []
def e(s): L.append("    " + s)
def lab(s): L.append(s + ":")
_uid = [0]
def uid(p="L"):
    _uid[0] += 1
    return f"{p}_{_uid[0]}"
def v(a, n=1): return f"v{a}" if n == 1 else f"v[{a}:{a+n-1}]"
def nop(n): e(f"s_nop {n}")
def fhex(x): return "0x%08x" % struct.unpack("<I", struct.pack("<f", x))[0]

def stamp(k):
    if not DEBUG: return
    sk = uid("st")
    e("s_cmp_lg_u32 s3, 0")
    e(f"s_cbranch_scc1 {sk}")
    e("s_memrealtime s[90:91]")
    e("s_waitcnt lgkmcnt(0)")
    e("v_mov_b32 v255, s90")
    e("v_mov_b32 v254, s92")
    e(f"global_store_dword v254, v255, {sp(WS)} offset:{4*k}")
    lab(sk)

def diag(k, neg=False):
    if not DIAG: return
    sk = uid("dg")
    e("s_cmp_lg_u32 s3, 0")
    e(f"s_cbranch_scc1 {sk}")
    e("s_memrealtime s[90:91]")
    e("s_waitcnt lgkmcnt(0)")
    if neg: e("s_not_b32 s90, s90")
    e("v_mov_b32 v255, s90")
    e(f"v_mov_b32 v254, {4*k}")
    e("s_mov_b64 s[94:95], exec")
    set_exec(1, 0)
    e(f"global_atomic_umax v254, v255, {sp(DBG)}")
    e("s_mov_b64 exec, s[94:95]")
    lab(sk)

def stamp_w(k):
    if not DEBUG: return
    e("s_memrealtime s[90:91]")
    e("s_lshl_b32 s94, s3, 2")
    e("s_add_u32 s94, s94, s92")
    e("s_waitcnt lgkmcnt(0)")
    e("v_mov_b32 v255, s90")
    e("v_mov_b32 v254, s94")
    e(f"global_store_dword v254, v255, {sp(WS)} offset:{4*k}")

def stamp_s9(k):
    if not DEBUG: return
    sk = uid("st")
    e("s_cmp_lg_u32 s3, 0")
    e(f"s_cbranch_scc1 {sk}")
    e("v_mov_b32 v255, s9")
    e("v_mov_b32 v254, s92")
    e(f"global_store_dword v254, v255, {sp(WS)} offset:{4*k}")
    lab(sk)

def set_exec(lo, hi):
    e(f"s_mov_b32 exec_lo, {lo:#x}")
    e(f"s_mov_b32 exec_hi, {hi:#x}")
def full_exec(): e("s_mov_b64 exec, -1")
def pub_exec(lo=None, hi=None):
    if lo is None:
        e(f"s_mov_b64 exec, {PM}")
    else:
        set_exec(lo, hi)
        e(f"s_and_b64 exec, exec, {PM}")

def spin_bound():
    e("s_add_u32 s9, s9, 1")
    e(f"s_cmp_gt_u32 s9, {SPIN}")
    e("s_cbranch_scc1 L_end")

def tagcheck(units, t, retry):
    us = list(units)
    if len(us) % 2: us.append(us[-1])
    first = True
    for a, b in zip(us[0::2], us[1::2]):
        for k in (0, 1):
            if first:
                e(f"v_min_u32 {v(t+2*k)}, {v(a+2+k)}, {v(b+2+k)}")
                e(f"v_max_u32 {v(t+2*k+1)}, {v(a+2+k)}, {v(b+2+k)}")
            else:
                e(f"v_min3_u32 {v(t+2*k)}, {v(t+2*k)}, {v(a+2+k)}, {v(b+2+k)}")
                e(f"v_max3_u32 {v(t+2*k+1)}, {v(t+2*k+1)}, {v(a+2+k)}, {v(b+2+k)}")
        first = False
    e(f"v_xor_b32 {v(t)}, {T0}, {v(t)}")
    e(f"v_xor_b32 {v(t+1)}, {T0}, {v(t+1)}")
    e(f"v_xor_b32 {v(t+2)}, {T1}, {v(t+2)}")
    e(f"v_xor_b32 {v(t+3)}, {T1}, {v(t+3)}")
    e(f"v_or3_b32 {v(t)}, {v(t)}, {v(t+1)}, {v(t+2)}")
    e(f"v_or_b32 {v(t)}, {v(t)}, {v(t+3)}")
    e(f"v_cmp_ne_u32 vcc, 0, {v(t)}")
    ok = uid("ok")
    e(f"s_cbranch_vccz {ok}")
    spin_bound()
    e(f"s_branch {retry}")
    lab(ok)

def hint_wait(saddr_expr_sgpr, u, sleep=4):
    lp, dn = uid("hw"), uid("hd")
    e(f"v_mov_b32 {v(u+4)}, s{saddr_expr_sgpr}")
    set_exec(1, 0)
    lab(lp)
    e(f"global_load_dwordx4 {v(u,4)}, {v(u+4)}, {sp(WS)} sc1")
    e("s_waitcnt vmcnt(0)")
    e(f"v_xor_b32 {v(u)}, {T0}, {v(u+2)}")
    e(f"v_xor_b32 {v(u+1)}, {T1}, {v(u+3)}")
    e(f"v_or_b32 {v(u)}, {v(u)}, {v(u+1)}")
    e(f"v_cmp_ne_u32 vcc, 0, {v(u)}")
    e(f"s_cbranch_vccz {dn}")
    spin_bound()
    e(f"s_sleep {sleep}")
    e(f"s_branch {lp}")
    lab(dn)
    full_exec()

def hint_multi(addr_v, lo, hi, u, sleep=1, base=224):
    lp, dn = uid("hw"), uid("hd")
    set_exec(lo, hi)
    for k in range(3):
        e(f"global_load_dwordx4 {v(base+4*k,4)}, {v(addr_v)}, {sp(WS)} sc1")
        e(f"s_sleep {sleep+1}")
    lab(lp)
    for k in range(4):
        e(f"global_load_dwordx4 {v(base+4*((k+3)%4),4)}, {v(addr_v)}, {sp(WS)} sc1")
        e("s_waitcnt vmcnt(3)")
        e(f"v_xor_b32 {v(u)}, {T0}, {v(base+4*k+2)}")
        e(f"v_xor_b32 {v(u+1)}, {T1}, {v(base+4*k+3)}")
        e(f"v_or_b32 {v(u)}, {v(u)}, {v(u+1)}")
        e(f"v_cmp_ne_u32 vcc, 0, {v(u)}")
        e(f"s_cbranch_vccz {dn}")
        e(f"s_sleep {sleep}")
    spin_bound()
    e(f"s_branch {lp}")
    lab(dn)
    full_exec()

def wave0_hint2_barrier(sreg, addr_code, lo, hi, u):
    sk = uid("h")
    e("s_cmp_lg_u32 s3, 0")
    e(f"s_cbranch_scc1 {sk}")
    hint_wait(sreg, u)
    addr_code()
    hint_multi(u + 4, lo, hi, u)
    lab(sk)
    e("s_barrier")

def presignal(sreg, shift=0, nl=1, guard=True):
    sk = uid("ps")
    if guard:
        e("s_cmp_lg_u32 s3, 0")
        e(f"s_cbranch_scc1 {sk}")
    e(f"v_mov_b32 v246, {T0}")
    e(f"v_mov_b32 v247, {T1}")
    e(f"v_lshl_add_u32 v248, v1, {shift}, s{sreg}")
    m = (1 << nl) - 1
    set_exec(m & 0xffffffff, m >> 32)
    e(f"global_store_dwordx4 v248, v[244:247], {sp(WS)} sc1")
    full_exec()
    lab(sk)

def wave0_multi_barrier(addr_code, lo, hi, u):
    sk = uid("h")
    e("s_cmp_lg_u32 s3, 0")
    e(f"s_cbranch_scc1 {sk}")
    addr_code()
    hint_multi(u + 4, lo, hi, u)
    lab(sk)
    e("s_barrier")

def wave0_hint_barrier(sreg, u):
    sk = uid("h")
    e("s_cmp_lg_u32 s3, 0")
    e(f"s_cbranch_scc1 {sk}")
    hint_wait(sreg, u)
    lab(sk)
    e("s_barrier")

def dpp(op, d, s0, s1, ctrl):
    e(f"{op}_dpp {v(d)}, {v(s0)}, {v(s1)} {ctrl} row_mask:0xf bank_mask:0xf")

def wave_red(op, a, t, half=False):
    for r in (8, 4, 2, 1):
        nop(1)
        dpp(op, a, a, a, f"row_ror:{r}")
    e(f"v_mov_b32 {v(t)}, {v(a)}")
    nop(1)
    e(f"v_permlane16_swap_b32 {v(t)}, {v(a)}")
    e(f"{op} {v(a)}, {v(a)}, {v(t)}")
    if not half:
        e(f"v_mov_b32 {v(t)}, {v(a)}")
        nop(1)
        e(f"v_permlane32_swap_b32 {v(t)}, {v(a)}")
        e(f"{op} {v(a)}, {v(a)}, {v(t)}")

def red8_to2(acc):
    for k in range(4):
        e(f"v_permlane32_swap_b32 {v(acc+2*k)}, {v(acc+2*k+1)}")
    for k in range(4):
        e(f"v_add_f32 {v(acc+2*k)}, {v(acc+2*k)}, {v(acc+2*k+1)}")
    nop(1)
    e(f"v_permlane16_swap_b32 {v(acc+0)}, {v(acc+2)}")
    e(f"v_permlane16_swap_b32 {v(acc+4)}, {v(acc+6)}")
    e(f"v_add_f32 {v(acc+0)}, {v(acc+0)}, {v(acc+2)}")
    e(f"v_add_f32 {v(acc+4)}, {v(acc+4)}, {v(acc+6)}")

def bitswap_rho(dst, t):
    e(f"v_lshrrev_b32 {v(dst)}, 5, v1")
    e(f"v_lshrrev_b32 {v(t)}, 3, v1")
    e(f"v_and_b32 {v(t)}, 2, {v(t)}")
    e(f"v_or_b32 {v(dst)}, {v(dst)}, {v(t)}")

def gemv_row8(W, nrows, vf, acc, lo, hi):
    for i in range(nrows):
        e(f"v_cvt_pk_bf16_f32 {v(lo+i)}, {v(vf+i)}, 0")
        e(f"v_cvt_pk_bf16_f32 {v(hi+i)}, 0, {v(vf+i)}")
    for i in range(nrows):
        for k in range(4):
            c0 = "0" if i == 0 else v(acc + 2 * k)
            c1 = "0" if i == 0 else v(acc + 2 * k + 1)
            e(f"v_dot2_f32_bf16 {v(acc+2*k)}, {v(W+4*i+k)}, {v(lo+i)}, {c0}")
            e(f"v_dot2_f32_bf16 {v(acc+2*k+1)}, {v(W+4*i+k)}, {v(hi+i)}, {c1}")
    nop(2)

def sadd64(dst, src, imm):
    e(f"s_add_u32 s{dst}, s{src}, {imm}")
    e(f"s_addc_u32 s{dst+1}, s{src+1}, 0")

def unpack2(src, d):
    e(f"v_lshlrev_b32 {v(d)}, 16, {v(src)}")
    e(f"v_and_b32 {v(d+1)}, 0xffff0000, {v(src)}")

def gemv64(W, ldsV, ldsRW, nparts=1, pstride=0):
    e(f"ds_read_b128 v[16:19], v2 offset:{ldsV}")
    e(f"ds_read_b128 v[20:23], v2 offset:{ldsV+16}")
    for p in range(1, nparts):
        e(f"ds_read_b128 {v(24+8*(p-1),4)}, v2 offset:{ldsV+p*pstride}")
        e(f"ds_read_b128 {v(28+8*(p-1),4)}, v2 offset:{ldsV+p*pstride+16}")
    e("s_waitcnt lgkmcnt(0)")
    for p in range(1, nparts):
        for i in range(8):
            e(f"v_add_f32 {v(16+i)}, {v(16+i)}, {v(24+8*(p-1)+i)}")
    gemv_row8(W, 8, 16, 40, 24, 32)
    red8_to2(40)
    nop(0)
    dpp("v_add_f32", 40, 40, 40, "row_ror:8")
    dpp("v_add_f32", 44, 44, 44, "row_ror:8")
    set_exec(0x00ff00ff, 0x00ff00ff)
    e(f"ds_write_b32 v48, v40 offset:{ldsRW}")
    e(f"ds_write_b32 v48, v44 offset:{ldsRW+16}")
    full_exec()
def gemv64_setup():
    e("v_lshrrev_b32 v2, 3, v1")
    e("v_lshlrev_b32 v2, 5, v2")
    e("s_lshl_b32 s10, s3, 8")
    e("v_add_u32 v2, s10, v2")
    bitswap_rho(48, 3)
    e("v_and_b32 v3, 7, v1")
    e("v_lshl_add_u32 v48, v3, 3, v48")
    e("v_lshl_add_u32 v48, v48, 2, s10")
def sum64(ldsRW, dst):
    e("v_lshlrev_b32 v3, 2, v1")
    for w in range(8):
        e(f"ds_read_b32 {v(16+w)}, v3 offset:{ldsRW+256*w}")
    e("s_waitcnt lgkmcnt(0)")
    e("v_add_f32 v16, v16, v17"); e("v_add_f32 v18, v18, v19"); e("v_add_f32 v20, v20, v21"); e("v_add_f32 v22, v22, v23")
    e("v_add_f32 v16, v16, v18"); e("v_add_f32 v20, v20, v22")
    e(f"v_add_f32 {v(dst)}, v16, v20")
def load_seg64(ptr, dst, stride):
    for i in range(8):
        sadd64(12, ptr, i * stride)
        e(f"global_load_dwordx4 {v(dst+4*i,4)}, v10, s[12:13] nt")
def seg64_off():
    e("v_lshrrev_b32 v10, 3, v1")
    e("v_lshlrev_b32 v10, 16, v10")
    e("s_lshl_b32 s10, s3, 19")
    e("s_lshl_b32 s11, s48, 8")
    e("s_add_u32 s10, s10, s11")
    e("s_lshl_b32 s11, s49, 7")
    e("s_add_u32 s10, s10, s11")
    e("v_add_u32 v10, s10, v10")
    e("v_and_b32 v3, 7, v1")
    e("v_lshl_add_u32 v10, v3, 4, v10")
def out512_write(ldsO):
    e("v_lshlrev_b32 v3, 5, v1")
    e("s_lshl_b32 s10, s3, 11")
    e("v_add_u32 v3, s10, v3")
    e(f"ds_write_b128 v3, v[40:43] offset:{ldsO}")
    e(f"ds_write_b128 v3, v[44:47] offset:{ldsO+16}")
def publish512(ldsO, sbase):
    sk = uid("p")
    e("s_cmp_ge_u32 s3, 4")
    e(f"s_cbranch_scc1 {sk}")
    e("v_lshlrev_b32 v3, 3, v0")
    for w in range(8):
        e(f"ds_read_b64 {v(16+2*w,2)}, v3 offset:{ldsO+2048*w}")
    e(f"v_mov_b32 v42, {T0}")
    e(f"v_mov_b32 v43, {T1}")
    e("v_lshlrev_b32 v3, 4, v0")
    e(f"v_add_u32 v3, s{sbase}, v3")
    e("s_waitcnt lgkmcnt(0)")
    for o in (0, 1):
        e(f"v_add_f32 {v(16+o)}, {v(16+o)}, {v(18+o)}"); e(f"v_add_f32 {v(20+o)}, {v(20+o)}, {v(22+o)}")
        e(f"v_add_f32 {v(24+o)}, {v(24+o)}, {v(26+o)}"); e(f"v_add_f32 {v(28+o)}, {v(28+o)}, {v(30+o)}")
        e(f"v_add_f32 {v(16+o)}, {v(16+o)}, {v(20+o)}"); e(f"v_add_f32 {v(24+o)}, {v(24+o)}, {v(28+o)}")
        e(f"v_add_f32 {v(40+o)}, {v(16+o)}, {v(24+o)}")
    pub_exec()
    e(f"global_store_dwordx4 v3, v[40:43], {sp(WS)} sc1")
    full_exec()
    lab(sk)

def get_tags():
    e("v_readfirstlane_b32 s8, v253")
    nop(3)
    e("s_add_u32 s8, s8, 1")
    e("s_xor_b32 s93, s8, 0x5bd1e995")

def dry_begin(name):
    if NODRY:
        return
    e(f"s_mov_b64 {PM}, 0")
    e(f"s_branch {name}_crit")
    lab(f"{name}_ret")
    e(f"s_mov_b64 {PM}, -1")
def dry_end(name):
    if NODRY:
        return
    e(f"s_cmp_eq_u64 {PM}, 0")
    e(f"s_cbranch_scc1 {name}_ret")


def masks_setup(m):
    e("v_and_b32 v3, 1, v1")
    e("v_lshlrev_b32 v3, 4, v3")
    e(f"v_mov_b32 {v(m+3)}, 0xffff")
    e(f"v_lshlrev_b32 {v(m+3)}, v3, {v(m+3)}")
    e("v_bfe_u32 v3, v1, 1, 2")
    for r in range(3):
        e(f"v_cmp_eq_u32 vcc, {r}, v3")
        nop(1)
        e(f"v_cndmask_b32 {v(m+r)}, 0, {v(m+3)}, vcc")
    e("v_cmp_eq_u32 vcc, 3, v3")
    nop(1)
    e(f"v_cndmask_b32 {v(m+3)}, 0, {v(m+3)}, vcc")

def gemv64m_setup(m):
    e("v_lshrrev_b32 v2, 3, v1")
    e("v_lshlrev_b32 v2, 5, v2")
    e("s_lshl_b32 s10, s3, 8")
    e("v_add_u32 v2, s10, v2")
    e("v_and_b32 v48, 7, v1")
    e("v_lshlrev_b32 v48, 5, v48")
    e("v_and_b32 v3, 16, v1")
    e("v_add3_u32 v48, v48, v3, s10")
    masks_setup(m)

def gemv64m(W, ldsV, ldsRW, m, nl=8, va=2):
    if nl == 8:
        e(f"ds_read_b128 v[16:19], {v(va)} offset:{ldsV}")
        e(f"ds_read_b128 v[20:23], {v(va)} offset:{ldsV+16}")
    else:
        e(f"ds_read_b64 v[16:17], {v(va)} offset:{ldsV}")
    e("s_waitcnt lgkmcnt(0)")
    for i in range(nl):
        e(f"v_cvt_pk_bf16_f32 {v(16+i)}, {v(16+i)}, {v(16+i)}")
    for i in range(nl):
        a = 24 + 4 * (i % 3)
        for r in range(4):
            e(f"v_and_b32 {v(a+r)}, {v(16+i)}, {v(m+r)}")
        if i > 0:
            pa = 24 + 4 * ((i - 1) % 3)
            c = "0" if i == 1 else "v[40:43]"
            e(f"v_mfma_f32_16x16x32_bf16 v[40:43], {v(pa,4)}, {v(W+4*(i-1),4)}, {c}")
    nop(1)
    e(f"v_mfma_f32_16x16x32_bf16 v[40:43], {v(24+4*((nl-1)%3),4)}, {v(W+4*(nl-1),4)}, v[40:43]")
    nop(7)
    for r in range(4):
        e(f"v_mov_b32 {v(44+r)}, {v(40+r)}")
    nop(0)
    for r in range(4):
        e(f"v_permlane32_swap_b32 {v(40+r)}, {v(44+r)}")
    nop(0)
    for r in range(4):
        dpp("v_add_f32", 40 + r, 44 + r, 40 + r, "row_ror:8")
    set_exec(0x00ff00ff, 0)
    e(f"ds_write_b128 v48, v[40:43] offset:{ldsRW}")
    full_exec()

def tr_frags(dst, bases, njs, ntiles, jstep, tstep, half_off, jsplit=None):
    for j in range(njs):
        for t in range(ntiles):
            if jsplit is None: b, jj = bases[0], j
            else: b, jj = bases[j // jsplit], j % jsplit
            off = jj * jstep + t * tstep
            d = dst + (j * ntiles + t) * 4
            e(f"ds_read_b64_tr_b16 {v(d,2)}, {v(b)} offset:{off}")
            e(f"ds_read_b64_tr_b16 {v(d+2,2)}, {v(b)} offset:{off+half_off}")

def red4_sg(a):
    nop(1)
    e(f"v_permlane32_swap_b32 {v(a)}, {v(a+1)}")
    e(f"v_permlane32_swap_b32 {v(a+2)}, {v(a+3)}")
    e(f"v_add_f32 {v(a)}, {v(a)}, {v(a+1)}")
    e(f"v_add_f32 {v(a+2)}, {v(a+2)}, {v(a+3)}")
    nop(1)
    e(f"v_permlane16_swap_b32 {v(a)}, {v(a+2)}")
    e(f"v_add_f32 {v(a)}, {v(a)}, {v(a+2)}")

def col_of_lane(dst, t):
    bitswap_rho(dst, t)
    e(f"v_lshlrev_b32 {v(dst)}, 4, {v(dst)}")
    e(f"v_and_b32 {v(t)}, 15, v1")
    e("s_lshl_b32 s10, s3, 6")
    e(f"v_add3_u32 {v(dst)}, {v(dst)}, {v(t)}, s10")

def pub_tiles(D, addr):
    e(f"v_cvt_pk_bf16_f32 v16, {v(D)}, {v(D+4)}")
    e(f"v_cvt_pk_bf16_f32 v17, {v(D+8)}, {v(D+12)}")
    e(f"v_mov_b32 v18, {T0}")
    e(f"v_mov_b32 v19, {T1}")
    pub_exec(0xffff, 0)
    e(f"global_store_dwordx4 {v(addr)}, v[16:19], {sp(WS)} sc1")
    full_exec()

def sweep8_addr(dst, hb_sgpr):
    e(f"v_lshrrev_b32 {v(dst)}, 4, v1")
    e(f"v_lshlrev_b32 {v(dst)}, 14, {v(dst)}")
    e("v_and_b32 v3, 15, v1")
    e(f"v_lshl_add_u32 {v(dst)}, v3, 4, {v(dst)}")
    e("s_lshl_b32 s10, s3, 8")
    e(f"s_add_u32 s10, s10, s{hb_sgpr}")
    e(f"v_add_u32 {v(dst)}, s10, {v(dst)}")
    for k in range(4):
        sadd64(54 + 2 * k, WS, k * 4096)
def sweep_pending(loads, t):
    n = len(loads)
    e(f"s_mov_b32 s53, {(1 << n) - 1:#x}")
    lp, dn = uid("sw"), uid("sd")
    lab(lp)
    for i, (line, u) in enumerate(loads):
        sk = uid("sk")
        e(f"s_bitcmp1_b32 s53, {i}")
        e(f"s_cbranch_scc0 {sk}")
        e(line)
        lab(sk)
    e("s_waitcnt vmcnt(0)")
    for i, (line, u) in enumerate(loads):
        e(f"v_xor_b32 {v(t)}, {T0}, {v(u+2)}")
        e(f"v_xor_b32 {v(t+1)}, {T1}, {v(u+3)}")
        e(f"v_or_b32 {v(t)}, {v(t)}, {v(t+1)}")
        e(f"v_cmp_ne_u32 vcc, 0, {v(t)}")
        e("s_cmp_eq_u64 vcc, 0")
        e(f"s_cselect_b32 s10, {~(1 << i) & 0xffffffff:#x}, -1")
        e("s_and_b32 s53, s53, s10")
    e("s_cmp_eq_u32 s53, 0")
    e(f"s_cbranch_scc1 {dn}")
    spin_bound()
    e(f"s_branch {lp}")
    lab(dn)
def sweep8_list(addr):
    return [(f"global_load_dwordx4 {v(16+4*i,4)}, {v(addr)}, s[{54+2*(i//2)}:{55+2*(i//2)}] offset:{2048*(i%2)} sc1", 16 + 4 * i) for i in range(8)]
def sweep8_loads(addr):
    for i in range(8):
        e(f"global_load_dwordx4 {v(16+4*i,4)}, {v(addr)}, s[{54+2*(i//2)}:{55+2*(i//2)}] offset:{2048*(i%2)} sc1")

L.append(f"; @launch grid=(256,1,1) block=(512,1,1) lds={LDS_BYTES}")
L.append('.amdgcn_target "amdgcn-amd-amdhsa--gfx950"')
L.append(".text")
L.append(f".globl {NAME}_kernel")
L.append(".p2align 8")
L.append(f".type {NAME}_kernel,@function")
lab(f"{NAME}_kernel")
e("s_cmp_ge_u32 s2, 256")
e("s_cbranch_scc1 L_end")
e("s_load_dwordx16 s[16:31], s[0:1], 0")
e("s_load_dwordx16 s[32:47], s[0:1], 64")
e("v_and_b32 v1, 63, v0")
e("v_lshrrev_b32 v2, 6, v0")
e("s_and_b32 s4, s2, 7")
e("v_readfirstlane_b32 s3, v2")
e("s_lshr_b32 s5, s2, 3")
e("s_and_b32 s6, s5, 3")
e("s_lshr_b32 s7, s5, 2")
e("s_mov_b32 s9, 0")
e("s_mov_b32 s8, 0")
e("s_mov_b32 s93, 0")
e(f"s_mov_b64 {PM}, -1")
if DEBUG:
    e("s_lshl_b32 s92, s2, 8")
    e(f"s_add_u32 s92, s92, {TS:#x}")
e("s_lshr_b32 s48, s7, 1")
e("s_lshl_b32 s10, s4, 2")
e("s_add_u32 s48, s48, s10")
e("s_and_b32 s49, s7, 1")
e(f"v_mov_b32 v252, {EPOCH:#x}")
e("s_waitcnt lgkmcnt(0)")
e(f"global_load_dword v253, v252, {sp(WS)} sc1")
stamp(0)
diag(0, True)
diag(1)
if DEBUG:
    e("s_getreg_b32 s9, hwreg(HW_REG_XCC_ID)")
    stamp_s9(20)
    e("s_mov_b32 s9, 0")
e("s_cmp_eq_u32 s6, 1")
e("s_cbranch_scc1 L_roleB")
e("s_cmp_eq_u32 s6, 2")
e("s_cbranch_scc1 L_roleC")
e("s_cmp_eq_u32 s6, 3")
e("s_cbranch_scc1 L_roleA")


lab("L_roleD")
e("s_lshl_b32 s50, s7, 3")
e("s_add_u32 s50, s50, s4")
e("v_lshlrev_b32 v3, 1, v0")
e(f"global_load_ushort v8, v3, {sp(C)}")
e("s_lshr_b32 s51, s50, 4")
e("s_and_b32 s52, s50, 15")
e("v_lshrrev_b32 v10, 3, v1")
e("v_lshlrev_b32 v10, 1, v10")
e("s_lshl_b32 s10, s3, 4")
e("s_lshl_b32 s11, s51, 7")
e("s_add_u32 s10, s10, s11")
e("v_add_u32 v10, s10, v10")
e("v_lshlrev_b32 v49, 2, v10")
e("s_movk_i32 s10, 6144")
e("v_mul_lo_u32 v10, v10, s10")
e("v_and_b32 v3, 7, v1")
e("v_lshl_add_u32 v10, v3, 4, v10")
e("s_lshl_b32 s10, s52, 7")
e("v_add_u32 v10, s10, v10")
e(f"global_load_dwordx4 v[56:59], v10, {sp(WMOD)} nt")
sadd64(12, WMOD, 6144)
e("global_load_dwordx4 v[60:63], v10, s[12:13] nt")
gemv64m_setup(52)
e("s_waitcnt vmcnt(2)")
get_tags()
e("v_lshlrev_b32 v9, 16, v8")
e(f"v_mul_f32 v3, {fhex(-LOG2E)}, v9")
e("v_exp_f32 v3, v3")
nop(0)
e("v_add_f32 v3, 1.0, v3")
e("v_rcp_f32 v3, v3")
nop(0)
e("v_mul_f32 v9, v9, v3")
e("v_lshlrev_b32 v3, 2, v0")
e("ds_write_b32 v3, v9")
e("s_waitcnt vmcnt(0) lgkmcnt(0)")
e("s_barrier")
gemv64m(56, 0, 2048, 52, nl=2, va=49)
e("s_waitcnt lgkmcnt(0)")
e("s_barrier")
sk = uid("d")
e("s_cmp_lg_u32 s3, 0")
e(f"s_cbranch_scc1 {sk}")
sum64(2048, 24)
nop(1)
e("v_mov_b32_dpp v32, v24 quad_perm:[0,0,2,2] row_mask:0xf bank_mask:0xf")
e("v_mov_b32_dpp v33, v24 quad_perm:[1,1,3,3] row_mask:0xf bank_mask:0xf")
e(f"v_mov_b32 v34, {T0}")
e(f"v_mov_b32 v35, {T1}")
e("s_lshl_b32 s10, s51, 13")
e("s_lshl_b32 s11, s52, 9")
e("s_add_u32 s10, s10, s11")
e(f"s_add_u32 s10, s10, {HB1C:#x}")
e("v_lshl_add_u32 v3, v1, 3, s10")
set_exec(0x55555555, 0x55555555)
e(f"global_store_dwordx4 v3, v[32:35], {sp(WS)} sc1")
full_exec()
e("s_lshl_b32 s10, s50, 6")
e(f"s_add_u32 s10, s10, {PSA:#x}")
presignal(10, 0, 1, guard=False)
lab(sk)
stamp(1)
diag(2)
if DEBUG:
    e("s_waitcnt vmcnt(0)")
    stamp(9)
e("s_cmp_ge_u32 s50, 48")
e("s_cbranch_scc1 L_final")
e("s_cmp_ge_u32 s50, 32")
e("s_cbranch_scc1 L_ph5pre")
e("v_lshrrev_b32 v10, 3, v1")
e("v_lshlrev_b32 v10, 3, v10")
e("s_lshl_b32 s10, s3, 6")
e("v_add_u32 v10, s10, v10")
e("s_movk_i32 s10, 6144")
e("v_mul_lo_u32 v10, v10, s10")
e("v_and_b32 v3, 7, v1")
e("v_lshl_add_u32 v10, v3, 4, v10")
e("s_lshl_b32 s10, s50, 7")
e("s_add_u32 s10, s10, 2048")
e("v_add_u32 v10, s10, v10")
load_seg64(WMOD, 64, 6144)
e("s_waitcnt vmcnt(0)")
e("s_barrier")
gemv64m(64, 0, 2048, 52)
e("s_waitcnt lgkmcnt(0)")
e("s_barrier")
sk = uid("d")
e("s_cmp_lg_u32 s3, 0")
e(f"s_cbranch_scc1 {sk}")
sum64(2048, 24)
nop(1)
for k in range(4):
    e(f"v_mov_b32_dpp {v(28+k)}, v24 quad_perm:[{k},{k},{k},{k}] row_mask:0xf bank_mask:0xf")
e("v_cvt_pk_bf16_f32 v32, v28, v29")
e("v_cvt_pk_bf16_f32 v33, v30, v31")
e(f"v_mov_b32 v34, {T0}")
e(f"v_mov_b32 v35, {T1}")
e("s_lshl_b32 s10, s50, 8")
e("s_add_u32 s10, s10, 4096")
e("v_lshl_add_u32 v3, v1, 2, s10")
set_exec(0x11111111, 0x11111111)
e(f"global_store_dwordx4 v3, v[32:35], {sp(WS)} sc1")
full_exec()
lab(sk)
lab("L_ph5pre")
e("s_cmp_ge_u32 s50, 43")
e("s_cbranch_scc1 L_end")
e("s_barrier")

W1S, W2S, MODL, X1L, YL, HPL, HL = 0, 33280, 66560, 69632, 71680, 79872, 80896
e("v_lshrrev_b32 v2, 2, v1")
e("s_lshl_b32 s10, s3, 6")
e("v_add_u32 v2, s10, v2")
e("s_movk_i32 s10, 2752")
e("v_mul_lo_u32 v2, v2, s10")
e("v_and_b32 v3, 3, v1")
e("v_lshl_add_u32 v2, v3, 4, v2")
e("s_lshl_b32 s10, s50, 6")
e("v_add_u32 v2, s10, v2")
e(f"s_mul_i32 s11, s3, {4*1040}")
e(f"s_add_u32 s11, s11, {W1S}")
for i in range(4):
    sadd64(12, W1, i * 16 * 2752)
    e("s_mov_b32 m0, s11")
    nop(0)
    e("global_load_lds_dwordx4 v2, s[12:13] nt")
    e("s_add_u32 s11, s11, 1040")
e("s_lshl_b32 s10, s50, 5")
e("s_lshl_b32 s11, s3, 2")
e("s_add_u32 s10, s10, s11")
e("s_lshl_b32 s10, s10, 10")
e("v_lshlrev_b32 v2, 4, v1")
e("v_add_u32 v2, s10, v2")
e(f"s_mul_i32 s11, s3, {4*1040}")
e(f"s_add_u32 s11, s11, {W2S}")
for i in range(4):
    sadd64(12, W2, i * 1024)
    e("s_mov_b32 m0, s11")
    nop(0)
    e("global_load_lds_dwordx4 v2, s[12:13] nt")
    e("s_add_u32 s11, s11, 1040")
e("v_and_b32 v3, 31, v1")
e("s_lshl_b32 s10, s50, 6")
e("v_lshl_add_u32 v3, v3, 1, s10")
e(f"global_load_ushort v96, v3, {sp(B1)}")
col_of_lane(97, 3)
e("v_lshlrev_b32 v3, 1, v97")
e(f"global_load_ushort v98, v3, {sp(X)}")
e(f"s_mov_b32 s10, {HB1 + 4096 + 23*256}")
wave0_hint_barrier(10, 16)
skm = uid("d")
e("s_cmp_ge_u32 s3, 6")
e(f"s_cbranch_scc1 {skm}")
e("v_lshlrev_b32 v12, 4, v0")
e(f"v_add_u32 v12, {HB1 + 256*16}, v12")
lp = uid("g")
lab(lp)
e(f"global_load_dwordx4 v[16:19], v12, {sp(WS)} sc1")
e("s_waitcnt vmcnt(0)")
tagcheck([16], 40, lp)
e("v_lshlrev_b32 v3, 3, v0")
e(f"ds_write_b64 v3, v[16:17] offset:{MODL}" if MODL < 65536 else "")
if MODL >= 65536:
    L.pop()
    e(f"v_add_u32 v3, {MODL}, v3")
    e("ds_write_b64 v3, v[16:17]")
lab(skm)
e("s_waitcnt vmcnt(0) lgkmcnt(0)")
e("s_barrier")
e("v_lshrrev_b32 v2, 5, v1")
e("s_lshl_b32 s10, s3, 2")
e("v_add_u32 v2, s10, v2")
e("s_movk_i32 s10, 1040")
e("v_mul_lo_u32 v2, v2, s10")
e("v_bfe_u32 v3, v1, 4, 1")
e("v_lshl_add_u32 v2, v3, 9, v2")
e("v_bfe_u32 v3, v1, 2, 2")
e("v_lshl_add_u32 v2, v3, 6, v2")
e("v_and_b32 v3, 3, v1")
e("v_lshl_add_u32 v2, v3, 3, v2")
tr_frags(64, [2], 2, 2, 2 * 1040, 32, 256)
e("v_lshrrev_b32 v2, 4, v1")
e("v_lshlrev_b32 v2, 3, v2")
e("v_bfe_u32 v3, v1, 2, 2")
e("v_add_u32 v2, v2, v3")
e("v_mul_lo_u32 v2, v2, s10")
e("v_and_b32 v3, 3, v1")
e("v_lshl_add_u32 v2, v3, 3, v2")
e("s_lshl_b32 s11, s3, 7")
e(f"s_add_u32 s11, s11, {W2S}")
e("v_add_u32 v2, s11, v2")
tr_frags(80, [2], 1, 4, 0, 32, 4 * 1040)
e("v_lshlrev_b32 v3, 1, v97")
e(f"v_add_u32 v3, {MODL}, v3")
e("ds_read_u16 v99, v3")
e("v_lshlrev_b32 v3, 4, v1")
e(f"v_add_u32 v3, {MODL}, v3")
e("ds_read_b128 v[16:19], v3 offset:1024")
e("ds_read_b128 v[20:23], v3 offset:2048")
e("s_waitcnt lgkmcnt(0)")
for k in range(4):
    unpack2(16 + k, 100 + 2 * k)
    unpack2(20 + k, 108 + 2 * k)
for d in range(108, 116):
    e(f"v_add_f32 {v(d)}, 1.0, {v(d)}")
for d in (96, 98, 99):
    e(f"v_lshlrev_b32 {v(d)}, 16, {v(d)}")
e(f"s_mov_b32 s51, {HB4A:#x}")
sweep8_addr(52, 51)
e("v_lshlrev_b32 v53, 2, v97")
e(f"v_add_u32 v53, {X1L}, v53")
e("v_lshlrev_b32 v54, 5, v1")
e(f"v_add_u32 v54, {X1L}, v54")
e("s_lshl_b32 s10, s3, 10")
e(f"s_add_u32 s10, s10, {YL}")
e("v_lshl_add_u32 v55, v1, 4, s10")
e("v_lshrrev_b32 v3, 4, v1")
e("s_lshl_b32 s11, s3, 7")
e("s_add_u32 s10, s10, s11")
e("v_lshl_add_u32 v56, v3, 4, s10")
e("v_and_b32 v3, 15, v1")
e("s_lshl_b32 s10, s3, 7")
e(f"s_add_u32 s10, s10, {HPL}")
e("v_lshl_add_u32 v57, v3, 2, s10")
e("v_and_b32 v3, 31, v1")
e("v_lshlrev_b32 v58, 2, v3")
e(f"v_add_u32 v58, {HPL}, v58")
e("s_lshl_b32 s10, s3, 6")
e(f"s_add_u32 s10, s10, {HL}")
e("v_lshl_add_u32 v59, v3, 1, s10")
e("v_lshrrev_b32 v3, 4, v1")
e("v_lshl_add_u32 v60, v3, 4, s10")
e("v_and_b32 v3, 15, v1")
e("s_lshl_b32 s10, s50, 11")
e("s_lshl_b32 s11, s3, 8")
e("s_add_u32 s10, s10, s11")
e(f"s_add_u32 s10, s10, {HB6:#x}")
e("v_lshl_add_u32 v61, v3, 4, s10")
def _p():
    e("s_lshl_b32 s10, s50, 10")
    e(f"s_add_u32 s10, s10, {PS4:#x}")
    e("v_lshl_add_u32 v20, v1, 4, s10")
wave0_multi_barrier(_p, 0xffffffff, 0xffffffff, 16)
stamp(2)
sweep_pending(sweep8_list(52), 120)
stamp(8)
for i in range(8):
    u = 16 + 4 * i
    for (src, a) in ((u, 120), (u + 1, 122)):
        if i == 0:
            unpack2(src, a)
        else:
            e(f"v_lshlrev_b32 v124, 16, {v(src)}")
            e(f"v_and_b32 v125, 0xffff0000, {v(src)}")
            e(f"v_add_f32 {v(a)}, {v(a)}, v124")
            e(f"v_add_f32 {v(a+1)}, {v(a+1)}, v125")
red4_sg(120)
e("v_fma_f32 v120, v99, v120, v98")
e("v_cvt_pk_bf16_f32 v120, v120, v120")
e("v_lshlrev_b32 v120, 16, v120")
e("ds_write_b32 v53, v120")
e("s_waitcnt lgkmcnt(0)")
e("s_barrier")
e("ds_read_b128 v[16:19], v54")
e("ds_read_b128 v[20:23], v54 offset:16")
e("s_waitcnt lgkmcnt(0)")
def ln8():
    e("v_readfirstlane_b32 s10, v16")
    nop(1)
    for r in range(16, 24): e(f"v_subrev_f32 {v(r)}, s10, {v(r)}")
    e("v_add_f32 v40, v16, v17")
    e("v_mul_f32 v42, v16, v16")
    for r in range(18, 24): e(f"v_add_f32 v40, v40, {v(r)}")
    for r in range(17, 24): e(f"v_fmac_f32 v42, {v(r)}, {v(r)}")
    for r_ in (8, 4, 2, 1):
        nop(0)
        dpp("v_add_f32", 40, 40, 40, f"row_ror:{r_}")
        dpp("v_add_f32", 42, 42, 42, f"row_ror:{r_}")
    for sw in ("v_permlane16_swap_b32", "v_permlane32_swap_b32"):
        e("v_mov_b32 v41, v40")
        e("v_mov_b32 v43, v42")
        nop(0)
        e(f"{sw} v41, v40")
        e(f"{sw} v43, v42")
        e("v_add_f32 v40, v40, v41")
        e("v_add_f32 v42, v42, v43")
    e(f"v_mul_f32 v40, {fhex(1/512)}, v40")
    e(f"v_mul_f32 v42, {fhex(1/512)}, v42")
    e("v_fma_f32 v42, -v40, v40, v42")
    e("v_max_f32 v42, 0, v42")
    e(f"v_add_f32 v42, {fhex(1e-5)}, v42")
    e("v_rsq_f32 v42, v42")
    for r in range(16, 24): e(f"v_sub_f32 {v(r)}, {v(r)}, v40")
    for r in range(16, 24): e(f"v_mul_f32 {v(r)}, {v(r)}, v42")
ln8()
for i in range(8):
    e(f"v_fma_f32 {v(16+i)}, {v(16+i)}, {v(108+i)}, {v(100+i)}")
nop(0)
ln8()
for k in range(4):
    e(f"v_cvt_pk_bf16_f32 {v(24+k)}, {v(16+2*k)}, {v(17+2*k)}")
e("ds_write_b128 v55, v[24:27]")
e("s_waitcnt lgkmcnt(0)")
e("ds_read_b128 v[16:19], v56")
e("ds_read_b128 v[20:23], v56 offset:64")
e("s_waitcnt lgkmcnt(1)")
e("v_mfma_f32_16x16x32_bf16 v[24:27], v[16:19], v[64:67], 0")
e("v_mfma_f32_16x16x32_bf16 v[28:31], v[16:19], v[68:71], 0")
e("s_waitcnt lgkmcnt(0)")
e("v_mfma_f32_16x16x32_bf16 v[24:27], v[20:23], v[72:75], v[24:27]")
e("v_mfma_f32_16x16x32_bf16 v[28:31], v[20:23], v[76:79], v[28:31]")
nop(7)
set_exec(0xffff, 0)
e("ds_write_b32 v57, v24")
e("ds_write_b32 v57, v28 offset:64")
full_exec()
e("s_waitcnt lgkmcnt(0)")
e("s_barrier")
for w in range(8):
    e(f"ds_read_b32 {v(16+w)}, v58 offset:{128*w}")
e("s_waitcnt lgkmcnt(0)")
e("v_add_f32 v16, v16, v17"); e("v_add_f32 v18, v18, v19"); e("v_add_f32 v20, v20, v21"); e("v_add_f32 v22, v22, v23")
e("v_add_f32 v16, v16, v18"); e("v_add_f32 v20, v20, v22")
e("v_add3_u32 v24, 0, 0, 0") if False else None
e("v_add_f32 v24, v16, v20")
K1 = -2 * 0.7978845608028654 * LOG2E
e("v_add_f32 v24, v24, v96")
e("v_mul_f32 v20, v24, v24")
e(f"v_mul_f32 v20, {fhex(0.044715)}, v20")
e("v_fma_f32 v20, v20, v24, v24")
e(f"v_mul_f32 v20, {fhex(K1)}, v20")
e("v_exp_f32 v20, v20")
nop(0)
e("v_add_f32 v20, 1.0, v20")
e("v_rcp_f32 v20, v20")
nop(0)
e("v_mul_f32 v24, v24, v20")
e("v_cvt_pk_bf16_f32 v24, v24, v24")
e("ds_write_b16 v59, v24")
e("s_waitcnt lgkmcnt(0)")
e("ds_read_b128 v[16:19], v60")
e("s_waitcnt lgkmcnt(0)")
for t in range(4):
    e(f"v_mfma_f32_16x16x32_bf16 {v(24+4*t,4)}, v[16:19], {v(80+4*t,4)}, 0")
nop(7)
pub_tiles(24, 61)
stamp(3)
diag(7)
e("s_branch L_end")

lab("L_final")
e("s_barrier")
e("s_sub_u32 s52, s50, 48")
e("v_lshrrev_b32 v3, 3, v0")
e("v_lshlrev_b32 v72, 11, v3")
e("v_and_b32 v2, 7, v0")
e("v_lshl_add_u32 v72, v2, 4, v72")
e("s_lshl_b32 s10, s52, 7")
e("v_add_u32 v72, s10, v72")
e("v_cmp_gt_u32 vcc, 32, v3")
e("s_mov_b64 s[54:55], vcc")
e("v_cmp_gt_u32 vcc, 43, v3")
e("s_mov_b64 s[56:57], vcc")
bitswap_rho(48, 3)
e("v_lshl_add_u32 v48, v2, 2, v48")
e("s_lshl_b32 s10, s3, 7")
e("v_lshl_add_u32 v48, v48, 2, s10")
e("v_and_b32 v3, 3, v1")
e("v_lshlrev_b32 v70, 4, v3")
e("v_bfe_u32 v3, v1, 2, 3")
e("v_add_u32 v70, v70, v3")
e("s_lshr_b32 s10, s52, 1")
e("s_lshl_b32 s10, s10, 6")
e("s_and_b32 s11, s52, 1")
e("s_lshl_b32 s11, s11, 3")
e("s_add_u32 s10, s10, s11")
e("v_add_u32 v70, s10, v70")
e("v_lshlrev_b32 v71, 1, v70")
e(f"global_load_ushort v64, v71, {sp(X)}")
e(f"global_load_ushort v65, v71, {sp(B2)}")
e("s_waitcnt vmcnt(0)")
get_tags()
skr = uid("d")
e("s_cmp_lg_u32 s3, 0")
e(f"s_cbranch_scc1 {skr}")
e(f"s_mov_b32 s10, {HB1 + 4096 + 31*256}")
hint_wait(10, 16)
e("v_lshrrev_b32 v3, 2, v70")
e("v_lshlrev_b32 v3, 4, v3")
e(f"v_add_u32 v10, {HB1 + 256*16}, v3")
e(f"v_add_u32 v11, {HB1 + 640*16}, v3")
lp = uid("g")
lab(lp)
e(f"global_load_dwordx4 v[16:19], v10, {sp(WS)} sc1")
e(f"global_load_dwordx4 v[20:23], v11, {sp(WS)} sc1")
e("s_waitcnt vmcnt(0)")
tagcheck([16, 20], 40, lp)
e("v_and_b32 v3, 2, v70")
e("v_cmp_ne_u32 vcc, 0, v3")
nop(1)
e("v_cndmask_b32 v66, v16, v17, vcc")
e("v_cndmask_b32 v67, v20, v21, vcc")
e("v_and_b32 v3, 1, v70")
e("v_lshlrev_b32 v3, 4, v3")
e("v_lshrrev_b32 v66, v3, v66")
e("v_lshrrev_b32 v67, v3, v67")
for d in (64, 65, 66, 67):
    e(f"v_lshlrev_b32 {v(d)}, 16, {v(d)}")
lab(skr)
def fin_gather(hb, mask, ldsoff):
    e(f"v_add_u32 v10, {hb:#x}, v72")
    e("v_mov_b32 v16, 0"); e("v_mov_b32 v17, 0"); e(f"v_mov_b32 v18, {T0}"); e(f"v_mov_b32 v19, {T1}")
    lp = uid("g"); sk = uid("r")
    e(f"s_cmp_eq_u64 {mask}, 0")
    e(f"s_cbranch_scc1 {sk}")
    lab(lp)
    e(f"s_mov_b64 exec, {mask}")
    e(f"global_load_dwordx4 v[16:19], v10, {sp(WS)} sc1")
    full_exec()
    e("s_waitcnt vmcnt(0)")
    tagcheck([16], 40, lp)
    lab(sk)
    unpack2(16, 20); unpack2(17, 22)
    red4_sg(20)
    nop(1)
    dpp("v_add_f32", 20, 20, 20, "row_ror:8")
    set_exec(0x00ff00ff, 0x00ff00ff)
    e(f"ds_write_b32 v48, v20 offset:{ldsoff}")
    full_exec()
    e("s_waitcnt lgkmcnt(0)")
    e("s_barrier")
    e("s_cmp_lg_u32 s3, 0")
    skw = uid("rw")
    e(f"s_cbranch_scc1 {skw}")
    e("v_and_b32 v3, 31, v1")
    e("v_lshlrev_b32 v3, 2, v3")
    for w in range(8):
        e(f"ds_read_b32 {v(24+w)}, v3 offset:{ldsoff+128*w}")
    e("s_waitcnt lgkmcnt(0)")
    e("v_add_f32 v24, v24, v25"); e("v_add_f32 v26, v26, v27"); e("v_add_f32 v28, v28, v29"); e("v_add_f32 v30, v30, v31")
    e("v_add_f32 v24, v24, v26"); e("v_add_f32 v28, v28, v30"); e("v_add_f32 v16, v24, v28")
    return skw
def _f():
    e("s_add_u32 s10, s52, 43")
    e("s_lshl_b32 s10, s10, 10")
    e(f"s_add_u32 s10, s10, {PS4:#x}")
    e("v_lshl_add_u32 v20, v1, 4, s10")
wave0_multi_barrier(_f, 0xffffffff, 0xffffffff, 16)
skw = fin_gather(HB4A, "s[54:55]", 0)
e("v_fma_f32 v68, v66, v16, v64")
e("v_cvt_pk_bf16_f32 v68, v68, v68")
e("v_lshlrev_b32 v68, 16, v68")
lab(skw)
stamp(3)
skw = fin_gather(HB6, "s[56:57]", 1024)
e("v_add_f32 v16, v16, v65")
e("v_fma_f32 v16, v67, v16, v68")
e("v_cvt_pk_bf16_f32 v16, v16, v16")
set_exec(0xffffffff, 0)
e(f"global_store_short v71, v16, {sp(OUT)}")
e("s_cmp_lg_u32 s52, 0")
e(f"s_cbranch_scc1 {skw}")
set_exec(1, 0)
e(f"v_mov_b32 v3, {EPOCH:#x}")
e(f"v_mov_b32 v24, {T0}")
e(f"global_store_dword v3, v24, {sp(WS)} sc1")
lab(skw)
full_exec()
stamp(5)
diag(8)
e("s_branch L_end")

lab("L_roleB")
e("s_lshl_b32 s50, s48, 1")
e("s_add_u32 s50, s50, s49")
e("s_lshl_b32 s50, s50, 8")
e(f"s_add_u32 s50, s50, {HBQ:#x}")
e("s_cmp_ge_u32 s3, 4")
e("s_cbranch_scc1 L_Bload")
e("v_lshlrev_b32 v2, 4, v1")
e(f"global_load_dwordx4 v[128:131], v2, {sp(X)}")
e("v_lshlrev_b32 v2, 2, v0")
e(f"global_load_dword v132, v2, {sp(X)}")
e("s_waitcnt vmcnt(0)")
get_tags()
for k in range(4): unpack2(128 + k, 16 + 2 * k)
unpack2(132, 134)
e("v_add_f32 v40, v16, v17")
for r in range(18, 24): e(f"v_add_f32 v40, v40, {v(r)}")
wave_red("v_add_f32", 40, 41)
e(f"v_mul_f32 v40, {fhex(1/512)}, v40")
for r in list(range(16, 24)) + [134, 135]: e(f"v_sub_f32 {v(r)}, {v(r)}, v40")
e("v_mul_f32 v42, v16, v16")
for r in range(17, 24): e(f"v_fmac_f32 v42, {v(r)}, {v(r)}")
wave_red("v_add_f32", 42, 41)
e(f"v_mov_b32 v41, {fhex(1e-5)}")
e(f"v_fmac_f32 v41, {fhex(1/512)}, v42")
e("v_rsq_f32 v41, v41")
nop(0)
for r in (134, 135): e(f"v_mul_f32 {v(r)}, {v(r)}, v41")
stamp(5)
e("s_lshl_b32 s10, s48, 11")
e("s_lshl_b32 s11, s49, 10")
e("s_add_u32 s10, s10, s11")
e(f"s_add_u32 s10, s10, {PS1:#x}")
stamp(3)
e("v_lshlrev_b32 v3, 4, v0")
e(f"v_add_u32 v3, {HB1C:#x}, v3")
for k in range(4):
    sadd64(54 + 2 * k, WS, k * 8192)
    sadd64(62 + 2 * k, WS, k * 8192 + 4096)
_ld = []
for k in range(4):
    _ld.append((f"global_load_dwordx4 {v(16+4*k,4)}, v3, s[{54+2*k}:{55+2*k}] sc1", 16 + 4 * k))
    _ld.append((f"global_load_dwordx4 {v(32+4*k,4)}, v3, s[{62+2*k}:{63+2*k}] sc1", 32 + 4 * k))
sweep_pending(_ld, 136)
stamp(6)
for base in (16, 32):
    for o in (0, 1):
        e(f"v_add_f32 {v(base+o)}, {v(base+o)}, {v(base+4+o)}")
        e(f"v_add_f32 {v(base+8+o)}, {v(base+8+o)}, {v(base+12+o)}")
        e(f"v_add_f32 {v(base+o)}, {v(base+o)}, {v(base+8+o)}")
    e(f"v_cvt_pk_bf16_f32 {v(base)}, {v(base)}, {v(base+1)}")
    unpack2(base, base + 2)
for o in (0, 1):
    e(f"v_fma_f32 {v(34+o)}, {v(134+o)}, {v(34+o)}, {v(134+o)}")
    e(f"v_add_f32 {v(34+o)}, {v(34+o)}, {v(18+o)}")
e("v_lshlrev_b32 v3, 3, v0")
e("ds_write_b64 v3, v[34:35]")
stamp(4)
e("s_waitcnt lgkmcnt(0)")
e("s_barrier")
stamp(1)
e("s_barrier")
e("s_cmp_lg_u32 s3, 0")
e("s_cbranch_scc1 L_B2")
e("v_lshlrev_b32 v3, 2, v1")
for w in range(4):
    e(f"ds_read_b32 {v(16+w)}, v3 offset:{2048+256*w}")
e("s_waitcnt lgkmcnt(0)")
e("v_add_f32 v16, v16, v17"); e("v_add_f32 v18, v18, v19")
e("v_add_f32 v24, v16, v18")
nop(1)
for k in range(4):
    e(f"v_mov_b32_dpp {v(28+k)}, v24 quad_perm:[{k},{k},{k},{k}] row_mask:0xf bank_mask:0xf")
e("v_cvt_pk_bf16_f32 v32, v28, v29")
e("v_cvt_pk_bf16_f32 v33, v30, v31")
e(f"v_mov_b32 v34, {T0}")
e(f"v_mov_b32 v35, {T1}")
e("v_lshl_add_u32 v3, v1, 2, s50")
e(f"v_add_u32 v2, {HBQL-HBQ:#x}, v3")
set_exec(0x11111111, 0x11111111)
e(f"global_store_dwordx4 v2, v[32:35], {sp(WS)}")
e(f"global_store_dwordx4 v3, v[32:35], {sp(WS)} sc1")
full_exec()
e("s_lshr_b32 s10, s48, 4")
e("s_lshl_b32 s10, s10, 9")
e("s_and_b32 s11, s48, 15")
e("s_lshl_b32 s11, s11, 5")
e("s_add_u32 s10, s10, s11")
e("s_lshl_b32 s11, s49, 4")
e("s_add_u32 s10, s10, s11")
e(f"s_add_u32 s10, s10, {PSQ:#x}")
presignal(10, 10, 32, guard=False)
stamp(2)
diag(3)
lab("L_B2")
e("s_barrier")
stamp(7)
WK = 8192
e("v_bfe_u32 v3, v1, 2, 2")
e("s_lshl_b32 s10, s3, 3")
e("v_add_u32 v3, s10, v3")
e("s_movk_i32 s10, 1040")
e("v_mul_lo_u32 v10, v3, s10")
e("v_and_b32 v3, 3, v1")
e("v_lshl_add_u32 v10, v3, 8, v10")
e("v_lshrrev_b32 v3, 4, v1")
e("v_lshl_add_u32 v10, v3, 4, v10")
e(f"v_add_u32 v10, {WK}, v10")
e("s_lshl_b32 s10, s48, 9")
e(f"s_add_u32 s10, s10, {HBQ:#x}")
e("v_lshl_add_u32 v11, v3, 5, s10")
e(f"v_add_u32 v13, {HBQL-HBQ:#x}, v11")
e("s_lshl_b32 s10, s48, 11")
e("s_lshl_b32 s11, s49, 10")
e("s_add_u32 s10, s10, s11")
e("s_lshl_b32 s11, s3, 7")
e("s_add_u32 s10, s10, s11")
e(f"s_add_u32 s10, s10, {HB2:#x}")
e("v_lshl_add_u32 v12, v3, 4, s10")
for rt in range(2):
    for ks in range(4):
        e(f"ds_read_b128 {v(64+(rt*4+ks)*4,4)}, v10 offset:{rt*4160+ks*64}")
lpq, okL, okG = uid("q"), uid("q"), uid("q")
lab(lpq)
for k in range(8):
    e(f"global_load_dwordx4 {v(16+4*k,4)}, v13, {sp(WS)} offset:{128*(k//2)+16*(k%2)} sc1")
for k in range(8):
    e(f"global_load_dwordx4 {v(112+4*k,4)}, v11, {sp(WS)} offset:{128*(k//2)+16*(k%2)} sc1")
e("s_waitcnt vmcnt(8)")
def _chk(base, t):
    for k in range(8):
        u = base + 4 * k
        e(f"v_xor_b32 {v(t+1)}, {T0}, {v(u+2)}")
        e(f"v_xor_b32 {v(t+2)}, {T1}, {v(u+3)}")
        if k == 0: e(f"v_or_b32 {v(t)}, {v(t+1)}, {v(t+2)}")
        else: e(f"v_or3_b32 {v(t)}, {v(t)}, {v(t+1)}, {v(t+2)}")
    e(f"v_cmp_ne_u32 vcc, 0, {v(t)}")
_chk(16, 96)
e(f"s_cbranch_vccz {okL}")
e("s_waitcnt vmcnt(0)")
_chk(112, 96)
e(f"s_cbranch_vccz {okG}")
spin_bound()
e(f"s_branch {lpq}")
lab(okG)
stamp(10)
for k in range(8):
    e(f"v_mov_b32 {v(16+4*k)}, {v(112+4*k)}")
    e(f"v_mov_b32 {v(17+4*k)}, {v(113+4*k)}")
lab(okL)
stamp(8)
for ks in range(4):
    e(f"v_mov_b32 {v(18+8*ks)}, {v(20+8*ks)}")
    e(f"v_mov_b32 {v(19+8*ks)}, {v(21+8*ks)}")
e("s_waitcnt lgkmcnt(0)")
nop(0)
for ks in range(4):
    for rt in range(2):
        c = "0" if ks == 0 else v(96 + 4 * rt, 4)
        e(f"v_mfma_f32_16x16x32_bf16 {v(96+4*rt,4)}, {v(64+(rt*4+ks)*4,4)}, {v(16+8*ks,4)}, {c}")
nop(6)
set_exec(0x00010001, 0x00010001)
for rt in range(2):
    d = 104 + 4 * rt
    e(f"v_cvt_pk_bf16_f32 {v(d)}, {v(96+4*rt)}, {v(97+4*rt)}")
    e(f"v_cvt_pk_bf16_f32 {v(d+1)}, {v(98+4*rt)}, {v(99+4*rt)}")
    e(f"v_mov_b32 {v(d+2)}, {T0}")
    e(f"v_mov_b32 {v(d+3)}, {T1}")
    e(f"global_store_dwordx4 v12, {v(d,4)}, {sp(WS)} offset:{64*rt} sc1")
full_exec()
stamp(9)
diag(4)
e("s_branch L_end")
lab("L_Bload")
e("s_sub_u32 s51, s3, 4")
e("v_lshrrev_b32 v10, 3, v1")
e("v_lshlrev_b32 v10, 17, v10")
e("s_lshl_b32 s10, s51, 20")
e("s_lshl_b32 s11, s48, 8")
e("s_add_u32 s10, s10, s11")
e("s_lshl_b32 s11, s49, 7")
e("s_add_u32 s10, s10, s11")
e("v_add_u32 v10, s10, v10")
e("v_and_b32 v3, 7, v1")
e("v_lshl_add_u32 v10, v3, 4, v10")
for i in range(16):
    sadd64(12, WQ, i * 8192)
    e(f"global_load_dwordx4 {v(64+4*i,4)}, v10, s[12:13] nt")
e("v_lshrrev_b32 v10, 4, v1")
e("v_lshlrev_b32 v10, 13, v10")
e("v_and_b32 v3, 15, v1")
e("v_lshl_add_u32 v10, v3, 4, v10")
e("s_lshl_b32 s10, s49, 21")
e("s_lshl_b32 s11, s51, 19")
e("s_add_u32 s10, s10, s11")
e("s_lshl_b32 s11, s48, 8")
e("s_add_u32 s10, s10, s11")
e("v_add_u32 v10, s10, v10")
e(f"s_mul_i32 s11, s51, {16*1040}")
e("s_add_u32 s11, s11, 8192")
for i in range(16):
    sadd64(12, WUK, i * 4 * 8192)
    e("s_mov_b32 m0, s11")
    nop(0)
    e("global_load_lds_dwordx4 v10, s[12:13] nt")
    e("s_add_u32 s11, s11, 1040")
masks_setup(52)
e("v_lshrrev_b32 v2, 3, v1")
e("v_lshlrev_b32 v2, 6, v2")
e("s_lshl_b32 s10, s51, 9")
e("v_add_u32 v2, s10, v2")
e("v_and_b32 v48, 7, v1")
e("v_lshlrev_b32 v48, 5, v48")
e("v_and_b32 v3, 16, v1")
e("s_lshl_b32 s10, s51, 8")
e("v_add3_u32 v48, v48, v3, s10")
e("s_waitcnt vmcnt(16)")
get_tags()
e("s_barrier")
for k in range(4):
    e(f"ds_read_b128 {v(136+4*k,4)}, v2 offset:{16*k}")
e("s_waitcnt lgkmcnt(0)")
for i in range(16):
    e(f"v_cvt_pk_bf16_f32 {v(136+i)}, {v(136+i)}, {v(136+i)}")
for i in range(16):
    a_ = 24 + 4 * (i % 3)
    for r in range(4):
        e(f"v_and_b32 {v(a_+r)}, {v(136+i)}, {v(52+r)}")
    if i > 0:
        pa = 24 + 4 * ((i - 1) % 3)
        c = "0" if i == 1 else "v[40:43]"
        e(f"v_mfma_f32_16x16x32_bf16 v[40:43], {v(pa,4)}, {v(64+4*(i-1),4)}, {c}")
nop(1)
e(f"v_mfma_f32_16x16x32_bf16 v[40:43], {v(24+4*(15%3),4)}, {v(64+60,4)}, v[40:43]")
nop(7)
for r in range(4):
    e(f"v_mov_b32 {v(44+r)}, {v(40+r)}")
nop(0)
for r in range(4):
    e(f"v_permlane32_swap_b32 {v(40+r)}, {v(44+r)}")
nop(0)
for r in range(4):
    dpp("v_add_f32", 40 + r, 44 + r, 40 + r, "row_ror:8")
set_exec(0x00ff00ff, 0)
e("ds_write_b128 v48, v[40:43] offset:2048")
full_exec()
e("s_waitcnt lgkmcnt(0)")
e("s_barrier")
e("s_waitcnt vmcnt(0)")
e("s_branch L_B2")

CK_ROW = 1040
QA = 128 * CK_ROW
PB = QA + 16 * CK_ROW
MX = PB + 16 * 272
lab("L_roleC")
e("v_lshrrev_b32 v2, 4, v1")
e("v_lshlrev_b32 v50, 18, v2")
e("v_and_b32 v3, 15, v1")
e("v_lshl_add_u32 v50, v3, 4, v50")
e("s_lshl_b32 s10, s49, 20")
e("s_lshl_b32 s11, s48, 11")
e("s_add_u32 s10, s10, s11")
e("s_lshl_b32 s11, s3, 8")
e("s_add_u32 s10, s10, s11")
e(f"s_add_u32 s10, s10, {HB3:#x}")
e("v_add_u32 v50, s10, v50")
for r in range(4):
    sadd64(54 + 2 * r, WS, r * 65536)
e("v_lshlrev_b32 v51, 9, v1")
e("s_lshl_b32 s10, s49, 13")
e("s_lshl_b32 s11, s48, 4")
e("s_add_u32 s10, s10, s11")
e(f"s_add_u32 s10, s10, {HB3ML:#x}")
e("v_add_u32 v51, s10, v51")
e("v_and_b32 v2, 127, v0")
e("v_lshlrev_b32 v52, 4, v2")
e("s_lshr_b32 s10, s3, 1")
e("s_lshl_b32 s11, s49, 4")
e("s_add_u32 s11, s11, s10")
e("s_lshl_b32 s11, s11, 11")
e(f"s_add_u32 s11, s11, {HB2:#x}")
e("v_add_u32 v52, s11, v52")
e(f"s_mul_i32 s10, s10, {CK_ROW}")
e("v_lshlrev_b32 v53, 3, v2")
e("v_add_u32 v53, s10, v53")
e(f"v_add_u32 v53, {QA}, v53")
for i in range(4):
    sadd64(62 + 2 * i, WS, i * 8192)
e("v_and_b32 v2, 15, v1")
e(f"s_movk_i32 s10, {CK_ROW}")
e("v_mul_lo_u32 v49, v2, s10")
e("v_lshrrev_b32 v3, 4, v1")
e("v_lshl_add_u32 v49, v3, 4, v49")
e(f"v_add_u32 v49, {QA}, v49")
e("v_lshlrev_b32 v54, 5, v2")
e(f"v_add_u32 v54, {MX}, v54")
e("s_lshl_b32 s10, s3, 2")
e("v_add_u32 v58, s10, v54")
e("s_movk_i32 s10, 272")
e("v_mul_lo_u32 v56, v2, s10")
e(f"v_add_u32 v56, {PB}, v56")
e("v_lshl_add_u32 v55, v3, 3, v56")
e("s_lshl_b32 s10, s3, 5")
e("v_add_u32 v55, s10, v55")
e("v_lshl_add_u32 v56, v3, 4, v56")
e("v_lshlrev_b32 v2, 4, v1")
e("s_lshl_b32 s10, s48, 17")
e("s_lshl_b32 s11, s3, 14")
e("s_add_u32 s10, s10, s11")
e(f"s_add_u32 s12, s{CKV}, s10")
e(f"s_addc_u32 s13, s{CKV+1}, 0")
e(f"s_mul_i32 s11, s3, {16*CK_ROW}")
for i in range(16):
    e("s_mov_b32 m0, s11")
    e("s_nop 0")
    e("global_load_lds_dwordx4 v2, s[12:13] nt")
    if i < 15:
        e("s_add_u32 s12, s12, 1024")
        e("s_addc_u32 s13, s13, 0")
        e(f"s_add_u32 s11, s11, {CK_ROW}")
e("s_waitcnt vmcnt(0)")
get_tags()
e("s_barrier")
stamp(4)
diag(9)
e("v_and_b32 v2, 15, v1")
e("s_lshl_b32 s10, s3, 4")
e("v_add_u32 v2, s10, v2")
e(f"s_movk_i32 s10, {CK_ROW}")
e("v_mul_lo_u32 v2, v2, s10")
e("v_lshrrev_b32 v3, 4, v1")
e("v_lshl_add_u32 v2, v3, 4, v2")
for j in range(16):
    e(f"ds_read_b128 {v(64+4*j,4)}, v2 offset:{64*j}")
e("v_lshrrev_b32 v2, 4, v1")
e("v_lshlrev_b32 v2, 3, v2")
e("v_and_b32 v3, 15, v1")
e("v_lshrrev_b32 v3, 2, v3")
e("v_add_u32 v2, v2, v3")
e("v_mul_lo_u32 v2, v2, s10")
e("v_and_b32 v3, 3, v1")
e("v_lshl_add_u32 v2, v3, 3, v2")
e("s_lshl_b32 s11, s3, 7")
e("v_add_u32 v2, s11, v2")
e(f"v_add_u32 v3, {64*CK_ROW}, v2")
for j in range(4):
    for jj in range(4):
        base = 2 if j < 2 else 3
        off = (j % 2) * 32 * CK_ROW + jj * 32
        d = 128 + (j * 4 + jj) * 4
        e(f"ds_read_b64_tr_b16 {v(d,2)}, {v(base)} offset:{off}")
        e(f"ds_read_b64_tr_b16 {v(d+2,2)}, {v(base)} offset:{off+4*CK_ROW}")
e("s_waitcnt lgkmcnt(0)")
def _c():
    e("s_lshl_b32 s10, s48, 10")
    e("s_lshl_b32 s11, s49, 9")
    e("s_add_u32 s10, s10, s11")
    e(f"s_add_u32 s10, s10, {PSQ:#x}")
    e("v_lshl_add_u32 v20, v1, 4, s10")
wave0_multi_barrier(_c, 0xffffffff, 0, 16)
stamp(1)
_ld = []
for i in range(4):
    _ld.append((f"global_load_dwordx4 {v(16+4*i,4)}, v52, s[{62+2*i}:{63+2*i}] sc1", 16 + 4 * i))
sweep_pending(_ld, 192)
stamp(3)
for i in range(4):
    e(f"ds_write_b64 v53, {v(16+4*i,2)} offset:{i*4*CK_ROW}")
e("s_waitcnt lgkmcnt(0)")
stamp(5)
e("s_barrier")
stamp(6)
for j in range(16):
    e(f"ds_read_b128 {v(192+4*j,4)}, v49 offset:{64*j}")
for j in range(16):
    e(f"s_waitcnt lgkmcnt({15-j})")
    c = "0" if j == 0 else "v[16:19]"
    e(f"v_mfma_f32_16x16x32_bf16 v[16:19], {v(64+4*j,4)}, {v(192+4*j,4)}, {c}")
nop(7)
SCL = 128 ** -0.5 * LOG2E
for r in range(4): e(f"v_mul_f32 {v(16+r)}, {fhex(SCL)}, {v(16+r)}")
e("v_max_f32 v20, v16, v17")
e("v_max3_f32 v20, v20, v18, v19")
e("v_mov_b32 v21, v20")
nop(1)
e("v_permlane16_swap_b32 v21, v20")
e("v_max_f32 v20, v20, v21")
e("v_mov_b32 v21, v20")
nop(1)
e("v_permlane32_swap_b32 v21, v20")
e("v_max_f32 v20, v20, v21")
set_exec(0xffff, 0)
e("ds_write_b32 v58, v20")
full_exec()
e("s_waitcnt lgkmcnt(0)")
stamp(7)
e("s_barrier")
stamp(8)
e("s_lshl_b32 s10, s49, 13")
e("s_lshl_b32 s11, s48, 4")
e("s_add_u32 s10, s10, s11")
e(f"s_add_u32 s10, s10, {PS3:#x}")
presignal(10, 9, 16)
e("ds_read_b128 v[24:27], v54")
e("ds_read_b128 v[28:31], v54 offset:16")
e("s_waitcnt lgkmcnt(0)")
e("v_max3_f32 v20, v24, v25, v26")
e("v_max3_f32 v20, v20, v27, v28")
e("v_max3_f32 v20, v20, v29, v30")
e("v_max_f32 v20, v20, v31")
for r in range(4):
    e(f"v_sub_f32 {v(16+r)}, {v(16+r)}, v20")
for r in range(4):
    e(f"v_exp_f32 {v(16+r)}, {v(16+r)}")
nop(0)
e("v_cvt_pk_bf16_f32 v22, v16, v17")
e("v_cvt_pk_bf16_f32 v23, v18, v19")
e("ds_write_b64 v55, v[22:23]")
e("v_add_f32 v16, v16, v17")
e("v_add_f32 v18, v18, v19")
e("v_add_f32 v16, v16, v18")
e("v_mov_b32 v21, v16")
nop(1)
e("v_permlane16_swap_b32 v21, v16")
e("v_add_f32 v16, v16, v21")
e("v_mov_b32 v21, v16")
nop(1)
e("v_permlane32_swap_b32 v21, v16")
e("v_add_f32 v16, v16, v21")
set_exec(0xffff, 0)
e("ds_write_b32 v58, v16 offset:512")
full_exec()
e("s_waitcnt lgkmcnt(0)")
stamp(9)
e("s_barrier")
stamp(10)
for j in range(4):
    e(f"ds_read_b128 {v(192+4*j,4)}, v56 offset:{64*j}")
e("ds_read_b128 v[40:43], v54 offset:512")
e("ds_read_b128 v[44:47], v54 offset:528")
for j in range(4):
    e(f"s_waitcnt lgkmcnt({5-j})")
    for jj in range(4):
        c = "0" if j == 0 else v(24 + 4 * jj, 4)
        e(f"v_mfma_f32_16x16x32_bf16 {v(24+4*jj,4)}, {v(192+4*j,4)}, {v(128+(j*4+jj)*4,4)}, {c}")
e(f"v_mov_b32 v22, {T0}")
e(f"v_mov_b32 v23, {T1}")
e("s_waitcnt lgkmcnt(0)")
e("v_add_f32 v40, v40, v41"); e("v_add_f32 v42, v42, v43"); e("v_add_f32 v44, v44, v45"); e("v_add_f32 v46, v46, v47")
e("v_add_f32 v40, v40, v42"); e("v_add_f32 v44, v44, v46"); e("v_add_f32 v21, v40, v44")
nop(3)
pub_exec()
for r in range(4):
    d = 208 + 4 * r
    e(f"v_cvt_pk_bf16_f32 {v(d)}, {v(24+r)}, {v(28+r)}")
    e(f"v_cvt_pk_bf16_f32 {v(d+1)}, {v(32+r)}, {v(36+r)}")
    e(f"v_mov_b32 {v(d+2)}, {T0}")
    e(f"v_mov_b32 {v(d+3)}, {T1}")
    e(f"global_store_dwordx4 v50, {v(d,4)}, s[{54+2*r}:{55+2*r}] sc1")
sk = uid("c")
e("s_cmp_lg_u32 s3, 0")
e(f"s_cbranch_scc1 {sk}")
pub_exec(0xffff, 0)
e(f"global_store_dwordx4 v51, v[20:23], {sp(WS)} sc1")
lab(sk)
full_exec()
stamp(2)
diag(5)
e("s_branch L_end")


OB, CB = 133120, 134144
lab("L_roleA")
e("s_lshl_b32 s51, s48, 16")
e(f"s_add_u32 s51, s51, {HB3:#x}")
sweep8_addr(52, 51)
e("v_and_b32 v3, 31, v1")
e("s_lshl_b32 s10, s48, 9")
e(f"s_add_u32 s10, s10, {HB3ML:#x}")
e("v_lshl_add_u32 v54, v3, 4, s10")
e("v_lshrrev_b32 v55, 4, v1")
e("v_lshlrev_b32 v55, 5, v55")
col_of_lane(56, 3)
e("v_lshlrev_b32 v56, 1, v56")
e(f"v_add_u32 v56, {OB}, v56")
e("v_lshrrev_b32 v3, 4, v1")
e("v_lshlrev_b32 v57, 4, v3")
e(f"v_add_u32 v57, {OB}, v57")
e("v_and_b32 v3, 15, v1")
e("s_lshl_b32 s10, s3, 5")
e(f"s_add_u32 s10, s10, {CB}")
e("v_lshl_add_u32 v58, v3, 1, s10")
e("s_lshl_b32 s10, s48, 11")
e("s_lshl_b32 s11, s49, 10")
e("s_add_u32 s10, s10, s11")
e(f"s_add_u32 s10, s10, {HB4A:#x}")
e("v_lshl_add_u32 v59, v1, 4, s10")
e("s_lshl_b32 s10, s3, 6")
e(f"s_add_u32 s10, s10, {CB+256}")
e("v_lshl_add_u32 v60, v3, 2, s10")
e("v_lshrrev_b32 v61, 4, v1")
e("v_lshlrev_b32 v61, 7, v61")
e("v_lshl_add_u32 v61, v3, 2, v61")
e(f"v_add_u32 v61, {CB+256}, v61")
e("s_waitcnt vmcnt(0)")
get_tags()
e("s_lshl_b32 s10, s48, 7")
e("s_lshl_b32 s11, s49, 6")
e("s_add_u32 s10, s10, s11")
e(f"s_add_u32 s10, s10, {PSA:#x}")
wave0_hint_barrier(10, 16)
e("v_lshrrev_b32 v2, 4, v1")
e("v_lshlrev_b32 v2, 13, v2")
e("v_and_b32 v3, 15, v1")
e("v_lshl_add_u32 v2, v3, 4, v2")
e("s_lshl_b32 s10, s3, 19")
e("s_lshl_b32 s11, s48, 8")
e("s_add_u32 s10, s10, s11")
e("v_add_u32 v2, s10, v2")
e(f"s_mul_i32 s11, s3, {16*1040}")
e(f"s_mov_b32 s12, s{WUV}")
e(f"s_mov_b32 s13, s{WUV+1}")
for i in range(16):
    e("s_mov_b32 m0, s11")
    nop(0)
    e("global_load_lds_dwordx4 v2, s[12:13] nt")
    if i < 15:
        e("s_add_u32 s12, s12, 32768")
        e("s_addc_u32 s13, s13, 0")
        e("s_add_u32 s11, s11, 1040")
e("v_lshrrev_b32 v2, 4, v1")
e("s_movk_i32 s10, 2080")
e("v_mul_lo_u32 v2, v2, s10")
e("v_bfe_u32 v3, v1, 2, 2")
e("v_lshl_add_u32 v2, v3, 8, v2")
e("v_and_b32 v3, 3, v1")
e("v_lshl_add_u32 v2, v3, 3, v2")
e("s_lshl_b32 s10, s3, 5")
e("v_add_u32 v2, s10, v2")
e(f"v_add_u32 v3, {8*8320}, v2")
e("s_waitcnt vmcnt(0)")
e("s_barrier")
tr_frags(64, [2, 3], 16, 1, 8320, 0, 1040, jsplit=8)
e("s_waitcnt lgkmcnt(0)")
e("s_barrier")
e("v_lshrrev_b32 v2, 5, v1")
e("v_lshlrev_b32 v2, 10, v2")
e("v_and_b32 v3, 31, v1")
e("v_lshl_add_u32 v2, v3, 4, v2")
e("s_lshl_b32 s10, s48, 17")
e("s_lshl_b32 s11, s3, 14")
e("s_add_u32 s10, s10, s11")
e("s_lshl_b32 s11, s49, 9")
e("s_add_u32 s10, s10, s11")
e(f"s_add_u32 s12, s{WO}, s10")
e(f"s_addc_u32 s13, s{WO+1}, 0")
e(f"s_mul_i32 s11, s3, {8*1040}")
for i in range(8):
    e("s_mov_b32 m0, s11")
    nop(0)
    e("global_load_lds_dwordx4 v2, s[12:13] nt")
    if i < 7:
        e("s_add_u32 s12, s12, 2048")
        e("s_addc_u32 s13, s13, 0")
        e("s_add_u32 s11, s11, 1040")
e("v_lshrrev_b32 v2, 4, v1")
e("v_lshlrev_b32 v2, 2, v2")
e("v_bfe_u32 v3, v1, 3, 1")
e("v_add_u32 v2, v2, v3")
e("s_movk_i32 s10, 1040")
e("v_mul_lo_u32 v2, v2, s10")
e("v_bfe_u32 v3, v1, 2, 1")
e("v_lshl_add_u32 v2, v3, 9, v2")
e("v_and_b32 v3, 3, v1")
e("v_lshl_add_u32 v2, v3, 3, v2")
e("s_lshl_b32 s11, s3, 6")
e("v_add_u32 v2, s11, v2")
e("s_waitcnt vmcnt(0)")
e("s_barrier")
tr_frags(128, [2], 4, 2, 16 * 1040, 32, 2 * 1040)
e("s_waitcnt lgkmcnt(0)")
stamp(4)
diag(10)
def _a():
    e("s_lshl_b32 s10, s48, 9")
    e(f"s_add_u32 s10, s10, {PS3:#x}")
    e("v_lshl_add_u32 v20, v1, 4, s10")
wave0_multi_barrier(_a, 0xffffffff, 0, 16)
stamp(1)
stamp_s9(16)
sweep_pending(sweep8_list(52) + [(f"global_load_dwordx4 v[192:195], v54, {sp(WS)} sc1", 192)], 196)
stamp(3)
stamp_s9(17)
e("v_mov_b32 v196, v192")
wave_red("v_max_f32", 196, 197, half=True)
e("v_sub_f32 v192, v192, v196")
e("v_exp_f32 v192, v192")
nop(0)
e("v_mul_f32 v196, v192, v193")
wave_red("v_add_f32", 196, 197, half=True)
e("v_rcp_f32 v196, v196")
nop(0)
e("v_mul_f32 v192, v192, v196")
for i in range(8):
    e(f"ds_bpermute_b32 {v(200+i)}, v55, v192 offset:{4*i}")
for i in range(8):
    u = 16 + 4 * i
    e(f"s_waitcnt lgkmcnt({7-i})")
    for (src, a) in ((u, 208), (u + 1, 210)):
        e(f"v_lshlrev_b32 v196, 16, {v(src)}")
        e(f"v_and_b32 v197, 0xffff0000, {v(src)}")
        if i == 0:
            e(f"v_mul_f32 {v(a)}, {v(200+i)}, v196")
            e(f"v_mul_f32 {v(a+1)}, {v(200+i)}, v197")
        else:
            e(f"v_fmac_f32 {v(a)}, {v(200+i)}, v196")
            e(f"v_fmac_f32 {v(a+1)}, {v(200+i)}, v197")
red4_sg(208)
e("v_cvt_pk_bf16_f32 v208, v208, v208")
e("ds_write_b16 v56, v208")
e("s_waitcnt lgkmcnt(0)")
stamp(5)
e("s_barrier")
stamp(6)
e("s_lshl_b32 s10, s48, 5")
e("s_lshl_b32 s11, s49, 4")
e("s_add_u32 s10, s10, s11")
e(f"s_add_u32 s10, s10, {PS4:#x}")
presignal(10, 10, 59)
for j in range(16):
    e(f"ds_read_b128 {v(192+4*j,4)}, v57 offset:{64*j}")
for j in range(16):
    e(f"s_waitcnt lgkmcnt({15-j})")
    c = "0" if j == 0 else "v[16:19]"
    e(f"v_mfma_f32_16x16x32_bf16 v[16:19], {v(192+4*j,4)}, {v(64+4*j,4)}, {c}")
nop(7)
e("v_cvt_pk_bf16_f32 v16, v16, v16")
set_exec(0xffff, 0)
e("ds_write_b16 v58, v16")
full_exec()
e("s_waitcnt lgkmcnt(0)")
e("s_barrier")
stamp(7)
for j in range(4):
    e(f"ds_read_b128 {v(192+4*j,4)}, v57 offset:{1024+64*j}")
for j in range(4):
    e(f"s_waitcnt lgkmcnt({3-j})")
    for t in range(2):
        c = "0" if j == 0 else v(24 + 4 * t, 4)
        e(f"v_mfma_f32_16x16x32_bf16 {v(24+4*t,4)}, {v(192+4*j,4)}, {v(128+(j*2+t)*4,4)}, {c}")
nop(7)
e("v_cvt_pk_bf16_f32 v24, v24, v28")
set_exec(0xffff, 0)
e("ds_write_b32 v60, v24")
full_exec()
e("s_waitcnt lgkmcnt(0)")
e("s_barrier")
sk = uid("a")
e("s_cmp_lg_u32 s3, 0")
e(f"s_cbranch_scc1 {sk}")
e("ds_read_b32 v16, v61")
e("ds_read_b32 v17, v61 offset:64")
e(f"v_mov_b32 v18, {T0}")
e(f"v_mov_b32 v19, {T1}")
e("s_waitcnt lgkmcnt(0)")
e(f"global_store_dwordx4 v59, v[16:19], {sp(WS)} sc1")
lab(sk)
stamp(2)
diag(6)

lab("L_end")
e("s_endpgm")
L.append('.section .rodata,"a"')
L.append(".p2align 6")
L.append(f".amdhsa_kernel {NAME}_kernel")
L.append("  .amdhsa_next_free_vgpr 256")
L.append("  .amdhsa_next_free_sgpr 102")
L.append("  .amdhsa_accum_offset 256")
L.append("  .amdhsa_group_segment_fixed_size 0")
L.append("  .amdhsa_kernarg_size 128")
L.append("  .amdhsa_user_sgpr_count 2")
L.append("  .amdhsa_user_sgpr_kernarg_segment_ptr 1")
L.append("  .amdhsa_system_sgpr_workgroup_id_x 1")
L.append(".end_amdhsa_kernel")
open(OUTF, "w").write("\n".join(L) + "\n")
print("wrote", OUTF, len(L), "lines")
```

```python
import sys, struct

DEBUG = "--debug" in sys.argv
NODRY = "--nodry" in sys.argv
DIAG = "--diag" in sys.argv
OUTF = [a for a in sys.argv[1:] if not a.startswith("--")]
NAME = "adaLN_cond__compressed_kv_cla__mixer_channel_mlp__decode"
OUTF = OUTF[0] if OUTF else f"cdna_kernels/{NAME}.s"

HB1C = 0x8000
HBQ = 0x4000
PS3 = 0x308000
PSQ = 0x310000
PS4 = 0x320000
PSA = 0x330000
PS1 = 0x340000
HBQL = 0x350000
HB1, HB2, HB3, HB3ML, HB4A, HB4B, HB6, EPOCH = 0x0, 0x10000, 0x100000, 0x300000, 0x400000, 0x480000, 0x500000, 0x600000
TS = 0x2000000
X, CKV, WQ, WUK, WUV, WO, BX, W1, B1, W2, B2, C, WMOD, OUT, DBG, WS = [16 + 2 * i for i in range(16)]
def sp(b): return f"s[{b}:{b+1}]"
LDS_BYTES = 155136
SPIN = 400000
LOG2E = 1.4426950408889634
T0, T1 = "s8", "s93"
PM = "s[96:97]"

L = []
def e(s): L.append("    " + s)
def lab(s): L.append(s + ":")
_uid = [0]
def uid(p="L"):
    _uid[0] += 1
    return f"{p}_{_uid[0]}"
def v(a, n=1): return f"v{a}" if n == 1 else f"v[{a}:{a+n-1}]"
def nop(n): e(f"s_nop {n}")
def fhex(x): return "0x%08x" % struct.unpack("<I", struct.pack("<f", x))[0]

def stamp(k):
    if not DEBUG: return
    sk = uid("st")
    e("s_cmp_lg_u32 s3, 0")
    e(f"s_cbranch_scc1 {sk}")
    e("s_memrealtime s[90:91]")
    e("s_waitcnt lgkmcnt(0)")
    e("v_mov_b32 v255, s90")
    e("v_mov_b32 v254, s92")
    e(f"global_store_dword v254, v255, {sp(WS)} offset:{4*k}")
    lab(sk)

def diag(k, neg=False):
    if not DIAG: return
    sk = uid("dg")
    e("s_cmp_lg_u32 s3, 0")
    e(f"s_cbranch_scc1 {sk}")
    e("s_memrealtime s[90:91]")
    e("s_waitcnt lgkmcnt(0)")
    if neg: e("s_not_b32 s90, s90")
    e("v_mov_b32 v255, s90")
    e(f"v_mov_b32 v254, {4*k}")
    e("s_mov_b64 s[94:95], exec")
    set_exec(1, 0)
    e(f"global_atomic_umax v254, v255, {sp(DBG)}")
    e("s_mov_b64 exec, s[94:95]")
    lab(sk)

def stamp_w(k):
    if not DEBUG: return
    e("s_memrealtime s[90:91]")
    e("s_lshl_b32 s94, s3, 2")
    e("s_add_u32 s94, s94, s92")
    e("s_waitcnt lgkmcnt(0)")
    e("v_mov_b32 v255, s90")
    e("v_mov_b32 v254, s94")
    e(f"global_store_dword v254, v255, {sp(WS)} offset:{4*k}")

def stamp_s9(k):
    if not DEBUG: return
    sk = uid("st")
    e("s_cmp_lg_u32 s3, 0")
    e(f"s_cbranch_scc1 {sk}")
    e("v_mov_b32 v255, s9")
    e("v_mov_b32 v254, s92")
    e(f"global_store_dword v254, v255, {sp(WS)} offset:{4*k}")
    lab(sk)

def set_exec(lo, hi):
    e(f"s_mov_b32 exec_lo, {lo:#x}")
    e(f"s_mov_b32 exec_hi, {hi:#x}")
def full_exec(): e("s_mov_b64 exec, -1")
def pub_exec(lo=None, hi=None):
    if lo is None:
        e(f"s_mov_b64 exec, {PM}")
    else:
        set_exec(lo, hi)
        e(f"s_and_b64 exec, exec, {PM}")

def spin_bound():
    e("s_add_u32 s9, s9, 1")
    e(f"s_cmp_gt_u32 s9, {SPIN}")
    e("s_cbranch_scc1 L_end")

def tagcheck(units, t, retry):
    us = list(units)
    if len(us) % 2: us.append(us[-1])
    first = True
    for a, b in zip(us[0::2], us[1::2]):
        for k in (0, 1):
            if first:
                e(f"v_min_u32 {v(t+2*k)}, {v(a+2+k)}, {v(b+2+k)}")
                e(f"v_max_u32 {v(t+2*k+1)}, {v(a+2+k)}, {v(b+2+k)}")
            else:
                e(f"v_min3_u32 {v(t+2*k)}, {v(t+2*k)}, {v(a+2+k)}, {v(b+2+k)}")
                e(f"v_max3_u32 {v(t+2*k+1)}, {v(t+2*k+1)}, {v(a+2+k)}, {v(b+2+k)}")
        first = False
    e(f"v_xor_b32 {v(t)}, {T0}, {v(t)}")
    e(f"v_xor_b32 {v(t+1)}, {T0}, {v(t+1)}")
    e(f"v_xor_b32 {v(t+2)}, {T1}, {v(t+2)}")
    e(f"v_xor_b32 {v(t+3)}, {T1}, {v(t+3)}")
    e(f"v_or3_b32 {v(t)}, {v(t)}, {v(t+1)}, {v(t+2)}")
    e(f"v_or_b32 {v(t)}, {v(t)}, {v(t+3)}")
    e(f"v_cmp_ne_u32 vcc, 0, {v(t)}")
    ok = uid("ok")
    e(f"s_cbranch_vccz {ok}")
    spin_bound()
    e(f"s_branch {retry}")
    lab(ok)

def hint_wait(saddr_expr_sgpr, u, sleep=4):
    lp, dn = uid("hw"), uid("hd")
    e(f"v_mov_b32 {v(u+4)}, s{saddr_expr_sgpr}")
    set_exec(1, 0)
    lab(lp)
    e(f"global_load_dwordx4 {v(u,4)}, {v(u+4)}, {sp(WS)} sc1")
    e("s_waitcnt vmcnt(0)")
    e(f"v_xor_b32 {v(u)}, {T0}, {v(u+2)}")
    e(f"v_xor_b32 {v(u+1)}, {T1}, {v(u+3)}")
    e(f"v_or_b32 {v(u)}, {v(u)}, {v(u+1)}")
    e(f"v_cmp_ne_u32 vcc, 0, {v(u)}")
    e(f"s_cbranch_vccz {dn}")
    spin_bound()
    e(f"s_sleep {sleep}")
    e(f"s_branch {lp}")
    lab(dn)
    full_exec()

def hint_multi(addr_v, lo, hi, u, sleep=1, base=224):
    lp, dn = uid("hw"), uid("hd")
    set_exec(lo, hi)
    for k in range(3):
        e(f"global_load_dwordx4 {v(base+4*k,4)}, {v(addr_v)}, {sp(WS)} sc1")
        e(f"s_sleep {sleep+1}")
    lab(lp)
    for k in range(4):
        e(f"global_load_dwordx4 {v(base+4*((k+3)%4),4)}, {v(addr_v)}, {sp(WS)} sc1")
        e("s_waitcnt vmcnt(3)")
        e(f"v_xor_b32 {v(u)}, {T0}, {v(base+4*k+2)}")
        e(f"v_xor_b32 {v(u+1)}, {T1}, {v(base+4*k+3)}")
        e(f"v_or_b32 {v(u)}, {v(u)}, {v(u+1)}")
        e(f"v_cmp_ne_u32 vcc, 0, {v(u)}")
        e(f"s_cbranch_vccz {dn}")
        e(f"s_sleep {sleep}")
    spin_bound()
    e(f"s_branch {lp}")
    lab(dn)
    full_exec()

def wave0_hint2_barrier(sreg, addr_code, lo, hi, u):
    sk = uid("h")
    e("s_cmp_lg_u32 s3, 0")
    e(f"s_cbranch_scc1 {sk}")
    hint_wait(sreg, u)
    addr_code()
    hint_multi(u + 4, lo, hi, u)
    lab(sk)
    e("s_barrier")

def presignal(sreg, shift=0, nl=1, guard=True):
    sk = uid("ps")
    if guard:
        e("s_cmp_lg_u32 s3, 0")
        e(f"s_cbranch_scc1 {sk}")
    e(f"v_mov_b32 v246, {T0}")
    e(f"v_mov_b32 v247, {T1}")
    e(f"v_lshl_add_u32 v248, v1, {shift}, s{sreg}")
    m = (1 << nl) - 1
    set_exec(m & 0xffffffff, m >> 32)
    e(f"global_store_dwordx4 v248, v[244:247], {sp(WS)} sc1")
    full_exec()
    lab(sk)

def wave0_multi_barrier(addr_code, lo, hi, u):
    sk = uid("h")
    e("s_cmp_lg_u32 s3, 0")
    e(f"s_cbranch_scc1 {sk}")
    addr_code()
    hint_multi(u + 4, lo, hi, u)
    lab(sk)
    e("s_barrier")

def wave0_hint_barrier(sreg, u):
    sk = uid("h")
    e("s_cmp_lg_u32 s3, 0")
    e(f"s_cbranch_scc1 {sk}")
    hint_wait(sreg, u)
    lab(sk)
    e("s_barrier")

def dpp(op, d, s0, s1, ctrl):
    e(f"{op}_dpp {v(d)}, {v(s0)}, {v(s1)} {ctrl} row_mask:0xf bank_mask:0xf")

def wave_red(op, a, t, half=False):
    for r in (8, 4, 2, 1):
        nop(1)
        dpp(op, a, a, a, f"row_ror:{r}")
    e(f"v_mov_b32 {v(t)}, {v(a)}")
    nop(1)
    e(f"v_permlane16_swap_b32 {v(t)}, {v(a)}")
    e(f"{op} {v(a)}, {v(a)}, {v(t)}")
    if not half:
        e(f"v_mov_b32 {v(t)}, {v(a)}")
        nop(1)
        e(f"v_permlane32_swap_b32 {v(t)}, {v(a)}")
        e(f"{op} {v(a)}, {v(a)}, {v(t)}")

def red8_to2(acc):
    for k in range(4):
        e(f"v_permlane32_swap_b32 {v(acc+2*k)}, {v(acc+2*k+1)}")
    for k in range(4):
        e(f"v_add_f32 {v(acc+2*k)}, {v(acc+2*k)}, {v(acc+2*k+1)}")
    nop(1)
    e(f"v_permlane16_swap_b32 {v(acc+0)}, {v(acc+2)}")
    e(f"v_permlane16_swap_b32 {v(acc+4)}, {v(acc+6)}")
    e(f"v_add_f32 {v(acc+0)}, {v(acc+0)}, {v(acc+2)}")
    e(f"v_add_f32 {v(acc+4)}, {v(acc+4)}, {v(acc+6)}")

def bitswap_rho(dst, t):
    e(f"v_lshrrev_b32 {v(dst)}, 5, v1")
    e(f"v_lshrrev_b32 {v(t)}, 3, v1")
    e(f"v_and_b32 {v(t)}, 2, {v(t)}")
    e(f"v_or_b32 {v(dst)}, {v(dst)}, {v(t)}")

def gemv_row8(W, nrows, vf, acc, lo, hi):
    for i in range(nrows):
        e(f"v_cvt_pk_bf16_f32 {v(lo+i)}, {v(vf+i)}, 0")
        e(f"v_cvt_pk_bf16_f32 {v(hi+i)}, 0, {v(vf+i)}")
    for i in range(nrows):
        for k in range(4):
            c0 = "0" if i == 0 else v(acc + 2 * k)
            c1 = "0" if i == 0 else v(acc + 2 * k + 1)
            e(f"v_dot2_f32_bf16 {v(acc+2*k)}, {v(W+4*i+k)}, {v(lo+i)}, {c0}")
            e(f"v_dot2_f32_bf16 {v(acc+2*k+1)}, {v(W+4*i+k)}, {v(hi+i)}, {c1}")
    nop(2)

def sadd64(dst, src, imm):
    e(f"s_add_u32 s{dst}, s{src}, {imm}")
    e(f"s_addc_u32 s{dst+1}, s{src+1}, 0")

def unpack2(src, d):
    e(f"v_lshlrev_b32 {v(d)}, 16, {v(src)}")
    e(f"v_and_b32 {v(d+1)}, 0xffff0000, {v(src)}")

def gemv64(W, ldsV, ldsRW, nparts=1, pstride=0):
    e(f"ds_read_b128 v[16:19], v2 offset:{ldsV}")
    e(f"ds_read_b128 v[20:23], v2 offset:{ldsV+16}")
    for p in range(1, nparts):
        e(f"ds_read_b128 {v(24+8*(p-1),4)}, v2 offset:{ldsV+p*pstride}")
        e(f"ds_read_b128 {v(28+8*(p-1),4)}, v2 offset:{ldsV+p*pstride+16}")
    e("s_waitcnt lgkmcnt(0)")
    for p in range(1, nparts):
        for i in range(8):
            e(f"v_add_f32 {v(16+i)}, {v(16+i)}, {v(24+8*(p-1)+i)}")
    gemv_row8(W, 8, 16, 40, 24, 32)
    red8_to2(40)
    nop(0)
    dpp("v_add_f32", 40, 40, 40, "row_ror:8")
    dpp("v_add_f32", 44, 44, 44, "row_ror:8")
    set_exec(0x00ff00ff, 0x00ff00ff)
    e(f"ds_write_b32 v48, v40 offset:{ldsRW}")
    e(f"ds_write_b32 v48, v44 offset:{ldsRW+16}")
    full_exec()
def gemv64_setup():
    e("v_lshrrev_b32 v2, 3, v1")
    e("v_lshlrev_b32 v2, 5, v2")
    e("s_lshl_b32 s10, s3, 8")
    e("v_add_u32 v2, s10, v2")
    bitswap_rho(48, 3)
    e("v_and_b32 v3, 7, v1")
    e("v_lshl_add_u32 v48, v3, 3, v48")
    e("v_lshl_add_u32 v48, v48, 2, s10")
def sum64(ldsRW, dst):
    e("v_lshlrev_b32 v3, 2, v1")
    for w in range(8):
        e(f"ds_read_b32 {v(16+w)}, v3 offset:{ldsRW+256*w}")
    e("s_waitcnt lgkmcnt(0)")
    e("v_add_f32 v16, v16, v17"); e("v_add_f32 v18, v18, v19"); e("v_add_f32 v20, v20, v21"); e("v_add_f32 v22, v22, v23")
    e("v_add_f32 v16, v16, v18"); e("v_add_f32 v20, v20, v22")
    e(f"v_add_f32 {v(dst)}, v16, v20")
def load_seg64(ptr, dst, stride):
    for i in range(8):
        sadd64(12, ptr, i * stride)
        e(f"global_load_dwordx4 {v(dst+4*i,4)}, v10, s[12:13] nt")
def seg64_off():
    e("v_lshrrev_b32 v10, 3, v1")
    e("v_lshlrev_b32 v10, 16, v10")
    e("s_lshl_b32 s10, s3, 19")
    e("s_lshl_b32 s11, s48, 8")
    e("s_add_u32 s10, s10, s11")
    e("s_lshl_b32 s11, s49, 7")
    e("s_add_u32 s10, s10, s11")
    e("v_add_u32 v10, s10, v10")
    e("v_and_b32 v3, 7, v1")
    e("v_lshl_add_u32 v10, v3, 4, v10")
def out512_write(ldsO):
    e("v_lshlrev_b32 v3, 5, v1")
    e("s_lshl_b32 s10, s3, 11")
    e("v_add_u32 v3, s10, v3")
    e(f"ds_write_b128 v3, v[40:43] offset:{ldsO}")
    e(f"ds_write_b128 v3, v[44:47] offset:{ldsO+16}")
def publish512(ldsO, sbase):
    sk = uid("p")
    e("s_cmp_ge_u32 s3, 4")
    e(f"s_cbranch_scc1 {sk}")
    e("v_lshlrev_b32 v3, 3, v0")
    for w in range(8):
        e(f"ds_read_b64 {v(16+2*w,2)}, v3 offset:{ldsO+2048*w}")
    e(f"v_mov_b32 v42, {T0}")
    e(f"v_mov_b32 v43, {T1}")
    e("v_lshlrev_b32 v3, 4, v0")
    e(f"v_add_u32 v3, s{sbase}, v3")
    e("s_waitcnt lgkmcnt(0)")
    for o in (0, 1):
        e(f"v_add_f32 {v(16+o)}, {v(16+o)}, {v(18+o)}"); e(f"v_add_f32 {v(20+o)}, {v(20+o)}, {v(22+o)}")
        e(f"v_add_f32 {v(24+o)}, {v(24+o)}, {v(26+o)}"); e(f"v_add_f32 {v(28+o)}, {v(28+o)}, {v(30+o)}")
        e(f"v_add_f32 {v(16+o)}, {v(16+o)}, {v(20+o)}"); e(f"v_add_f32 {v(24+o)}, {v(24+o)}, {v(28+o)}")
        e(f"v_add_f32 {v(40+o)}, {v(16+o)}, {v(24+o)}")
    pub_exec()
    e(f"global_store_dwordx4 v3, v[40:43], {sp(WS)} sc1")
    full_exec()
    lab(sk)

def get_tags():
    e("v_readfirstlane_b32 s8, v253")
    nop(3)
    e("s_add_u32 s8, s8, 1")
    e("s_xor_b32 s93, s8, 0x5bd1e995")

def dry_begin(name):
    if NODRY:
        return
    e(f"s_mov_b64 {PM}, 0")
    e(f"s_branch {name}_crit")
    lab(f"{name}_ret")
    e(f"s_mov_b64 {PM}, -1")
def dry_end(name):
    if NODRY:
        return
    e(f"s_cmp_eq_u64 {PM}, 0")
    e(f"s_cbranch_scc1 {name}_ret")


def masks_setup(m):
    e("v_and_b32 v3, 1, v1")
    e("v_lshlrev_b32 v3, 4, v3")
    e(f"v_mov_b32 {v(m+3)}, 0xffff")
    e(f"v_lshlrev_b32 {v(m+3)}, v3, {v(m+3)}")
    e("v_bfe_u32 v3, v1, 1, 2")
    for r in range(3):
        e(f"v_cmp_eq_u32 vcc, {r}, v3")
        nop(1)
        e(f"v_cndmask_b32 {v(m+r)}, 0, {v(m+3)}, vcc")
    e("v_cmp_eq_u32 vcc, 3, v3")
    nop(1)
    e(f"v_cndmask_b32 {v(m+3)}, 0, {v(m+3)}, vcc")

def gemv64m_setup(m):
    e("v_lshrrev_b32 v2, 3, v1")
    e("v_lshlrev_b32 v2, 5, v2")
    e("s_lshl_b32 s10, s3, 8")
    e("v_add_u32 v2, s10, v2")
    e("v_and_b32 v48, 7, v1")
    e("v_lshlrev_b32 v48, 5, v48")
    e("v_and_b32 v3, 16, v1")
    e("v_add3_u32 v48, v48, v3, s10")
    masks_setup(m)

def gemv64m(W, ldsV, ldsRW, m, nl=8, va=2):
    if nl == 8:
        e(f"ds_read_b128 v[16:19], {v(va)} offset:{ldsV}")
        e(f"ds_read_b128 v[20:23], {v(va)} offset:{ldsV+16}")
    else:
        e(f"ds_read_b64 v[16:17], {v(va)} offset:{ldsV}")
    e("s_waitcnt lgkmcnt(0)")
    for i in range(nl):
        e(f"v_cvt_pk_bf16_f32 {v(16+i)}, {v(16+i)}, {v(16+i)}")
    for i in range(nl):
        a = 24 + 4 * (i % 3)
        for r in range(4):
            e(f"v_and_b32 {v(a+r)}, {v(16+i)}, {v(m+r)}")
        if i > 0:
            pa = 24 + 4 * ((i - 1) % 3)
            c = "0" if i == 1 else "v[40:43]"
            e(f"v_mfma_f32_16x16x32_bf16 v[40:43], {v(pa,4)}, {v(W+4*(i-1),4)}, {c}")
    nop(1)
    e(f"v_mfma_f32_16x16x32_bf16 v[40:43], {v(24+4*((nl-1)%3),4)}, {v(W+4*(nl-1),4)}, v[40:43]")
    nop(7)
    for r in range(4):
        e(f"v_mov_b32 {v(44+r)}, {v(40+r)}")
    nop(0)
    for r in range(4):
        e(f"v_permlane32_swap_b32 {v(40+r)}, {v(44+r)}")
    nop(0)
    for r in range(4):
        dpp("v_add_f32", 40 + r, 44 + r, 40 + r, "row_ror:8")
    set_exec(0x00ff00ff, 0)
    e(f"ds_write_b128 v48, v[40:43] offset:{ldsRW}")
    full_exec()

def tr_frags(dst, bases, njs, ntiles, jstep, tstep, half_off, jsplit=None):
    for j in range(njs):
        for t in range(ntiles):
            if jsplit is None: b, jj = bases[0], j
            else: b, jj = bases[j // jsplit], j % jsplit
            off = jj * jstep + t * tstep
            d = dst + (j * ntiles + t) * 4
            e(f"ds_read_b64_tr_b16 {v(d,2)}, {v(b)} offset:{off}")
            e(f"ds_read_b64_tr_b16 {v(d+2,2)}, {v(b)} offset:{off+half_off}")

def red4_sg(a):
    nop(1)
    e(f"v_permlane32_swap_b32 {v(a)}, {v(a+1)}")
    e(f"v_permlane32_swap_b32 {v(a+2)}, {v(a+3)}")
    e(f"v_add_f32 {v(a)}, {v(a)}, {v(a+1)}")
    e(f"v_add_f32 {v(a+2)}, {v(a+2)}, {v(a+3)}")
    nop(1)
    e(f"v_permlane16_swap_b32 {v(a)}, {v(a+2)}")
    e(f"v_add_f32 {v(a)}, {v(a)}, {v(a+2)}")

def col_of_lane(dst, t):
    bitswap_rho(dst, t)
    e(f"v_lshlrev_b32 {v(dst)}, 4, {v(dst)}")
    e(f"v_and_b32 {v(t)}, 15, v1")
    e("s_lshl_b32 s10, s3, 6")
    e(f"v_add3_u32 {v(dst)}, {v(dst)}, {v(t)}, s10")

def pub_tiles(D, addr):
    e(f"v_cvt_pk_bf16_f32 v16, {v(D)}, {v(D+4)}")
    e(f"v_cvt_pk_bf16_f32 v17, {v(D+8)}, {v(D+12)}")
    e(f"v_mov_b32 v18, {T0}")
    e(f"v_mov_b32 v19, {T1}")
    pub_exec(0xffff, 0)
    e(f"global_store_dwordx4 {v(addr)}, v[16:19], {sp(WS)} sc1")
    full_exec()

def sweep8_addr(dst, hb_sgpr):
    e(f"v_lshrrev_b32 {v(dst)}, 4, v1")
    e(f"v_lshlrev_b32 {v(dst)}, 14, {v(dst)}")
    e("v_and_b32 v3, 15, v1")
    e(f"v_lshl_add_u32 {v(dst)}, v3, 4, {v(dst)}")
    e("s_lshl_b32 s10, s3, 8")
    e(f"s_add_u32 s10, s10, s{hb_sgpr}")
    e(f"v_add_u32 {v(dst)}, s10, {v(dst)}")
    for k in range(4):
        sadd64(54 + 2 * k, WS, k * 4096)
def sweep_pending(loads, t):
    n = len(loads)
    e(f"s_mov_b32 s53, {(1 << n) - 1:#x}")
    lp, dn = uid("sw"), uid("sd")
    lab(lp)
    for i, (line, u) in enumerate(loads):
        sk = uid("sk")
        e(f"s_bitcmp1_b32 s53, {i}")
        e(f"s_cbranch_scc0 {sk}")
        e(line)
        lab(sk)
    e("s_waitcnt vmcnt(0)")
    for i, (line, u) in enumerate(loads):
        e(f"v_xor_b32 {v(t)}, {T0}, {v(u+2)}")
        e(f"v_xor_b32 {v(t+1)}, {T1}, {v(u+3)}")
        e(f"v_or_b32 {v(t)}, {v(t)}, {v(t+1)}")
        e(f"v_cmp_ne_u32 vcc, 0, {v(t)}")
        e("s_cmp_eq_u64 vcc, 0")
        e(f"s_cselect_b32 s10, {~(1 << i) & 0xffffffff:#x}, -1")
        e("s_and_b32 s53, s53, s10")
    e("s_cmp_eq_u32 s53, 0")
    e(f"s_cbranch_scc1 {dn}")
    spin_bound()
    e(f"s_branch {lp}")
    lab(dn)
def sweep8_list(addr):
    return [(f"global_load_dwordx4 {v(16+4*i,4)}, {v(addr)}, s[{54+2*(i//2)}:{55+2*(i//2)}] offset:{2048*(i%2)} sc1", 16 + 4 * i) for i in range(8)]
def sweep8_loads(addr):
    for i in range(8):
        e(f"global_load_dwordx4 {v(16+4*i,4)}, {v(addr)}, s[{54+2*(i//2)}:{55+2*(i//2)}] offset:{2048*(i%2)} sc1")

L.append(f"; @launch grid=(256,1,1) block=(512,1,1) lds={LDS_BYTES}")
L.append('.amdgcn_target "amdgcn-amd-amdhsa--gfx950"')
L.append(".text")
L.append(f".globl {NAME}_kernel")
L.append(".p2align 8")
L.append(f".type {NAME}_kernel,@function")
lab(f"{NAME}_kernel")
e("s_cmp_ge_u32 s2, 256")
e("s_cbranch_scc1 L_end")
e("s_load_dwordx16 s[16:31], s[0:1], 0")
e("s_load_dwordx16 s[32:47], s[0:1], 64")
e("v_and_b32 v1, 63, v0")
e("v_lshrrev_b32 v2, 6, v0")
e("s_and_b32 s4, s2, 7")
e("v_readfirstlane_b32 s3, v2")
e("s_lshr_b32 s5, s2, 3")
e("s_and_b32 s6, s5, 3")
e("s_lshr_b32 s7, s5, 2")
e("s_mov_b32 s9, 0")
e("s_mov_b32 s8, 0")
e("s_mov_b32 s93, 0")
e(f"s_mov_b64 {PM}, -1")
if DEBUG:
    e("s_lshl_b32 s92, s2, 8")
    e(f"s_add_u32 s92, s92, {TS:#x}")
e("s_lshr_b32 s48, s7, 1")
e("s_lshl_b32 s10, s4, 2")
e("s_add_u32 s48, s48, s10")
e("s_and_b32 s49, s7, 1")
e(f"v_mov_b32 v252, {EPOCH:#x}")
e("s_waitcnt lgkmcnt(0)")
e(f"global_load_dword v253, v252, {sp(WS)} sc1")
stamp(0)
diag(0, True)
diag(1)
if DEBUG:
    e("s_getreg_b32 s9, hwreg(HW_REG_XCC_ID)")
    stamp_s9(20)
    e("s_mov_b32 s9, 0")
e("s_cmp_eq_u32 s6, 1")
e("s_cbranch_scc1 L_roleB")
e("s_cmp_eq_u32 s6, 2")
e("s_cbranch_scc1 L_roleC")
e("s_cmp_eq_u32 s6, 3")
e("s_cbranch_scc1 L_roleA")


lab("L_roleD")
e("s_lshl_b32 s50, s7, 3")
e("s_add_u32 s50, s50, s4")
e("v_lshlrev_b32 v3, 1, v0")
e(f"global_load_ushort v8, v3, {sp(C)}")
e("s_lshr_b32 s51, s50, 4")
e("s_and_b32 s52, s50, 15")
e("v_lshrrev_b32 v10, 3, v1")
e("v_lshlrev_b32 v10, 1, v10")
e("s_lshl_b32 s10, s3, 4")
e("s_lshl_b32 s11, s51, 7")
e("s_add_u32 s10, s10, s11")
e("v_add_u32 v10, s10, v10")
e("v_lshlrev_b32 v49, 2, v10")
e("s_movk_i32 s10, 6144")
e("v_mul_lo_u32 v10, v10, s10")
e("v_and_b32 v3, 7, v1")
e("v_lshl_add_u32 v10, v3, 4, v10")
e("s_lshl_b32 s10, s52, 7")
e("v_add_u32 v10, s10, v10")
e(f"global_load_dwordx4 v[56:59], v10, {sp(WMOD)} nt")
sadd64(12, WMOD, 6144)
e("global_load_dwordx4 v[60:63], v10, s[12:13] nt")
gemv64m_setup(52)
e("s_waitcnt vmcnt(2)")
get_tags()
e("v_lshlrev_b32 v9, 16, v8")
e(f"v_mul_f32 v3, {fhex(-LOG2E)}, v9")
e("v_exp_f32 v3, v3")
nop(0)
e("v_add_f32 v3, 1.0, v3")
e("v_rcp_f32 v3, v3")
nop(0)
e("v_mul_f32 v9, v9, v3")
e("v_lshlrev_b32 v3, 2, v0")
e("ds_write_b32 v3, v9")
e("s_waitcnt vmcnt(0) lgkmcnt(0)")
e("s_barrier")
gemv64m(56, 0, 2048, 52, nl=2, va=49)
e("s_waitcnt lgkmcnt(0)")
e("s_barrier")
sk = uid("d")
e("s_cmp_lg_u32 s3, 0")
e(f"s_cbranch_scc1 {sk}")
sum64(2048, 24)
nop(1)
e("v_mov_b32_dpp v32, v24 quad_perm:[0,0,2,2] row_mask:0xf bank_mask:0xf")
e("v_mov_b32_dpp v33, v24 quad_perm:[1,1,3,3] row_mask:0xf bank_mask:0xf")
e(f"v_mov_b32 v34, {T0}")
e(f"v_mov_b32 v35, {T1}")
e("s_lshl_b32 s10, s51, 13")
e("s_lshl_b32 s11, s52, 9")
e("s_add_u32 s10, s10, s11")
e(f"s_add_u32 s10, s10, {HB1C:#x}")
e("v_lshl_add_u32 v3, v1, 3, s10")
set_exec(0x55555555, 0x55555555)
e(f"global_store_dwordx4 v3, v[32:35], {sp(WS)} sc1")
full_exec()
e("s_lshl_b32 s10, s50, 6")
e(f"s_add_u32 s10, s10, {PSA:#x}")
presignal(10, 0, 1, guard=False)
lab(sk)
stamp(1)
diag(2)
if DEBUG:
    e("s_waitcnt vmcnt(0)")
    stamp(9)
e("s_cmp_ge_u32 s50, 48")
e("s_cbranch_scc1 L_final")
e("s_cmp_ge_u32 s50, 32")
e("s_cbranch_scc1 L_ph5pre")
e("v_lshrrev_b32 v10, 3, v1")
e("v_lshlrev_b32 v10, 3, v10")
e("s_lshl_b32 s10, s3, 6")
e("v_add_u32 v10, s10, v10")
e("s_movk_i32 s10, 6144")
e("v_mul_lo_u32 v10, v10, s10")
e("v_and_b32 v3, 7, v1")
e("v_lshl_add_u32 v10, v3, 4, v10")
e("s_lshl_b32 s10, s50, 7")
e("s_add_u32 s10, s10, 2048")
e("v_add_u32 v10, s10, v10")
load_seg64(WMOD, 64, 6144)
e("s_waitcnt vmcnt(0)")
e("s_barrier")
gemv64m(64, 0, 2048, 52)
e("s_waitcnt lgkmcnt(0)")
e("s_barrier")
sk = uid("d")
e("s_cmp_lg_u32 s3, 0")
e(f"s_cbranch_scc1 {sk}")
sum64(2048, 24)
nop(1)
for k in range(4):
    e(f"v_mov_b32_dpp {v(28+k)}, v24 quad_perm:[{k},{k},{k},{k}] row_mask:0xf bank_mask:0xf")
e("v_cvt_pk_bf16_f32 v32, v28, v29")
e("v_cvt_pk_bf16_f32 v33, v30, v31")
e(f"v_mov_b32 v34, {T0}")
e(f"v_mov_b32 v35, {T1}")
e("s_lshl_b32 s10, s50, 8")
e("s_add_u32 s10, s10, 4096")
e("v_lshl_add_u32 v3, v1, 2, s10")
set_exec(0x11111111, 0x11111111)
e(f"global_store_dwordx4 v3, v[32:35], {sp(WS)} sc1")
full_exec()
lab(sk)
lab("L_ph5pre")
e("s_cmp_ge_u32 s50, 43")
e("s_cbranch_scc1 L_end")
e("s_barrier")

W1S, W2S, MODL, X1L, YL, HPL, HL = 0, 33280, 66560, 69632, 71680, 79872, 80896
e("v_lshrrev_b32 v2, 2, v1")
e("s_lshl_b32 s10, s3, 6")
e("v_add_u32 v2, s10, v2")
e("s_movk_i32 s10, 2752")
e("v_mul_lo_u32 v2, v2, s10")
e("v_and_b32 v3, 3, v1")
e("v_lshl_add_u32 v2, v3, 4, v2")
e("s_lshl_b32 s10, s50, 6")
e("v_add_u32 v2, s10, v2")
e(f"s_mul_i32 s11, s3, {4*1040}")
e(f"s_add_u32 s11, s11, {W1S}")
for i in range(4):
    sadd64(12, W1, i * 16 * 2752)
    e("s_mov_b32 m0, s11")
    nop(0)
    e("global_load_lds_dwordx4 v2, s[12:13] nt")
    e("s_add_u32 s11, s11, 1040")
e("s_lshl_b32 s10, s50, 5")
e("s_lshl_b32 s11, s3, 2")
e("s_add_u32 s10, s10, s11")
e("s_lshl_b32 s10, s10, 10")
e("v_lshlrev_b32 v2, 4, v1")
e("v_add_u32 v2, s10, v2")
e(f"s_mul_i32 s11, s3, {4*1040}")
e(f"s_add_u32 s11, s11, {W2S}")
for i in range(4):
    sadd64(12, W2, i * 1024)
    e("s_mov_b32 m0, s11")
    nop(0)
    e("global_load_lds_dwordx4 v2, s[12:13] nt")
    e("s_add_u32 s11, s11, 1040")
e("v_and_b32 v3, 31, v1")
e("s_lshl_b32 s10, s50, 6")
e("v_lshl_add_u32 v3, v3, 1, s10")
e(f"global_load_ushort v96, v3, {sp(B1)}")
col_of_lane(97, 3)
e("v_lshlrev_b32 v3, 1, v97")
e(f"global_load_ushort v98, v3, {sp(X)}")
e(f"s_mov_b32 s10, {HB1 + 4096 + 23*256}")
wave0_hint_barrier(10, 16)
skm = uid("d")
e("s_cmp_ge_u32 s3, 6")
e(f"s_cbranch_scc1 {skm}")
e("v_lshlrev_b32 v12, 4, v0")
e(f"v_add_u32 v12, {HB1 + 256*16}, v12")
lp = uid("g")
lab(lp)
e(f"global_load_dwordx4 v[16:19], v12, {sp(WS)} sc1")
e("s_waitcnt vmcnt(0)")
tagcheck([16], 40, lp)
e("v_lshlrev_b32 v3, 3, v0")
e(f"ds_write_b64 v3, v[16:17] offset:{MODL}" if MODL < 65536 else "")
if MODL >= 65536:
    L.pop()
    e(f"v_add_u32 v3, {MODL}, v3")
    e("ds_write_b64 v3, v[16:17]")
lab(skm)
e("s_waitcnt vmcnt(0) lgkmcnt(0)")
e("s_barrier")
e("v_lshrrev_b32 v2, 5, v1")
e("s_lshl_b32 s10, s3, 2")
e("v_add_u32 v2, s10, v2")
e("s_movk_i32 s10, 1040")
e("v_mul_lo_u32 v2, v2, s10")
e("v_bfe_u32 v3, v1, 4, 1")
e("v_lshl_add_u32 v2, v3, 9, v2")
e("v_bfe_u32 v3, v1, 2, 2")
e("v_lshl_add_u32 v2, v3, 6, v2")
e("v_and_b32 v3, 3, v1")
e("v_lshl_add_u32 v2, v3, 3, v2")
tr_frags(64, [2], 2, 2, 2 * 1040, 32, 256)
e("v_lshrrev_b32 v2, 4, v1")
e("v_lshlrev_b32 v2, 3, v2")
e("v_bfe_u32 v3, v1, 2, 2")
e("v_add_u32 v2, v2, v3")
e("v_mul_lo_u32 v2, v2, s10")
e("v_and_b32 v3, 3, v1")
e("v_lshl_add_u32 v2, v3, 3, v2")
e("s_lshl_b32 s11, s3, 7")
e(f"s_add_u32 s11, s11, {W2S}")
e("v_add_u32 v2, s11, v2")
tr_frags(80, [2], 1, 4, 0, 32, 4 * 1040)
e("v_lshlrev_b32 v3, 1, v97")
e(f"v_add_u32 v3, {MODL}, v3")
e("ds_read_u16 v99, v3")
e("v_lshlrev_b32 v3, 4, v1")
e(f"v_add_u32 v3, {MODL}, v3")
e("ds_read_b128 v[16:19], v3 offset:1024")
e("ds_read_b128 v[20:23], v3 offset:2048")
e("s_waitcnt lgkmcnt(0)")
for k in range(4):
    unpack2(16 + k, 100 + 2 * k)
    unpack2(20 + k, 108 + 2 * k)
for d in range(108, 116):
    e(f"v_add_f32 {v(d)}, 1.0, {v(d)}")
for d in (96, 98, 99):
    e(f"v_lshlrev_b32 {v(d)}, 16, {v(d)}")
e(f"s_mov_b32 s51, {HB4A:#x}")
sweep8_addr(52, 51)
e("v_lshlrev_b32 v53, 2, v97")
e(f"v_add_u32 v53, {X1L}, v53")
e("v_lshlrev_b32 v54, 5, v1")
e(f"v_add_u32 v54, {X1L}, v54")
e("s_lshl_b32 s10, s3, 10")
e(f"s_add_u32 s10, s10, {YL}")
e("v_lshl_add_u32 v55, v1, 4, s10")
e("v_lshrrev_b32 v3, 4, v1")
e("s_lshl_b32 s11, s3, 7")
e("s_add_u32 s10, s10, s11")
e("v_lshl_add_u32 v56, v3, 4, s10")
e("v_and_b32 v3, 15, v1")
e("s_lshl_b32 s10, s3, 7")
e(f"s_add_u32 s10, s10, {HPL}")
e("v_lshl_add_u32 v57, v3, 2, s10")
e("v_and_b32 v3, 31, v1")
e("v_lshlrev_b32 v58, 2, v3")
e(f"v_add_u32 v58, {HPL}, v58")
e("s_lshl_b32 s10, s3, 6")
e(f"s_add_u32 s10, s10, {HL}")
e("v_lshl_add_u32 v59, v3, 1, s10")
e("v_lshrrev_b32 v3, 4, v1")
e("v_lshl_add_u32 v60, v3, 4, s10")
e("v_and_b32 v3, 15, v1")
e("s_lshl_b32 s10, s50, 11")
e("s_lshl_b32 s11, s3, 8")
e("s_add_u32 s10, s10, s11")
e(f"s_add_u32 s10, s10, {HB6:#x}")
e("v_lshl_add_u32 v61, v3, 4, s10")
def _p():
    e("s_lshl_b32 s10, s50, 10")
    e(f"s_add_u32 s10, s10, {PS4:#x}")
    e("v_lshl_add_u32 v20, v1, 4, s10")
wave0_multi_barrier(_p, 0xffffffff, 0xffffffff, 16)
stamp(2)
sweep_pending(sweep8_list(52), 120)
stamp(8)
for i in range(8):
    u = 16 + 4 * i
    for (src, a) in ((u, 120), (u + 1, 122)):
        if i == 0:
            unpack2(src, a)
        else:
            e(f"v_lshlrev_b32 v124, 16, {v(src)}")
            e(f"v_and_b32 v125, 0xffff0000, {v(src)}")
            e(f"v_add_f32 {v(a)}, {v(a)}, v124")
            e(f"v_add_f32 {v(a+1)}, {v(a+1)}, v125")
red4_sg(120)
e("v_fma_f32 v120, v99, v120, v98")
e("v_cvt_pk_bf16_f32 v120, v120, v120")
e("v_lshlrev_b32 v120, 16, v120")
e("ds_write_b32 v53, v120")
e("s_waitcnt lgkmcnt(0)")
e("s_barrier")
e("ds_read_b128 v[16:19], v54")
e("ds_read_b128 v[20:23], v54 offset:16")
e("s_waitcnt lgkmcnt(0)")
def ln8():
    e("v_readfirstlane_b32 s10, v16")
    nop(1)
    for r in range(16, 24): e(f"v_subrev_f32 {v(r)}, s10, {v(r)}")
    e("v_add_f32 v40, v16, v17")
    e("v_mul_f32 v42, v16, v16")
    for r in range(18, 24): e(f"v_add_f32 v40, v40, {v(r)}")
    for r in range(17, 24): e(f"v_fmac_f32 v42, {v(r)}, {v(r)}")
    for r_ in (8, 4, 2, 1):
        nop(0)
        dpp("v_add_f32", 40, 40, 40, f"row_ror:{r_}")
        dpp("v_add_f32", 42, 42, 42, f"row_ror:{r_}")
    for sw in ("v_permlane16_swap_b32", "v_permlane32_swap_b32"):
        e("v_mov_b32 v41, v40")
        e("v_mov_b32 v43, v42")
        nop(0)
        e(f"{sw} v41, v40")
        e(f"{sw} v43, v42")
        e("v_add_f32 v40, v40, v41")
        e("v_add_f32 v42, v42, v43")
    e(f"v_mul_f32 v40, {fhex(1/512)}, v40")
    e(f"v_mul_f32 v42, {fhex(1/512)}, v42")
    e("v_fma_f32 v42, -v40, v40, v42")
    e("v_max_f32 v42, 0, v42")
    e(f"v_add_f32 v42, {fhex(1e-5)}, v42")
    e("v_rsq_f32 v42, v42")
    for r in range(16, 24): e(f"v_sub_f32 {v(r)}, {v(r)}, v40")
    for r in range(16, 24): e(f"v_mul_f32 {v(r)}, {v(r)}, v42")
ln8()
for i in range(8):
    e(f"v_fma_f32 {v(16+i)}, {v(16+i)}, {v(108+i)}, {v(100+i)}")
nop(0)
ln8()
for k in range(4):
    e(f"v_cvt_pk_bf16_f32 {v(24+k)}, {v(16+2*k)}, {v(17+2*k)}")
e("ds_write_b128 v55, v[24:27]")
e("s_waitcnt lgkmcnt(0)")
e("ds_read_b128 v[16:19], v56")
e("ds_read_b128 v[20:23], v56 offset:64")
e("s_waitcnt lgkmcnt(1)")
e("v_mfma_f32_16x16x32_bf16 v[24:27], v[16:19], v[64:67], 0")
e("v_mfma_f32_16x16x32_bf16 v[28:31], v[16:19], v[68:71], 0")
e("s_waitcnt lgkmcnt(0)")
e("v_mfma_f32_16x16x32_bf16 v[24:27], v[20:23], v[72:75], v[24:27]")
e("v_mfma_f32_16x16x32_bf16 v[28:31], v[20:23], v[76:79], v[28:31]")
nop(7)
set_exec(0xffff, 0)
e("ds_write_b32 v57, v24")
e("ds_write_b32 v57, v28 offset:64")
full_exec()
e("s_waitcnt lgkmcnt(0)")
e("s_barrier")
for w in range(8):
    e(f"ds_read_b32 {v(16+w)}, v58 offset:{128*w}")
e("s_waitcnt lgkmcnt(0)")
e("v_add_f32 v16, v16, v17"); e("v_add_f32 v18, v18, v19"); e("v_add_f32 v20, v20, v21"); e("v_add_f32 v22, v22, v23")
e("v_add_f32 v16, v16, v18"); e("v_add_f32 v20, v20, v22")
e("v_add3_u32 v24, 0, 0, 0") if False else None
e("v_add_f32 v24, v16, v20")
K1 = -2 * 0.7978845608028654 * LOG2E
e("v_add_f32 v24, v24, v96")
e("v_mul_f32 v20, v24, v24")
e(f"v_mul_f32 v20, {fhex(0.044715)}, v20")
e("v_fma_f32 v20, v20, v24, v24")
e(f"v_mul_f32 v20, {fhex(K1)}, v20")
e("v_exp_f32 v20, v20")
nop(0)
e("v_add_f32 v20, 1.0, v20")
e("v_rcp_f32 v20, v20")
nop(0)
e("v_mul_f32 v24, v24, v20")
e("v_cvt_pk_bf16_f32 v24, v24, v24")
e("ds_write_b16 v59, v24")
e("s_waitcnt lgkmcnt(0)")
e("ds_read_b128 v[16:19], v60")
e("s_waitcnt lgkmcnt(0)")
for t in range(4):
    e(f"v_mfma_f32_16x16x32_bf16 {v(24+4*t,4)}, v[16:19], {v(80+4*t,4)}, 0")
nop(7)
pub_tiles(24, 61)
stamp(3)
diag(7)
e("s_branch L_end")

lab("L_final")
e("s_barrier")
e("s_sub_u32 s52, s50, 48")
e("v_lshrrev_b32 v3, 3, v0")
e("v_lshlrev_b32 v72, 11, v3")
e("v_and_b32 v2, 7, v0")
e("v_lshl_add_u32 v72, v2, 4, v72")
e("s_lshl_b32 s10, s52, 7")
e("v_add_u32 v72, s10, v72")
e("v_cmp_gt_u32 vcc, 32, v3")
e("s_mov_b64 s[54:55], vcc")
e("v_cmp_gt_u32 vcc, 43, v3")
e("s_mov_b64 s[56:57], vcc")
bitswap_rho(48, 3)
e("v_lshl_add_u32 v48, v2, 2, v48")
e("s_lshl_b32 s10, s3, 7")
e("v_lshl_add_u32 v48, v48, 2, s10")
e("v_and_b32 v3, 3, v1")
e("v_lshlrev_b32 v70, 4, v3")
e("v_bfe_u32 v3, v1, 2, 3")
e("v_add_u32 v70, v70, v3")
e("s_lshr_b32 s10, s52, 1")
e("s_lshl_b32 s10, s10, 6")
e("s_and_b32 s11, s52, 1")
e("s_lshl_b32 s11, s11, 3")
e("s_add_u32 s10, s10, s11")
e("v_add_u32 v70, s10, v70")
e("v_lshlrev_b32 v71, 1, v70")
e(f"global_load_ushort v64, v71, {sp(X)}")
e(f"global_load_ushort v65, v71, {sp(B2)}")
e("s_waitcnt vmcnt(0)")
get_tags()
skr = uid("d")
e("s_cmp_lg_u32 s3, 0")
e(f"s_cbranch_scc1 {skr}")
e(f"s_mov_b32 s10, {HB1 + 4096 + 31*256}")
hint_wait(10, 16)
e("v_lshrrev_b32 v3, 2, v70")
e("v_lshlrev_b32 v3, 4, v3")
e(f"v_add_u32 v10, {HB1 + 256*16}, v3")
e(f"v_add_u32 v11, {HB1 + 640*16}, v3")
lp = uid("g")
lab(lp)
e(f"global_load_dwordx4 v[16:19], v10, {sp(WS)} sc1")
e(f"global_load_dwordx4 v[20:23], v11, {sp(WS)} sc1")
e("s_waitcnt vmcnt(0)")
tagcheck([16, 20], 40, lp)
e("v_and_b32 v3, 2, v70")
e("v_cmp_ne_u32 vcc, 0, v3")
nop(1)
e("v_cndmask_b32 v66, v16, v17, vcc")
e("v_cndmask_b32 v67, v20, v21, vcc")
e("v_and_b32 v3, 1, v70")
e("v_lshlrev_b32 v3, 4, v3")
e("v_lshrrev_b32 v66, v3, v66")
e("v_lshrrev_b32 v67, v3, v67")
for d in (64, 65, 66, 67):
    e(f"v_lshlrev_b32 {v(d)}, 16, {v(d)}")
lab(skr)
def fin_gather(hb, mask, ldsoff):
    e(f"v_add_u32 v10, {hb:#x}, v72")
    e("v_mov_b32 v16, 0"); e("v_mov_b32 v17, 0"); e(f"v_mov_b32 v18, {T0}"); e(f"v_mov_b32 v19, {T1}")
    lp = uid("g"); sk = uid("r")
    e(f"s_cmp_eq_u64 {mask}, 0")
    e(f"s_cbranch_scc1 {sk}")
    lab(lp)
    e(f"s_mov_b64 exec, {mask}")
    e(f"global_load_dwordx4 v[16:19], v10, {sp(WS)} sc1")
    full_exec()
    e("s_waitcnt vmcnt(0)")
    tagcheck([16], 40, lp)
    lab(sk)
    unpack2(16, 20); unpack2(17, 22)
    red4_sg(20)
    nop(1)
    dpp("v_add_f32", 20, 20, 20, "row_ror:8")
    set_exec(0x00ff00ff, 0x00ff00ff)
    e(f"ds_write_b32 v48, v20 offset:{ldsoff}")
    full_exec()
    e("s_waitcnt lgkmcnt(0)")
    e("s_barrier")
    e("s_cmp_lg_u32 s3, 0")
    skw = uid("rw")
    e(f"s_cbranch_scc1 {skw}")
    e("v_and_b32 v3, 31, v1")
    e("v_lshlrev_b32 v3, 2, v3")
    for w in range(8):
        e(f"ds_read_b32 {v(24+w)}, v3 offset:{ldsoff+128*w}")
    e("s_waitcnt lgkmcnt(0)")
    e("v_add_f32 v24, v24, v25"); e("v_add_f32 v26, v26, v27"); e("v_add_f32 v28, v28, v29"); e("v_add_f32 v30, v30, v31")
    e("v_add_f32 v24, v24, v26"); e("v_add_f32 v28, v28, v30"); e("v_add_f32 v16, v24, v28")
    return skw
def _f():
    e("s_add_u32 s10, s52, 43")
    e("s_lshl_b32 s10, s10, 10")
    e(f"s_add_u32 s10, s10, {PS4:#x}")
    e("v_lshl_add_u32 v20, v1, 4, s10")
wave0_multi_barrier(_f, 0xffffffff, 0xffffffff, 16)
skw = fin_gather(HB4A, "s[54:55]", 0)
e("v_fma_f32 v68, v66, v16, v64")
e("v_cvt_pk_bf16_f32 v68, v68, v68")
e("v_lshlrev_b32 v68, 16, v68")
lab(skw)
stamp(3)
skw = fin_gather(HB6, "s[56:57]", 1024)
e("v_add_f32 v16, v16, v65")
e("v_fma_f32 v16, v67, v16, v68")
e("v_cvt_pk_bf16_f32 v16, v16, v16")
set_exec(0xffffffff, 0)
e(f"global_store_short v71, v16, {sp(OUT)}")
e("s_cmp_lg_u32 s52, 0")
e(f"s_cbranch_scc1 {skw}")
set_exec(1, 0)
e(f"v_mov_b32 v3, {EPOCH:#x}")
e(f"v_mov_b32 v24, {T0}")
e(f"global_store_dword v3, v24, {sp(WS)} sc1")
lab(skw)
full_exec()
stamp(5)
diag(8)
e("s_branch L_end")

lab("L_roleB")
e("s_lshl_b32 s50, s48, 1")
e("s_add_u32 s50, s50, s49")
e("s_lshl_b32 s50, s50, 11")
e(f"s_add_u32 s50, s50, {HB2:#x}")
e("s_cmp_ge_u32 s3, 4")
e("s_cbranch_scc1 L_Bload")
e("v_lshlrev_b32 v2, 4, v1")
e(f"global_load_dwordx4 v[128:131], v2, {sp(X)}")
e("v_lshlrev_b32 v2, 2, v0")
e(f"global_load_dword v132, v2, {sp(X)}")
e("s_waitcnt vmcnt(0)")
get_tags()
for k in range(4): unpack2(128 + k, 16 + 2 * k)
unpack2(132, 134)
e("v_add_f32 v40, v16, v17")
for r in range(18, 24): e(f"v_add_f32 v40, v40, {v(r)}")
wave_red("v_add_f32", 40, 41)
e(f"v_mul_f32 v40, {fhex(1/512)}, v40")
for r in list(range(16, 24)) + [134, 135]: e(f"v_sub_f32 {v(r)}, {v(r)}, v40")
e("v_mul_f32 v42, v16, v16")
for r in range(17, 24): e(f"v_fmac_f32 v42, {v(r)}, {v(r)}")
wave_red("v_add_f32", 42, 41)
e(f"v_mov_b32 v41, {fhex(1e-5)}")
e(f"v_fmac_f32 v41, {fhex(1/512)}, v42")
e("v_rsq_f32 v41, v41")
nop(0)
for r in (134, 135): e(f"v_mul_f32 {v(r)}, {v(r)}, v41")
stamp(5)
e("s_lshl_b32 s10, s48, 11")
e("s_lshl_b32 s11, s49, 10")
e("s_add_u32 s10, s10, s11")
e(f"s_add_u32 s10, s10, {PS1:#x}")
stamp(3)
e("v_lshlrev_b32 v3, 4, v0")
e(f"v_add_u32 v3, {HB1C:#x}, v3")
for k in range(4):
    sadd64(54 + 2 * k, WS, k * 8192)
    sadd64(62 + 2 * k, WS, k * 8192 + 4096)
_ld = []
for k in range(4):
    _ld.append((f"global_load_dwordx4 {v(16+4*k,4)}, v3, s[{54+2*k}:{55+2*k}] sc1", 16 + 4 * k))
    _ld.append((f"global_load_dwordx4 {v(32+4*k,4)}, v3, s[{62+2*k}:{63+2*k}] sc1", 32 + 4 * k))
sweep_pending(_ld, 136)
stamp(6)
for base in (16, 32):
    for o in (0, 1):
        e(f"v_add_f32 {v(base+o)}, {v(base+o)}, {v(base+4+o)}")
        e(f"v_add_f32 {v(base+8+o)}, {v(base+8+o)}, {v(base+12+o)}")
        e(f"v_add_f32 {v(base+o)}, {v(base+o)}, {v(base+8+o)}")
    e(f"v_cvt_pk_bf16_f32 {v(base)}, {v(base)}, {v(base+1)}")
    unpack2(base, base + 2)
for o in (0, 1):
    e(f"v_fma_f32 {v(34+o)}, {v(134+o)}, {v(34+o)}, {v(134+o)}")
    e(f"v_add_f32 {v(34+o)}, {v(34+o)}, {v(18+o)}")
e("v_lshlrev_b32 v3, 3, v0")
e("ds_write_b64 v3, v[34:35]")
stamp(4)
e("s_waitcnt lgkmcnt(0)")
e("s_barrier")
stamp(1)
e("s_barrier")
lab("L_B2")
e("v_lshlrev_b32 v3, 2, v1")
for w in range(4):
    e(f"ds_read_b32 {v(16+w)}, v3 offset:{2048+256*w}")
WK = 8192
e("s_lshl_b32 s10, s3, 7")
e("v_lshl_add_u32 v56, v1, 1, s10")
e("v_lshrrev_b32 v3, 4, v1")
e("v_lshl_add_u32 v57, v3, 4, s10")
e("s_lshl_b32 s10, s3, 8")
e("s_add_u32 s10, s10, s50")
e("v_lshl_add_u32 v58, v3, 4, s10")
e("v_bfe_u32 v3, v1, 3, 1")
e("s_lshl_b32 s10, s3, 3")
e("v_add_u32 v3, s10, v3")
e("s_movk_i32 s10, 1040")
e("v_mul_lo_u32 v59, v3, s10")
e("v_and_b32 v3, 7, v1")
e("v_lshl_add_u32 v59, v3, 7, v59")
e("v_lshrrev_b32 v11, 4, v1")
e("v_xor_b32 v3, v3, v11")
e(f"v_add_u32 v59, {WK}, v59")
e("v_xor_b32 v11, 4, v3")
e("v_lshl_add_u32 v60, v11, 4, v59")
e("v_lshl_add_u32 v59, v3, 4, v59")
e("s_waitcnt lgkmcnt(0)")
e("v_add_f32 v16, v16, v17"); e("v_add_f32 v18, v18, v19")
e("v_add_f32 v24, v16, v18")
e("v_cvt_pk_bf16_f32 v24, v24, v24")
e("ds_write_b16 v56, v24 offset:4096")
e("s_lshr_b32 s10, s48, 4")
e("s_lshl_b32 s10, s10, 9")
e("s_and_b32 s11, s48, 15")
e("s_lshl_b32 s11, s11, 5")
e("s_add_u32 s10, s10, s11")
e("s_lshl_b32 s11, s49, 4")
e("s_add_u32 s10, s10, s11")
e(f"s_add_u32 s10, s10, {PSQ:#x}")
presignal(10, 10, 32)
stamp(2)
diag(3)
e("s_waitcnt lgkmcnt(0)")
e("ds_read_b128 v[16:19], v57 offset:4096")
e("ds_read_b128 v[20:23], v57 offset:4160")
e("s_cmp_lt_u32 s3, 4")
sk = uid("b")
e(f"s_cbranch_scc1 {sk}")
e("s_waitcnt vmcnt(0)")
lab(sk)
e("s_barrier")
stamp(7)
for rt in range(4):
    e(f"ds_read_b128 {v(96+8*rt,4)}, v59 offset:{2080*rt}")
    e(f"ds_read_b128 {v(100+8*rt,4)}, v60 offset:{2080*rt}")
for rt in range(4):
    e(f"s_waitcnt lgkmcnt({6-2*rt})")
    e(f"v_mfma_f32_16x16x32_bf16 {v(24+4*rt,4)}, {v(96+8*rt,4)}, v[16:19], 0")
    e(f"v_mfma_f32_16x16x32_bf16 {v(24+4*rt,4)}, {v(100+8*rt,4)}, v[20:23], {v(24+4*rt,4)}")
nop(7)
set_exec(0x00010001, 0x00010001)
for rt in range(4):
    d = 64 + 4 * rt
    e(f"v_cvt_pk_bf16_f32 {v(d)}, {v(24+4*rt)}, {v(25+4*rt)}")
    e(f"v_cvt_pk_bf16_f32 {v(d+1)}, {v(26+4*rt)}, {v(27+4*rt)}")
    e(f"v_mov_b32 {v(d+2)}, {T0}")
    e(f"v_mov_b32 {v(d+3)}, {T1}")
    e(f"global_store_dwordx4 v58, {v(d,4)}, {sp(WS)} offset:{64*rt} sc1")
full_exec()
stamp(9)
diag(4)
e("s_branch L_end")
lab("L_Bload")
e("s_sub_u32 s51, s3, 4")
e("v_lshrrev_b32 v10, 3, v1")
e("v_lshlrev_b32 v10, 17, v10")
e("s_lshl_b32 s10, s51, 20")
e("s_lshl_b32 s11, s48, 8")
e("s_add_u32 s10, s10, s11")
e("s_lshl_b32 s11, s49, 7")
e("s_add_u32 s10, s10, s11")
e("v_add_u32 v10, s10, v10")
e("v_and_b32 v3, 7, v1")
e("v_lshl_add_u32 v10, v3, 4, v10")
for i in range(16):
    sadd64(12, WQ, i * 8192)
    e(f"global_load_dwordx4 {v(64+4*i,4)}, v10, s[12:13] nt")
e("v_lshrrev_b32 v3, 3, v1")
e("v_lshlrev_b32 v10, 13, v3")
e("v_and_b32 v11, 7, v1")
e("v_xor_b32 v11, v11, v3")
e("v_lshl_add_u32 v10, v11, 4, v10")
e("s_lshl_b32 s10, s51, 20")
e("s_lshl_b32 s11, s48, 8")
e("s_add_u32 s10, s10, s11")
e("s_lshl_b32 s11, s49, 7")
e("s_add_u32 s10, s10, s11")
e("v_add_u32 v10, s10, v10")
e(f"s_mul_i32 s11, s51, {16*1040}")
e("s_add_u32 s11, s11, 8192")
for i in range(16):
    sadd64(12, WUK, i * 8 * 8192)
    e("s_mov_b32 m0, s11")
    nop(0)
    e("global_load_lds_dwordx4 v10, s[12:13] nt")
    e("s_add_u32 s11, s11, 1040")
masks_setup(52)
e("v_lshrrev_b32 v2, 3, v1")
e("v_lshlrev_b32 v2, 6, v2")
e("s_lshl_b32 s10, s51, 9")
e("v_add_u32 v2, s10, v2")
e("v_and_b32 v48, 7, v1")
e("v_lshlrev_b32 v48, 5, v48")
e("v_and_b32 v3, 16, v1")
e("s_lshl_b32 s10, s51, 8")
e("v_add3_u32 v48, v48, v3, s10")
e("s_waitcnt vmcnt(16)")
get_tags()
e("s_barrier")
for k in range(4):
    e(f"ds_read_b128 {v(136+4*k,4)}, v2 offset:{16*k}")
e("s_waitcnt lgkmcnt(0)")
for i in range(16):
    e(f"v_cvt_pk_bf16_f32 {v(136+i)}, {v(136+i)}, {v(136+i)}")
for i in range(16):
    a_ = 24 + 4 * (i % 3)
    for r in range(4):
        e(f"v_and_b32 {v(a_+r)}, {v(136+i)}, {v(52+r)}")
    if i > 0:
        pa = 24 + 4 * ((i - 1) % 3)
        c = "0" if i == 1 else "v[40:43]"
        e(f"v_mfma_f32_16x16x32_bf16 v[40:43], {v(pa,4)}, {v(64+4*(i-1),4)}, {c}")
nop(1)
e(f"v_mfma_f32_16x16x32_bf16 v[40:43], {v(24+4*(15%3),4)}, {v(64+60,4)}, v[40:43]")
nop(7)
for r in range(4):
    e(f"v_mov_b32 {v(44+r)}, {v(40+r)}")
nop(0)
for r in range(4):
    e(f"v_permlane32_swap_b32 {v(40+r)}, {v(44+r)}")
nop(0)
for r in range(4):
    dpp("v_add_f32", 40 + r, 44 + r, 40 + r, "row_ror:8")
set_exec(0x00ff00ff, 0)
e("ds_write_b128 v48, v[40:43] offset:2048")
full_exec()
e("s_waitcnt lgkmcnt(0)")
e("s_barrier")
e("s_branch L_B2")

CK_ROW = 1040
QA = 128 * CK_ROW
PB = QA + 16 * CK_ROW
MX = PB + 16 * 272
lab("L_roleC")
e("v_lshrrev_b32 v2, 4, v1")
e("v_lshlrev_b32 v50, 18, v2")
e("v_and_b32 v3, 15, v1")
e("v_lshl_add_u32 v50, v3, 4, v50")
e("s_lshl_b32 s10, s49, 20")
e("s_lshl_b32 s11, s48, 11")
e("s_add_u32 s10, s10, s11")
e("s_lshl_b32 s11, s3, 8")
e("s_add_u32 s10, s10, s11")
e(f"s_add_u32 s10, s10, {HB3:#x}")
e("v_add_u32 v50, s10, v50")
for r in range(4):
    sadd64(54 + 2 * r, WS, r * 65536)
e("v_lshlrev_b32 v51, 9, v1")
e("s_lshl_b32 s10, s49, 13")
e("s_lshl_b32 s11, s48, 4")
e("s_add_u32 s10, s10, s11")
e(f"s_add_u32 s10, s10, {HB3ML:#x}")
e("v_add_u32 v51, s10, v51")
e("v_and_b32 v2, 127, v0")
e("v_lshlrev_b32 v52, 4, v2")
e("s_lshr_b32 s10, s3, 1")
e("s_lshl_b32 s11, s49, 4")
e("s_add_u32 s11, s11, s10")
e("s_lshl_b32 s11, s11, 12")
e(f"s_add_u32 s11, s11, {HB2:#x}")
e("v_add_u32 v52, s11, v52")
e(f"s_mul_i32 s10, s10, {CK_ROW}")
e("v_lshlrev_b32 v53, 3, v2")
e("v_add_u32 v53, s10, v53")
e(f"v_add_u32 v53, {QA}, v53")
for i in range(4):
    sadd64(62 + 2 * i, WS, i * 16384)
e("v_and_b32 v2, 15, v1")
e(f"s_movk_i32 s10, {CK_ROW}")
e("v_mul_lo_u32 v49, v2, s10")
e("v_lshrrev_b32 v3, 4, v1")
e("v_lshl_add_u32 v49, v3, 4, v49")
e(f"v_add_u32 v49, {QA}, v49")
e("v_lshlrev_b32 v54, 5, v2")
e(f"v_add_u32 v54, {MX}, v54")
e("s_lshl_b32 s10, s3, 2")
e("v_add_u32 v58, s10, v54")
e("s_movk_i32 s10, 272")
e("v_mul_lo_u32 v56, v2, s10")
e(f"v_add_u32 v56, {PB}, v56")
e("v_lshl_add_u32 v55, v3, 3, v56")
e("s_lshl_b32 s10, s3, 5")
e("v_add_u32 v55, s10, v55")
e("v_lshl_add_u32 v56, v3, 4, v56")
e("v_lshlrev_b32 v2, 4, v1")
e("s_lshl_b32 s10, s48, 17")
e("s_lshl_b32 s11, s3, 14")
e("s_add_u32 s10, s10, s11")
e(f"s_add_u32 s12, s{CKV}, s10")
e(f"s_addc_u32 s13, s{CKV+1}, 0")
e(f"s_mul_i32 s11, s3, {16*CK_ROW}")
for i in range(16):
    e("s_mov_b32 m0, s11")
    e("s_nop 0")
    e("global_load_lds_dwordx4 v2, s[12:13] nt")
    if i < 15:
        e("s_add_u32 s12, s12, 1024")
        e("s_addc_u32 s13, s13, 0")
        e(f"s_add_u32 s11, s11, {CK_ROW}")
e("s_waitcnt vmcnt(0)")
get_tags()
e("s_barrier")
stamp(4)
diag(9)
e("v_and_b32 v2, 15, v1")
e("s_lshl_b32 s10, s3, 4")
e("v_add_u32 v2, s10, v2")
e(f"s_movk_i32 s10, {CK_ROW}")
e("v_mul_lo_u32 v2, v2, s10")
e("v_lshrrev_b32 v3, 4, v1")
e("v_lshl_add_u32 v2, v3, 4, v2")
for j in range(16):
    e(f"ds_read_b128 {v(64+4*j,4)}, v2 offset:{64*j}")
e("v_lshrrev_b32 v2, 4, v1")
e("v_lshlrev_b32 v2, 3, v2")
e("v_and_b32 v3, 15, v1")
e("v_lshrrev_b32 v3, 2, v3")
e("v_add_u32 v2, v2, v3")
e("v_mul_lo_u32 v2, v2, s10")
e("v_and_b32 v3, 3, v1")
e("v_lshl_add_u32 v2, v3, 3, v2")
e("s_lshl_b32 s11, s3, 7")
e("v_add_u32 v2, s11, v2")
e(f"v_add_u32 v3, {64*CK_ROW}, v2")
for j in range(4):
    for jj in range(4):
        base = 2 if j < 2 else 3
        off = (j % 2) * 32 * CK_ROW + jj * 32
        d = 128 + (j * 4 + jj) * 4
        e(f"ds_read_b64_tr_b16 {v(d,2)}, {v(base)} offset:{off}")
        e(f"ds_read_b64_tr_b16 {v(d+2,2)}, {v(base)} offset:{off+4*CK_ROW}")
e("s_waitcnt lgkmcnt(0)")
def _c():
    e("s_lshl_b32 s10, s48, 10")
    e("s_lshl_b32 s11, s49, 9")
    e("s_add_u32 s10, s10, s11")
    e(f"s_add_u32 s10, s10, {PSQ:#x}")
    e("v_lshl_add_u32 v20, v1, 4, s10")
wave0_multi_barrier(_c, 0xffffffff, 0, 16)
stamp(1)
_ld = []
for i in range(4):
    _ld.append((f"global_load_dwordx4 {v(16+8*i,4)}, v52, s[{62+2*i}:{63+2*i}] sc1", 16 + 8 * i))
    _ld.append((f"global_load_dwordx4 {v(20+8*i,4)}, v52, s[{62+2*i}:{63+2*i}] offset:2048 sc1", 20 + 8 * i))
sweep_pending(_ld, 192)
stamp(3)
for i in range(4):
    a_, b_ = 16 + 8 * i, 20 + 8 * i
    for k in (0, 1):
        e(f"v_lshlrev_b32 v2, 16, {v(a_+k)}")
        e(f"v_lshlrev_b32 v3, 16, {v(b_+k)}")
        e("v_add_f32 v2, v2, v3")
        e(f"v_and_b32 v3, 0xffff0000, {v(a_+k)}")
        e(f"v_and_b32 v57, 0xffff0000, {v(b_+k)}")
        e("v_add_f32 v3, v3, v57")
        e(f"v_cvt_pk_bf16_f32 {v(a_+k)}, v2, v3")
    e(f"ds_write_b64 v53, {v(a_,2)} offset:{i*4*CK_ROW}")
e("s_waitcnt lgkmcnt(0)")
stamp(5)
e("s_barrier")
stamp(6)
for j in range(16):
    e(f"ds_read_b128 {v(192+4*j,4)}, v49 offset:{64*j}")
for j in range(16):
    e(f"s_waitcnt lgkmcnt({15-j})")
    c = "0" if j == 0 else "v[16:19]"
    e(f"v_mfma_f32_16x16x32_bf16 v[16:19], {v(64+4*j,4)}, {v(192+4*j,4)}, {c}")
nop(7)
SCL = 128 ** -0.5 * LOG2E
for r in range(4): e(f"v_mul_f32 {v(16+r)}, {fhex(SCL)}, {v(16+r)}")
e("v_max_f32 v20, v16, v17")
e("v_max3_f32 v20, v20, v18, v19")
e("v_mov_b32 v21, v20")
nop(1)
e("v_permlane16_swap_b32 v21, v20")
e("v_max_f32 v20, v20, v21")
e("v_mov_b32 v21, v20")
nop(1)
e("v_permlane32_swap_b32 v21, v20")
e("v_max_f32 v20, v20, v21")
set_exec(0xffff, 0)
e("ds_write_b32 v58, v20")
full_exec()
e("s_waitcnt lgkmcnt(0)")
stamp(7)
e("s_barrier")
stamp(8)
e("s_lshl_b32 s10, s49, 13")
e("s_lshl_b32 s11, s48, 4")
e("s_add_u32 s10, s10, s11")
e(f"s_add_u32 s10, s10, {PS3:#x}")
presignal(10, 9, 16)
e("ds_read_b128 v[24:27], v54")
e("ds_read_b128 v[28:31], v54 offset:16")
e("s_waitcnt lgkmcnt(0)")
e("v_max3_f32 v20, v24, v25, v26")
e("v_max3_f32 v20, v20, v27, v28")
e("v_max3_f32 v20, v20, v29, v30")
e("v_max_f32 v20, v20, v31")
for r in range(4):
    e(f"v_sub_f32 {v(16+r)}, {v(16+r)}, v20")
for r in range(4):
    e(f"v_exp_f32 {v(16+r)}, {v(16+r)}")
nop(0)
e("v_cvt_pk_bf16_f32 v22, v16, v17")
e("v_cvt_pk_bf16_f32 v23, v18, v19")
e("ds_write_b64 v55, v[22:23]")
e("v_add_f32 v16, v16, v17")
e("v_add_f32 v18, v18, v19")
e("v_add_f32 v16, v16, v18")
e("v_mov_b32 v21, v16")
nop(1)
e("v_permlane16_swap_b32 v21, v16")
e("v_add_f32 v16, v16, v21")
e("v_mov_b32 v21, v16")
nop(1)
e("v_permlane32_swap_b32 v21, v16")
e("v_add_f32 v16, v16, v21")
set_exec(0xffff, 0)
e("ds_write_b32 v58, v16 offset:512")
full_exec()
e("s_waitcnt lgkmcnt(0)")
stamp(9)
e("s_barrier")
stamp(10)
for j in range(4):
    e(f"ds_read_b128 {v(192+4*j,4)}, v56 offset:{64*j}")
e("ds_read_b128 v[40:43], v54 offset:512")
e("ds_read_b128 v[44:47], v54 offset:528")
for j in range(4):
    e(f"s_waitcnt lgkmcnt({5-j})")
    for jj in range(4):
        c = "0" if j == 0 else v(24 + 4 * jj, 4)
        e(f"v_mfma_f32_16x16x32_bf16 {v(24+4*jj,4)}, {v(192+4*j,4)}, {v(128+(j*4+jj)*4,4)}, {c}")
e(f"v_mov_b32 v22, {T0}")
e(f"v_mov_b32 v23, {T1}")
e("s_waitcnt lgkmcnt(0)")
e("v_add_f32 v40, v40, v41"); e("v_add_f32 v42, v42, v43"); e("v_add_f32 v44, v44, v45"); e("v_add_f32 v46, v46, v47")
e("v_add_f32 v40, v40, v42"); e("v_add_f32 v44, v44, v46"); e("v_add_f32 v21, v40, v44")
nop(3)
pub_exec()
for r in range(4):
    d = 208 + 4 * r
    e(f"v_cvt_pk_bf16_f32 {v(d)}, {v(24+r)}, {v(28+r)}")
    e(f"v_cvt_pk_bf16_f32 {v(d+1)}, {v(32+r)}, {v(36+r)}")
    e(f"v_mov_b32 {v(d+2)}, {T0}")
    e(f"v_mov_b32 {v(d+3)}, {T1}")
    e(f"global_store_dwordx4 v50, {v(d,4)}, s[{54+2*r}:{55+2*r}] sc1")
sk = uid("c")
e("s_cmp_lg_u32 s3, 0")
e(f"s_cbranch_scc1 {sk}")
pub_exec(0xffff, 0)
e(f"global_store_dwordx4 v51, v[20:23], {sp(WS)} sc1")
lab(sk)
full_exec()
stamp(2)
diag(5)
e("s_branch L_end")


OB, CB = 133120, 134144
lab("L_roleA")
e("s_lshl_b32 s51, s48, 16")
e(f"s_add_u32 s51, s51, {HB3:#x}")
sweep8_addr(52, 51)
e("v_and_b32 v3, 31, v1")
e("s_lshl_b32 s10, s48, 9")
e(f"s_add_u32 s10, s10, {HB3ML:#x}")
e("v_lshl_add_u32 v54, v3, 4, s10")
e("v_lshrrev_b32 v55, 4, v1")
e("v_lshlrev_b32 v55, 5, v55")
col_of_lane(56, 3)
e("v_lshlrev_b32 v56, 1, v56")
e(f"v_add_u32 v56, {OB}, v56")
e("v_lshrrev_b32 v3, 4, v1")
e("v_lshlrev_b32 v57, 4, v3")
e(f"v_add_u32 v57, {OB}, v57")
e("v_and_b32 v3, 15, v1")
e("s_lshl_b32 s10, s3, 5")
e(f"s_add_u32 s10, s10, {CB}")
e("v_lshl_add_u32 v58, v3, 1, s10")
e("s_lshl_b32 s10, s48, 11")
e("s_lshl_b32 s11, s49, 10")
e("s_add_u32 s10, s10, s11")
e(f"s_add_u32 s10, s10, {HB4A:#x}")
e("v_lshl_add_u32 v59, v1, 4, s10")
e("s_lshl_b32 s10, s3, 6")
e(f"s_add_u32 s10, s10, {CB+256}")
e("v_lshl_add_u32 v60, v3, 2, s10")
e("v_lshrrev_b32 v61, 4, v1")
e("v_lshlrev_b32 v61, 7, v61")
e("v_lshl_add_u32 v61, v3, 2, v61")
e(f"v_add_u32 v61, {CB+256}, v61")
e("s_waitcnt vmcnt(0)")
get_tags()
e("s_lshl_b32 s10, s48, 7")
e("s_lshl_b32 s11, s49, 6")
e("s_add_u32 s10, s10, s11")
e(f"s_add_u32 s10, s10, {PSA:#x}")
wave0_hint_barrier(10, 16)
e("v_lshrrev_b32 v2, 4, v1")
e("v_lshlrev_b32 v2, 13, v2")
e("v_and_b32 v3, 15, v1")
e("v_lshl_add_u32 v2, v3, 4, v2")
e("s_lshl_b32 s10, s3, 19")
e("s_lshl_b32 s11, s48, 8")
e("s_add_u32 s10, s10, s11")
e("v_add_u32 v2, s10, v2")
e(f"s_mul_i32 s11, s3, {16*1040}")
e(f"s_mov_b32 s12, s{WUV}")
e(f"s_mov_b32 s13, s{WUV+1}")
for i in range(16):
    e("s_mov_b32 m0, s11")
    nop(0)
    e("global_load_lds_dwordx4 v2, s[12:13] nt")
    if i < 15:
        e("s_add_u32 s12, s12, 32768")
        e("s_addc_u32 s13, s13, 0")
        e("s_add_u32 s11, s11, 1040")
e("v_lshrrev_b32 v2, 4, v1")
e("s_movk_i32 s10, 2080")
e("v_mul_lo_u32 v2, v2, s10")
e("v_bfe_u32 v3, v1, 2, 2")
e("v_lshl_add_u32 v2, v3, 8, v2")
e("v_and_b32 v3, 3, v1")
e("v_lshl_add_u32 v2, v3, 3, v2")
e("s_lshl_b32 s10, s3, 5")
e("v_add_u32 v2, s10, v2")
e(f"v_add_u32 v3, {8*8320}, v2")
e("s_waitcnt vmcnt(0)")
e("s_barrier")
tr_frags(64, [2, 3], 16, 1, 8320, 0, 1040, jsplit=8)
e("s_waitcnt lgkmcnt(0)")
e("s_barrier")
e("v_lshrrev_b32 v2, 5, v1")
e("v_lshlrev_b32 v2, 10, v2")
e("v_and_b32 v3, 31, v1")
e("v_lshl_add_u32 v2, v3, 4, v2")
e("s_lshl_b32 s10, s48, 17")
e("s_lshl_b32 s11, s3, 14")
e("s_add_u32 s10, s10, s11")
e("s_lshl_b32 s11, s49, 9")
e("s_add_u32 s10, s10, s11")
e(f"s_add_u32 s12, s{WO}, s10")
e(f"s_addc_u32 s13, s{WO+1}, 0")
e(f"s_mul_i32 s11, s3, {8*1040}")
for i in range(8):
    e("s_mov_b32 m0, s11")
    nop(0)
    e("global_load_lds_dwordx4 v2, s[12:13] nt")
    if i < 7:
        e("s_add_u32 s12, s12, 2048")
        e("s_addc_u32 s13, s13, 0")
        e("s_add_u32 s11, s11, 1040")
e("v_lshrrev_b32 v2, 4, v1")
e("v_lshlrev_b32 v2, 2, v2")
e("v_bfe_u32 v3, v1, 3, 1")
e("v_add_u32 v2, v2, v3")
e("s_movk_i32 s10, 1040")
e("v_mul_lo_u32 v2, v2, s10")
e("v_bfe_u32 v3, v1, 2, 1")
e("v_lshl_add_u32 v2, v3, 9, v2")
e("v_and_b32 v3, 3, v1")
e("v_lshl_add_u32 v2, v3, 3, v2")
e("s_lshl_b32 s11, s3, 6")
e("v_add_u32 v2, s11, v2")
e("s_waitcnt vmcnt(0)")
e("s_barrier")
tr_frags(128, [2], 4, 2, 16 * 1040, 32, 2 * 1040)
e("s_waitcnt lgkmcnt(0)")
stamp(4)
diag(10)
def _a():
    e("s_lshl_b32 s10, s48, 9")
    e(f"s_add_u32 s10, s10, {PS3:#x}")
    e("v_lshl_add_u32 v20, v1, 4, s10")
wave0_multi_barrier(_a, 0xffffffff, 0, 16)
stamp(1)
stamp_s9(16)
sweep_pending(sweep8_list(52) + [(f"global_load_dwordx4 v[192:195], v54, {sp(WS)} sc1", 192)], 196)
stamp(3)
stamp_s9(17)
e("v_mov_b32 v196, v192")
wave_red("v_max_f32", 196, 197, half=True)
e("v_sub_f32 v192, v192, v196")
e("v_exp_f32 v192, v192")
nop(0)
e("v_mul_f32 v196, v192, v193")
wave_red("v_add_f32", 196, 197, half=True)
e("v_rcp_f32 v196, v196")
nop(0)
e("v_mul_f32 v192, v192, v196")
for i in range(8):
    e(f"ds_bpermute_b32 {v(200+i)}, v55, v192 offset:{4*i}")
for i in range(8):
    u = 16 + 4 * i
    e(f"s_waitcnt lgkmcnt({7-i})")
    for (src, a) in ((u, 208), (u + 1, 210)):
        e(f"v_lshlrev_b32 v196, 16, {v(src)}")
        e(f"v_and_b32 v197, 0xffff0000, {v(src)}")
        if i == 0:
            e(f"v_mul_f32 {v(a)}, {v(200+i)}, v196")
            e(f"v_mul_f32 {v(a+1)}, {v(200+i)}, v197")
        else:
            e(f"v_fmac_f32 {v(a)}, {v(200+i)}, v196")
            e(f"v_fmac_f32 {v(a+1)}, {v(200+i)}, v197")
red4_sg(208)
e("v_cvt_pk_bf16_f32 v208, v208, v208")
e("ds_write_b16 v56, v208")
e("s_waitcnt lgkmcnt(0)")
stamp(5)
e("s_barrier")
stamp(6)
e("s_lshl_b32 s10, s48, 5")
e("s_lshl_b32 s11, s49, 4")
e("s_add_u32 s10, s10, s11")
e(f"s_add_u32 s10, s10, {PS4:#x}")
presignal(10, 10, 59)
for j in range(16):
    e(f"ds_read_b128 {v(192+4*j,4)}, v57 offset:{64*j}")
for j in range(16):
    e(f"s_waitcnt lgkmcnt({15-j})")
    c = "0" if j == 0 else "v[16:19]"
    e(f"v_mfma_f32_16x16x32_bf16 v[16:19], {v(192+4*j,4)}, {v(64+4*j,4)}, {c}")
nop(7)
e("v_cvt_pk_bf16_f32 v16, v16, v16")
set_exec(0xffff, 0)
e("ds_write_b16 v58, v16")
full_exec()
e("s_waitcnt lgkmcnt(0)")
e("s_barrier")
stamp(7)
for j in range(4):
    e(f"ds_read_b128 {v(192+4*j,4)}, v57 offset:{1024+64*j}")
for j in range(4):
    e(f"s_waitcnt lgkmcnt({3-j})")
    for t in range(2):
        c = "0" if j == 0 else v(24 + 4 * t, 4)
        e(f"v_mfma_f32_16x16x32_bf16 {v(24+4*t,4)}, {v(192+4*j,4)}, {v(128+(j*2+t)*4,4)}, {c}")
nop(7)
e("v_cvt_pk_bf16_f32 v24, v24, v28")
set_exec(0xffff, 0)
e("ds_write_b32 v60, v24")
full_exec()
e("s_waitcnt lgkmcnt(0)")
e("s_barrier")
sk = uid("a")
e("s_cmp_lg_u32 s3, 0")
e(f"s_cbranch_scc1 {sk}")
e("ds_read_b32 v16, v61")
e("ds_read_b32 v17, v61 offset:64")
e(f"v_mov_b32 v18, {T0}")
e(f"v_mov_b32 v19, {T1}")
e("s_waitcnt lgkmcnt(0)")
e(f"global_store_dwordx4 v59, v[16:19], {sp(WS)} sc1")
lab(sk)
stamp(2)
diag(6)

lab("L_end")
e("s_endpgm")
L.append('.section .rodata,"a"')
L.append(".p2align 6")
L.append(f".amdhsa_kernel {NAME}_kernel")
L.append("  .amdhsa_next_free_vgpr 256")
L.append("  .amdhsa_next_free_sgpr 102")
L.append("  .amdhsa_accum_offset 256")
L.append("  .amdhsa_group_segment_fixed_size 0")
L.append("  .amdhsa_kernarg_size 128")
L.append("  .amdhsa_user_sgpr_count 2")
L.append("  .amdhsa_user_sgpr_kernarg_segment_ptr 1")
L.append("  .amdhsa_system_sgpr_workgroup_id_x 1")
L.append(".end_amdhsa_kernel")
open(OUTF, "w").write("\n".join(L) + "\n")
print("wrote", OUTF, len(L), "lines")
```

```python
import sys, struct

DEBUG = "--debug" in sys.argv
NODRY = "--nodry" in sys.argv
OUTF = [a for a in sys.argv[1:] if not a.startswith("--")]
NAME = "adaLN_cond__compressed_kv_cla__mixer_channel_mlp__decode"
OUTF = OUTF[0] if OUTF else f"cdna_kernels/{NAME}.s"

HB1C = 0x8000
HB1, HB2, HB3, HB3ML, HB4A, HB4B, HB6, EPOCH = 0x0, 0x10000, 0x100000, 0x300000, 0x400000, 0x480000, 0x500000, 0x600000
TS = 0x2000000
X, CKV, WQ, WUK, WUV, WO, BX, W1, B1, W2, B2, C, WMOD, OUT, DBG, WS = [16 + 2 * i for i in range(16)]
def sp(b): return f"s[{b}:{b+1}]"
LDS_BYTES = 155136
SPIN = 400000
LOG2E = 1.4426950408889634
T0, T1 = "s8", "s93"
PM = "s[96:97]"

L = []
def e(s): L.append("    " + s)
def lab(s): L.append(s + ":")
_uid = [0]
def uid(p="L"):
    _uid[0] += 1
    return f"{p}_{_uid[0]}"
def v(a, n=1): return f"v{a}" if n == 1 else f"v[{a}:{a+n-1}]"
def nop(n): e(f"s_nop {n}")
def fhex(x): return "0x%08x" % struct.unpack("<I", struct.pack("<f", x))[0]

def stamp(k):
    if not DEBUG: return
    sk = uid("st")
    e("s_cmp_lg_u32 s3, 0")
    e(f"s_cbranch_scc1 {sk}")
    e("s_memrealtime s[90:91]")
    e("s_waitcnt lgkmcnt(0)")
    e("v_mov_b32 v255, s90")
    e("v_mov_b32 v254, s92")
    e(f"global_store_dword v254, v255, {sp(WS)} offset:{4*k}")
    lab(sk)

def stamp_w(k):
    if not DEBUG: return
    e("s_memrealtime s[90:91]")
    e("s_lshl_b32 s94, s3, 2")
    e("s_add_u32 s94, s94, s92")
    e("s_waitcnt lgkmcnt(0)")
    e("v_mov_b32 v255, s90")
    e("v_mov_b32 v254, s94")
    e(f"global_store_dword v254, v255, {sp(WS)} offset:{4*k}")

def stamp_s9(k):
    if not DEBUG: return
    sk = uid("st")
    e("s_cmp_lg_u32 s3, 0")
    e(f"s_cbranch_scc1 {sk}")
    e("v_mov_b32 v255, s9")
    e("v_mov_b32 v254, s92")
    e(f"global_store_dword v254, v255, {sp(WS)} offset:{4*k}")
    lab(sk)

def set_exec(lo, hi):
    e(f"s_mov_b32 exec_lo, {lo:#x}")
    e(f"s_mov_b32 exec_hi, {hi:#x}")
def full_exec(): e("s_mov_b64 exec, -1")
def pub_exec(lo=None, hi=None):
    if lo is None:
        e(f"s_mov_b64 exec, {PM}")
    else:
        set_exec(lo, hi)
        e(f"s_and_b64 exec, exec, {PM}")

def spin_bound():
    e("s_add_u32 s9, s9, 1")
    e(f"s_cmp_gt_u32 s9, {SPIN}")
    e("s_cbranch_scc1 L_end")

def tagcheck(units, t, retry):
    us = list(units)
    if len(us) % 2: us.append(us[-1])
    first = True
    for a, b in zip(us[0::2], us[1::2]):
        for k in (0, 1):
            if first:
                e(f"v_min_u32 {v(t+2*k)}, {v(a+2+k)}, {v(b+2+k)}")
                e(f"v_max_u32 {v(t+2*k+1)}, {v(a+2+k)}, {v(b+2+k)}")
            else:
                e(f"v_min3_u32 {v(t+2*k)}, {v(t+2*k)}, {v(a+2+k)}, {v(b+2+k)}")
                e(f"v_max3_u32 {v(t+2*k+1)}, {v(t+2*k+1)}, {v(a+2+k)}, {v(b+2+k)}")
        first = False
    e(f"v_xor_b32 {v(t)}, {T0}, {v(t)}")
    e(f"v_xor_b32 {v(t+1)}, {T0}, {v(t+1)}")
    e(f"v_xor_b32 {v(t+2)}, {T1}, {v(t+2)}")
    e(f"v_xor_b32 {v(t+3)}, {T1}, {v(t+3)}")
    e(f"v_or3_b32 {v(t)}, {v(t)}, {v(t+1)}, {v(t+2)}")
    e(f"v_or_b32 {v(t)}, {v(t)}, {v(t+3)}")
    e(f"v_cmp_ne_u32 vcc, 0, {v(t)}")
    ok = uid("ok")
    e(f"s_cbranch_vccz {ok}")
    spin_bound()
    e(f"s_branch {retry}")
    lab(ok)

def hint_wait(saddr_expr_sgpr, u, sleep=4):
    lp, dn = uid("hw"), uid("hd")
    e(f"v_mov_b32 {v(u+4)}, s{saddr_expr_sgpr}")
    set_exec(1, 0)
    lab(lp)
    e(f"global_load_dwordx4 {v(u,4)}, {v(u+4)}, {sp(WS)} sc1")
    e("s_waitcnt vmcnt(0)")
    e(f"v_xor_b32 {v(u)}, {T0}, {v(u+2)}")
    e(f"v_xor_b32 {v(u+1)}, {T1}, {v(u+3)}")
    e(f"v_or_b32 {v(u)}, {v(u)}, {v(u+1)}")
    e(f"v_cmp_ne_u32 vcc, 0, {v(u)}")
    e(f"s_cbranch_vccz {dn}")
    spin_bound()
    e(f"s_sleep {sleep}")
    e(f"s_branch {lp}")
    lab(dn)
    full_exec()

def hint_multi(addr_v, lo, hi, u, sleep=2):
    lp, dn = uid("hw"), uid("hd")
    set_exec(lo, hi)
    lab(lp)
    e(f"global_load_dwordx4 {v(u,4)}, {v(addr_v)}, {sp(WS)} sc1")
    e("s_waitcnt vmcnt(0)")
    e(f"v_xor_b32 {v(u)}, {T0}, {v(u+2)}")
    e(f"v_xor_b32 {v(u+1)}, {T1}, {v(u+3)}")
    e(f"v_or_b32 {v(u)}, {v(u)}, {v(u+1)}")
    e(f"v_cmp_ne_u32 vcc, 0, {v(u)}")
    e(f"s_cbranch_vccz {dn}")
    spin_bound()
    e(f"s_sleep {sleep}")
    e(f"s_branch {lp}")
    lab(dn)
    full_exec()

def wave0_hint2_barrier(sreg, addr_code, lo, hi, u):
    sk = uid("h")
    e("s_cmp_lg_u32 s3, 0")
    e(f"s_cbranch_scc1 {sk}")
    hint_wait(sreg, u)
    addr_code()
    hint_multi(u + 4, lo, hi, u)
    lab(sk)
    e("s_barrier")

def wave0_hint_barrier(sreg, u):
    sk = uid("h")
    e("s_cmp_lg_u32 s3, 0")
    e(f"s_cbranch_scc1 {sk}")
    hint_wait(sreg, u)
    lab(sk)
    e("s_barrier")

def dpp(op, d, s0, s1, ctrl):
    e(f"{op}_dpp {v(d)}, {v(s0)}, {v(s1)} {ctrl} row_mask:0xf bank_mask:0xf")

def wave_red(op, a, t, half=False):
    for r in (8, 4, 2, 1):
        nop(1)
        dpp(op, a, a, a, f"row_ror:{r}")
    e(f"v_mov_b32 {v(t)}, {v(a)}")
    nop(1)
    e(f"v_permlane16_swap_b32 {v(t)}, {v(a)}")
    e(f"{op} {v(a)}, {v(a)}, {v(t)}")
    if not half:
        e(f"v_mov_b32 {v(t)}, {v(a)}")
        nop(1)
        e(f"v_permlane32_swap_b32 {v(t)}, {v(a)}")
        e(f"{op} {v(a)}, {v(a)}, {v(t)}")

def red8_to2(acc):
    for k in range(4):
        e(f"v_permlane32_swap_b32 {v(acc+2*k)}, {v(acc+2*k+1)}")
    for k in range(4):
        e(f"v_add_f32 {v(acc+2*k)}, {v(acc+2*k)}, {v(acc+2*k+1)}")
    nop(1)
    e(f"v_permlane16_swap_b32 {v(acc+0)}, {v(acc+2)}")
    e(f"v_permlane16_swap_b32 {v(acc+4)}, {v(acc+6)}")
    e(f"v_add_f32 {v(acc+0)}, {v(acc+0)}, {v(acc+2)}")
    e(f"v_add_f32 {v(acc+4)}, {v(acc+4)}, {v(acc+6)}")

def bitswap_rho(dst, t):
    e(f"v_lshrrev_b32 {v(dst)}, 5, v1")
    e(f"v_lshrrev_b32 {v(t)}, 3, v1")
    e(f"v_and_b32 {v(t)}, 2, {v(t)}")
    e(f"v_or_b32 {v(dst)}, {v(dst)}, {v(t)}")

def gemv_row8(W, nrows, vf, acc, lo, hi):
    for i in range(nrows):
        e(f"v_cvt_pk_bf16_f32 {v(lo+i)}, {v(vf+i)}, 0")
        e(f"v_cvt_pk_bf16_f32 {v(hi+i)}, 0, {v(vf+i)}")
    for i in range(nrows):
        for k in range(4):
            c0 = "0" if i == 0 else v(acc + 2 * k)
            c1 = "0" if i == 0 else v(acc + 2 * k + 1)
            e(f"v_dot2_f32_bf16 {v(acc+2*k)}, {v(W+4*i+k)}, {v(lo+i)}, {c0}")
            e(f"v_dot2_f32_bf16 {v(acc+2*k+1)}, {v(W+4*i+k)}, {v(hi+i)}, {c1}")
    nop(2)

def sadd64(dst, src, imm):
    e(f"s_add_u32 s{dst}, s{src}, {imm}")
    e(f"s_addc_u32 s{dst+1}, s{src+1}, 0")

def unpack2(src, d):
    e(f"v_lshlrev_b32 {v(d)}, 16, {v(src)}")
    e(f"v_and_b32 {v(d+1)}, 0xffff0000, {v(src)}")

def gemv64(W, ldsV, ldsRW, nparts=1, pstride=0):
    e(f"ds_read_b128 v[16:19], v2 offset:{ldsV}")
    e(f"ds_read_b128 v[20:23], v2 offset:{ldsV+16}")
    for p in range(1, nparts):
        e(f"ds_read_b128 {v(24+8*(p-1),4)}, v2 offset:{ldsV+p*pstride}")
        e(f"ds_read_b128 {v(28+8*(p-1),4)}, v2 offset:{ldsV+p*pstride+16}")
    e("s_waitcnt lgkmcnt(0)")
    for p in range(1, nparts):
        for i in range(8):
            e(f"v_add_f32 {v(16+i)}, {v(16+i)}, {v(24+8*(p-1)+i)}")
    gemv_row8(W, 8, 16, 40, 24, 32)
    red8_to2(40)
    nop(0)
    dpp("v_add_f32", 40, 40, 40, "row_ror:8")
    dpp("v_add_f32", 44, 44, 44, "row_ror:8")
    set_exec(0x00ff00ff, 0x00ff00ff)
    e(f"ds_write_b32 v48, v40 offset:{ldsRW}")
    e(f"ds_write_b32 v48, v44 offset:{ldsRW+16}")
    full_exec()
def gemv64_setup():
    e("v_lshrrev_b32 v2, 3, v1")
    e("v_lshlrev_b32 v2, 5, v2")
    e("s_lshl_b32 s10, s3, 8")
    e("v_add_u32 v2, s10, v2")
    bitswap_rho(48, 3)
    e("v_and_b32 v3, 7, v1")
    e("v_lshl_add_u32 v48, v3, 3, v48")
    e("v_lshl_add_u32 v48, v48, 2, s10")
def sum64(ldsRW, dst):
    e("v_lshlrev_b32 v3, 2, v1")
    for w in range(8):
        e(f"ds_read_b32 {v(16+w)}, v3 offset:{ldsRW+256*w}")
    e("s_waitcnt lgkmcnt(0)")
    e("v_add_f32 v16, v16, v17"); e("v_add_f32 v18, v18, v19"); e("v_add_f32 v20, v20, v21"); e("v_add_f32 v22, v22, v23")
    e("v_add_f32 v16, v16, v18"); e("v_add_f32 v20, v20, v22")
    e(f"v_add_f32 {v(dst)}, v16, v20")
def load_seg64(ptr, dst, stride):
    for i in range(8):
        sadd64(12, ptr, i * stride)
        e(f"global_load_dwordx4 {v(dst+4*i,4)}, v10, s[12:13] nt")
def seg64_off():
    e("v_lshrrev_b32 v10, 3, v1")
    e("v_lshlrev_b32 v10, 16, v10")
    e("s_lshl_b32 s10, s3, 19")
    e("s_lshl_b32 s11, s48, 8")
    e("s_add_u32 s10, s10, s11")
    e("s_lshl_b32 s11, s49, 7")
    e("s_add_u32 s10, s10, s11")
    e("v_add_u32 v10, s10, v10")
    e("v_and_b32 v3, 7, v1")
    e("v_lshl_add_u32 v10, v3, 4, v10")
def out512_write(ldsO):
    e("v_lshlrev_b32 v3, 5, v1")
    e("s_lshl_b32 s10, s3, 11")
    e("v_add_u32 v3, s10, v3")
    e(f"ds_write_b128 v3, v[40:43] offset:{ldsO}")
    e(f"ds_write_b128 v3, v[44:47] offset:{ldsO+16}")
def publish512(ldsO, sbase):
    sk = uid("p")
    e("s_cmp_ge_u32 s3, 4")
    e(f"s_cbranch_scc1 {sk}")
    e("v_lshlrev_b32 v3, 3, v0")
    for w in range(8):
        e(f"ds_read_b64 {v(16+2*w,2)}, v3 offset:{ldsO+2048*w}")
    e(f"v_mov_b32 v42, {T0}")
    e(f"v_mov_b32 v43, {T1}")
    e("v_lshlrev_b32 v3, 4, v0")
    e(f"v_add_u32 v3, s{sbase}, v3")
    e("s_waitcnt lgkmcnt(0)")
    for o in (0, 1):
        e(f"v_add_f32 {v(16+o)}, {v(16+o)}, {v(18+o)}"); e(f"v_add_f32 {v(20+o)}, {v(20+o)}, {v(22+o)}")
        e(f"v_add_f32 {v(24+o)}, {v(24+o)}, {v(26+o)}"); e(f"v_add_f32 {v(28+o)}, {v(28+o)}, {v(30+o)}")
        e(f"v_add_f32 {v(16+o)}, {v(16+o)}, {v(20+o)}"); e(f"v_add_f32 {v(24+o)}, {v(24+o)}, {v(28+o)}")
        e(f"v_add_f32 {v(40+o)}, {v(16+o)}, {v(24+o)}")
    pub_exec()
    e(f"global_store_dwordx4 v3, v[40:43], {sp(WS)} sc1")
    full_exec()
    lab(sk)

def get_tags():
    e("v_readfirstlane_b32 s8, v253")
    nop(3)
    e("s_add_u32 s8, s8, 1")
    e("s_xor_b32 s93, s8, 0x5bd1e995")

def dry_begin(name):
    if NODRY:
        return
    e(f"s_mov_b64 {PM}, 0")
    e(f"s_branch {name}_crit")
    lab(f"{name}_ret")
    e(f"s_mov_b64 {PM}, -1")
def dry_end(name):
    if NODRY:
        return
    e(f"s_cmp_eq_u64 {PM}, 0")
    e(f"s_cbranch_scc1 {name}_ret")


def masks_setup(m):
    e("v_and_b32 v3, 1, v1")
    e("v_lshlrev_b32 v3, 4, v3")
    e(f"v_mov_b32 {v(m+3)}, 0xffff")
    e(f"v_lshlrev_b32 {v(m+3)}, v3, {v(m+3)}")
    e("v_bfe_u32 v3, v1, 1, 2")
    for r in range(3):
        e(f"v_cmp_eq_u32 vcc, {r}, v3")
        nop(1)
        e(f"v_cndmask_b32 {v(m+r)}, 0, {v(m+3)}, vcc")
    e("v_cmp_eq_u32 vcc, 3, v3")
    nop(1)
    e(f"v_cndmask_b32 {v(m+3)}, 0, {v(m+3)}, vcc")

def gemv64m_setup(m):
    e("v_lshrrev_b32 v2, 3, v1")
    e("v_lshlrev_b32 v2, 5, v2")
    e("s_lshl_b32 s10, s3, 8")
    e("v_add_u32 v2, s10, v2")
    e("v_and_b32 v48, 7, v1")
    e("v_lshlrev_b32 v48, 5, v48")
    e("v_and_b32 v3, 16, v1")
    e("v_add3_u32 v48, v48, v3, s10")
    masks_setup(m)

def gemv64m(W, ldsV, ldsRW, m, nl=8, va=2):
    if nl == 8:
        e(f"ds_read_b128 v[16:19], {v(va)} offset:{ldsV}")
        e(f"ds_read_b128 v[20:23], {v(va)} offset:{ldsV+16}")
    else:
        e(f"ds_read_b64 v[16:17], {v(va)} offset:{ldsV}")
    e("s_waitcnt lgkmcnt(0)")
    for i in range(nl):
        e(f"v_cvt_pk_bf16_f32 {v(16+i)}, {v(16+i)}, {v(16+i)}")
    for i in range(nl):
        a = 24 + 4 * (i % 3)
        for r in range(4):
            e(f"v_and_b32 {v(a+r)}, {v(16+i)}, {v(m+r)}")
        if i > 0:
            pa = 24 + 4 * ((i - 1) % 3)
            c = "0" if i == 1 else "v[40:43]"
            e(f"v_mfma_f32_16x16x32_bf16 v[40:43], {v(pa,4)}, {v(W+4*(i-1),4)}, {c}")
    nop(1)
    e(f"v_mfma_f32_16x16x32_bf16 v[40:43], {v(24+4*((nl-1)%3),4)}, {v(W+4*(nl-1),4)}, v[40:43]")
    nop(7)
    for r in range(4):
        e(f"v_mov_b32 {v(44+r)}, {v(40+r)}")
    nop(0)
    for r in range(4):
        e(f"v_permlane32_swap_b32 {v(40+r)}, {v(44+r)}")
    nop(0)
    for r in range(4):
        dpp("v_add_f32", 40 + r, 44 + r, 40 + r, "row_ror:8")
    set_exec(0x00ff00ff, 0)
    e(f"ds_write_b128 v48, v[40:43] offset:{ldsRW}")
    full_exec()

def tr_frags(dst, bases, njs, ntiles, jstep, tstep, half_off, jsplit=None):
    for j in range(njs):
        for t in range(ntiles):
            if jsplit is None: b, jj = bases[0], j
            else: b, jj = bases[j // jsplit], j % jsplit
            off = jj * jstep + t * tstep
            d = dst + (j * ntiles + t) * 4
            e(f"ds_read_b64_tr_b16 {v(d,2)}, {v(b)} offset:{off}")
            e(f"ds_read_b64_tr_b16 {v(d+2,2)}, {v(b)} offset:{off+half_off}")

def red4_sg(a):
    nop(1)
    e(f"v_permlane32_swap_b32 {v(a)}, {v(a+1)}")
    e(f"v_permlane32_swap_b32 {v(a+2)}, {v(a+3)}")
    e(f"v_add_f32 {v(a)}, {v(a)}, {v(a+1)}")
    e(f"v_add_f32 {v(a+2)}, {v(a+2)}, {v(a+3)}")
    nop(1)
    e(f"v_permlane16_swap_b32 {v(a)}, {v(a+2)}")
    e(f"v_add_f32 {v(a)}, {v(a)}, {v(a+2)}")

def col_of_lane(dst, t):
    bitswap_rho(dst, t)
    e(f"v_lshlrev_b32 {v(dst)}, 4, {v(dst)}")
    e(f"v_and_b32 {v(t)}, 15, v1")
    e("s_lshl_b32 s10, s3, 6")
    e(f"v_add3_u32 {v(dst)}, {v(dst)}, {v(t)}, s10")

def pub_tiles(D, addr):
    e(f"v_cvt_pk_bf16_f32 v16, {v(D)}, {v(D+4)}")
    e(f"v_cvt_pk_bf16_f32 v17, {v(D+8)}, {v(D+12)}")
    e(f"v_mov_b32 v18, {T0}")
    e(f"v_mov_b32 v19, {T1}")
    pub_exec(0xffff, 0)
    e(f"global_store_dwordx4 {v(addr)}, v[16:19], {sp(WS)} sc1")
    full_exec()

def sweep8_addr(dst, hb_sgpr):
    e(f"v_lshrrev_b32 {v(dst)}, 4, v1")
    e(f"v_lshlrev_b32 {v(dst)}, 14, {v(dst)}")
    e("v_and_b32 v3, 15, v1")
    e(f"v_lshl_add_u32 {v(dst)}, v3, 4, {v(dst)}")
    e("s_lshl_b32 s10, s3, 8")
    e(f"s_add_u32 s10, s10, s{hb_sgpr}")
    e(f"v_add_u32 {v(dst)}, s10, {v(dst)}")
    for k in range(4):
        sadd64(54 + 2 * k, WS, k * 4096)
def sweep_pending(loads, t):
    n = len(loads)
    e(f"s_mov_b32 s53, {(1 << n) - 1:#x}")
    lp, dn = uid("sw"), uid("sd")
    lab(lp)
    for i, (line, u) in enumerate(loads):
        sk = uid("sk")
        e(f"s_bitcmp1_b32 s53, {i}")
        e(f"s_cbranch_scc0 {sk}")
        e(line)
        lab(sk)
    e("s_waitcnt vmcnt(0)")
    for i, (line, u) in enumerate(loads):
        e(f"v_xor_b32 {v(t)}, {T0}, {v(u+2)}")
        e(f"v_xor_b32 {v(t+1)}, {T1}, {v(u+3)}")
        e(f"v_or_b32 {v(t)}, {v(t)}, {v(t+1)}")
        e(f"v_cmp_ne_u32 vcc, 0, {v(t)}")
        e("s_cmp_eq_u64 vcc, 0")
        e(f"s_cselect_b32 s10, {~(1 << i) & 0xffffffff:#x}, -1")
        e("s_and_b32 s53, s53, s10")
    e("s_cmp_eq_u32 s53, 0")
    e(f"s_cbranch_scc1 {dn}")
    spin_bound()
    e(f"s_branch {lp}")
    lab(dn)
def sweep8_list(addr):
    return [(f"global_load_dwordx4 {v(16+4*i,4)}, {v(addr)}, s[{54+2*(i//2)}:{55+2*(i//2)}] offset:{2048*(i%2)} sc1", 16 + 4 * i) for i in range(8)]
def sweep8_loads(addr):
    for i in range(8):
        e(f"global_load_dwordx4 {v(16+4*i,4)}, {v(addr)}, s[{54+2*(i//2)}:{55+2*(i//2)}] offset:{2048*(i%2)} sc1")

L.append(f"; @launch grid=(256,1,1) block=(512,1,1) lds={LDS_BYTES}")
L.append('.amdgcn_target "amdgcn-amd-amdhsa--gfx950"')
L.append(".text")
L.append(f".globl {NAME}_kernel")
L.append(".p2align 8")
L.append(f".type {NAME}_kernel,@function")
lab(f"{NAME}_kernel")
e("s_cmp_ge_u32 s2, 256")
e("s_cbranch_scc1 L_end")
e("s_load_dwordx16 s[16:31], s[0:1], 0")
e("s_load_dwordx16 s[32:47], s[0:1], 64")
e("v_and_b32 v1, 63, v0")
e("v_lshrrev_b32 v2, 6, v0")
e("s_and_b32 s4, s2, 7")
e("v_readfirstlane_b32 s3, v2")
e("s_lshr_b32 s5, s2, 3")
e("s_and_b32 s6, s5, 3")
e("s_lshr_b32 s7, s5, 2")
e("s_mov_b32 s9, 0")
e("s_mov_b32 s8, 0")
e("s_mov_b32 s93, 0")
e(f"s_mov_b64 {PM}, -1")
if DEBUG:
    e("s_lshl_b32 s92, s2, 8")
    e(f"s_add_u32 s92, s92, {TS:#x}")
e("s_lshr_b32 s48, s7, 1")
e("s_lshl_b32 s10, s4, 2")
e("s_add_u32 s48, s48, s10")
e("s_and_b32 s49, s7, 1")
e(f"v_mov_b32 v252, {EPOCH:#x}")
e("s_waitcnt lgkmcnt(0)")
e(f"global_load_dword v253, v252, {sp(WS)} sc1")
stamp(0)
if DEBUG:
    e("s_getreg_b32 s9, hwreg(HW_REG_XCC_ID)")
    stamp_s9(20)
    e("s_mov_b32 s9, 0")
e("s_cmp_eq_u32 s6, 1")
e("s_cbranch_scc1 L_roleB")
e("s_cmp_eq_u32 s6, 2")
e("s_cbranch_scc1 L_roleC")
e("s_cmp_eq_u32 s6, 3")
e("s_cbranch_scc1 L_roleA")


lab("L_roleD")
e("s_lshl_b32 s50, s7, 3")
e("s_add_u32 s50, s50, s4")
e("v_lshlrev_b32 v3, 1, v0")
e(f"global_load_ushort v8, v3, {sp(C)}")
e("s_lshr_b32 s51, s50, 4")
e("s_and_b32 s52, s50, 15")
e("v_lshrrev_b32 v10, 3, v1")
e("v_lshlrev_b32 v10, 1, v10")
e("s_lshl_b32 s10, s3, 4")
e("s_lshl_b32 s11, s51, 7")
e("s_add_u32 s10, s10, s11")
e("v_add_u32 v10, s10, v10")
e("v_lshlrev_b32 v49, 2, v10")
e("s_movk_i32 s10, 6144")
e("v_mul_lo_u32 v10, v10, s10")
e("v_and_b32 v3, 7, v1")
e("v_lshl_add_u32 v10, v3, 4, v10")
e("s_lshl_b32 s10, s52, 7")
e("v_add_u32 v10, s10, v10")
e(f"global_load_dwordx4 v[56:59], v10, {sp(WMOD)} nt")
sadd64(12, WMOD, 6144)
e("global_load_dwordx4 v[60:63], v10, s[12:13] nt")
gemv64m_setup(52)
e("s_waitcnt vmcnt(2)")
get_tags()
e("v_lshlrev_b32 v9, 16, v8")
e(f"v_mul_f32 v3, {fhex(-LOG2E)}, v9")
e("v_exp_f32 v3, v3")
nop(0)
e("v_add_f32 v3, 1.0, v3")
e("v_rcp_f32 v3, v3")
nop(0)
e("v_mul_f32 v9, v9, v3")
e("v_lshlrev_b32 v3, 2, v0")
e("ds_write_b32 v3, v9")
e("s_waitcnt vmcnt(0) lgkmcnt(0)")
e("s_barrier")
gemv64m(56, 0, 2048, 52, nl=2, va=49)
e("s_waitcnt lgkmcnt(0)")
e("s_barrier")
sk = uid("d")
e("s_cmp_lg_u32 s3, 0")
e(f"s_cbranch_scc1 {sk}")
sum64(2048, 24)
nop(1)
e("v_mov_b32_dpp v32, v24 quad_perm:[0,0,2,2] row_mask:0xf bank_mask:0xf")
e("v_mov_b32_dpp v33, v24 quad_perm:[1,1,3,3] row_mask:0xf bank_mask:0xf")
e(f"v_mov_b32 v34, {T0}")
e(f"v_mov_b32 v35, {T1}")
e("s_lshl_b32 s10, s51, 13")
e("s_lshl_b32 s11, s52, 9")
e("s_add_u32 s10, s10, s11")
e(f"s_add_u32 s10, s10, {HB1C:#x}")
e("v_lshl_add_u32 v3, v1, 3, s10")
set_exec(0x55555555, 0x55555555)
e(f"global_store_dwordx4 v3, v[32:35], {sp(WS)} sc1")
full_exec()
lab(sk)
stamp(1)
e("s_cmp_ge_u32 s50, 48")
e("s_cbranch_scc1 L_final")
e("s_cmp_ge_u32 s50, 32")
e("s_cbranch_scc1 L_ph5pre")
e("v_lshrrev_b32 v10, 3, v1")
e("v_lshlrev_b32 v10, 3, v10")
e("s_lshl_b32 s10, s3, 6")
e("v_add_u32 v10, s10, v10")
e("s_movk_i32 s10, 6144")
e("v_mul_lo_u32 v10, v10, s10")
e("v_and_b32 v3, 7, v1")
e("v_lshl_add_u32 v10, v3, 4, v10")
e("s_lshl_b32 s10, s50, 7")
e("s_add_u32 s10, s10, 2048")
e("v_add_u32 v10, s10, v10")
load_seg64(WMOD, 64, 6144)
e("s_waitcnt vmcnt(0)")
e("s_barrier")
gemv64m(64, 0, 2048, 52)
e("s_waitcnt lgkmcnt(0)")
e("s_barrier")
sk = uid("d")
e("s_cmp_lg_u32 s3, 0")
e(f"s_cbranch_scc1 {sk}")
sum64(2048, 24)
nop(1)
for k in range(4):
    e(f"v_mov_b32_dpp {v(28+k)}, v24 quad_perm:[{k},{k},{k},{k}] row_mask:0xf bank_mask:0xf")
e("v_cvt_pk_bf16_f32 v32, v28, v29")
e("v_cvt_pk_bf16_f32 v33, v30, v31")
e(f"v_mov_b32 v34, {T0}")
e(f"v_mov_b32 v35, {T1}")
e("s_lshl_b32 s10, s50, 8")
e("s_add_u32 s10, s10, 4096")
e("v_lshl_add_u32 v3, v1, 2, s10")
set_exec(0x11111111, 0x11111111)
e(f"global_store_dwordx4 v3, v[32:35], {sp(WS)} sc1")
full_exec()
lab(sk)
lab("L_ph5pre")
e("s_cmp_ge_u32 s50, 43")
e("s_cbranch_scc1 L_end")
e("s_barrier")

W1S, W2S, MODL, X1L, YL, HPL, HL = 0, 33280, 66560, 69632, 71680, 79872, 80896
e("v_lshrrev_b32 v2, 2, v1")
e("s_lshl_b32 s10, s3, 6")
e("v_add_u32 v2, s10, v2")
e("s_movk_i32 s10, 2752")
e("v_mul_lo_u32 v2, v2, s10")
e("v_and_b32 v3, 3, v1")
e("v_lshl_add_u32 v2, v3, 4, v2")
e("s_lshl_b32 s10, s50, 6")
e("v_add_u32 v2, s10, v2")
e(f"s_mul_i32 s11, s3, {4*1040}")
e(f"s_add_u32 s11, s11, {W1S}")
for i in range(4):
    sadd64(12, W1, i * 16 * 2752)
    e("s_mov_b32 m0, s11")
    nop(0)
    e("global_load_lds_dwordx4 v2, s[12:13] nt")
    e("s_add_u32 s11, s11, 1040")
e("s_lshl_b32 s10, s50, 5")
e("s_lshl_b32 s11, s3, 2")
e("s_add_u32 s10, s10, s11")
e("s_lshl_b32 s10, s10, 10")
e("v_lshlrev_b32 v2, 4, v1")
e("v_add_u32 v2, s10, v2")
e(f"s_mul_i32 s11, s3, {4*1040}")
e(f"s_add_u32 s11, s11, {W2S}")
for i in range(4):
    sadd64(12, W2, i * 1024)
    e("s_mov_b32 m0, s11")
    nop(0)
    e("global_load_lds_dwordx4 v2, s[12:13] nt")
    e("s_add_u32 s11, s11, 1040")
e("v_and_b32 v3, 31, v1")
e("s_lshl_b32 s10, s50, 6")
e("v_lshl_add_u32 v3, v3, 1, s10")
e(f"global_load_ushort v96, v3, {sp(B1)}")
col_of_lane(97, 3)
e("v_lshlrev_b32 v3, 1, v97")
e(f"global_load_ushort v98, v3, {sp(X)}")
e(f"s_mov_b32 s10, {HB1 + 4096 + 23*256}")
wave0_hint_barrier(10, 16)
skm = uid("d")
e("s_cmp_ge_u32 s3, 6")
e(f"s_cbranch_scc1 {skm}")
e("v_lshlrev_b32 v12, 4, v0")
e(f"v_add_u32 v12, {HB1 + 256*16}, v12")
lp = uid("g")
lab(lp)
e(f"global_load_dwordx4 v[16:19], v12, {sp(WS)} sc1")
e("s_waitcnt vmcnt(0)")
tagcheck([16], 40, lp)
e("v_lshlrev_b32 v3, 3, v0")
e(f"ds_write_b64 v3, v[16:17] offset:{MODL}" if MODL < 65536 else "")
if MODL >= 65536:
    L.pop()
    e(f"v_add_u32 v3, {MODL}, v3")
    e("ds_write_b64 v3, v[16:17]")
lab(skm)
e("s_waitcnt vmcnt(0) lgkmcnt(0)")
e("s_barrier")
e("v_lshrrev_b32 v2, 5, v1")
e("s_lshl_b32 s10, s3, 2")
e("v_add_u32 v2, s10, v2")
e("s_movk_i32 s10, 1040")
e("v_mul_lo_u32 v2, v2, s10")
e("v_bfe_u32 v3, v1, 4, 1")
e("v_lshl_add_u32 v2, v3, 9, v2")
e("v_bfe_u32 v3, v1, 2, 2")
e("v_lshl_add_u32 v2, v3, 6, v2")
e("v_and_b32 v3, 3, v1")
e("v_lshl_add_u32 v2, v3, 3, v2")
tr_frags(64, [2], 2, 2, 2 * 1040, 32, 256)
e("v_lshrrev_b32 v2, 4, v1")
e("v_lshlrev_b32 v2, 3, v2")
e("v_bfe_u32 v3, v1, 2, 2")
e("v_add_u32 v2, v2, v3")
e("v_mul_lo_u32 v2, v2, s10")
e("v_and_b32 v3, 3, v1")
e("v_lshl_add_u32 v2, v3, 3, v2")
e("s_lshl_b32 s11, s3, 7")
e(f"s_add_u32 s11, s11, {W2S}")
e("v_add_u32 v2, s11, v2")
tr_frags(80, [2], 1, 4, 0, 32, 4 * 1040)
e("v_lshlrev_b32 v3, 1, v97")
e(f"v_add_u32 v3, {MODL}, v3")
e("ds_read_u16 v99, v3")
e("v_lshlrev_b32 v3, 4, v1")
e(f"v_add_u32 v3, {MODL}, v3")
e("ds_read_b128 v[16:19], v3 offset:1024")
e("ds_read_b128 v[20:23], v3 offset:2048")
e("s_waitcnt lgkmcnt(0)")
for k in range(4):
    unpack2(16 + k, 100 + 2 * k)
    unpack2(20 + k, 108 + 2 * k)
for d in range(108, 116):
    e(f"v_add_f32 {v(d)}, 1.0, {v(d)}")
for d in (96, 98, 99):
    e(f"v_lshlrev_b32 {v(d)}, 16, {v(d)}")
e(f"s_mov_b32 s51, {HB4A:#x}")
sweep8_addr(52, 51)
e("v_lshlrev_b32 v53, 2, v97")
e(f"v_add_u32 v53, {X1L}, v53")
e("v_lshlrev_b32 v54, 5, v1")
e(f"v_add_u32 v54, {X1L}, v54")
e("s_lshl_b32 s10, s3, 10")
e(f"s_add_u32 s10, s10, {YL}")
e("v_lshl_add_u32 v55, v1, 4, s10")
e("v_lshrrev_b32 v3, 4, v1")
e("s_lshl_b32 s11, s3, 7")
e("s_add_u32 s10, s10, s11")
e("v_lshl_add_u32 v56, v3, 4, s10")
e("v_and_b32 v3, 15, v1")
e("s_lshl_b32 s10, s3, 7")
e(f"s_add_u32 s10, s10, {HPL}")
e("v_lshl_add_u32 v57, v3, 2, s10")
e("v_and_b32 v3, 31, v1")
e("v_lshlrev_b32 v58, 2, v3")
e(f"v_add_u32 v58, {HPL}, v58")
e("s_lshl_b32 s10, s3, 6")
e(f"s_add_u32 s10, s10, {HL}")
e("v_lshl_add_u32 v59, v3, 1, s10")
e("v_lshrrev_b32 v3, 4, v1")
e("v_lshl_add_u32 v60, v3, 4, s10")
e("v_and_b32 v3, 15, v1")
e("s_lshl_b32 s10, s50, 11")
e("s_lshl_b32 s11, s3, 8")
e("s_add_u32 s10, s10, s11")
e(f"s_add_u32 s10, s10, {HB6:#x}")
e("v_lshl_add_u32 v61, v3, 4, s10")
e(f"s_mov_b32 s10, {HB3ML:#x}")
def _p():
    e("v_lshlrev_b32 v20, 10, v1")
    e(f"v_add_u32 v20, {HB4A:#x}, v20")
wave0_hint2_barrier(10, _p, 0xffffffff, 0xffffffff, 16)
stamp(2)
sweep_pending(sweep8_list(52), 120)
stamp(8)
for i in range(8):
    u = 16 + 4 * i
    for (src, a) in ((u, 120), (u + 1, 122)):
        if i == 0:
            unpack2(src, a)
        else:
            e(f"v_lshlrev_b32 v124, 16, {v(src)}")
            e(f"v_and_b32 v125, 0xffff0000, {v(src)}")
            e(f"v_add_f32 {v(a)}, {v(a)}, v124")
            e(f"v_add_f32 {v(a+1)}, {v(a+1)}, v125")
red4_sg(120)
e("v_fma_f32 v120, v99, v120, v98")
e("v_cvt_pk_bf16_f32 v120, v120, v120")
e("v_lshlrev_b32 v120, 16, v120")
e("ds_write_b32 v53, v120")
e("s_waitcnt lgkmcnt(0)")
e("s_barrier")
e("ds_read_b128 v[16:19], v54")
e("ds_read_b128 v[20:23], v54 offset:16")
e("s_waitcnt lgkmcnt(0)")
def ln8():
    e("v_readfirstlane_b32 s10, v16")
    nop(1)
    for r in range(16, 24): e(f"v_subrev_f32 {v(r)}, s10, {v(r)}")
    e("v_add_f32 v40, v16, v17")
    e("v_mul_f32 v42, v16, v16")
    for r in range(18, 24): e(f"v_add_f32 v40, v40, {v(r)}")
    for r in range(17, 24): e(f"v_fmac_f32 v42, {v(r)}, {v(r)}")
    for r_ in (8, 4, 2, 1):
        nop(0)
        dpp("v_add_f32", 40, 40, 40, f"row_ror:{r_}")
        dpp("v_add_f32", 42, 42, 42, f"row_ror:{r_}")
    for sw in ("v_permlane16_swap_b32", "v_permlane32_swap_b32"):
        e("v_mov_b32 v41, v40")
        e("v_mov_b32 v43, v42")
        nop(0)
        e(f"{sw} v41, v40")
        e(f"{sw} v43, v42")
        e("v_add_f32 v40, v40, v41")
        e("v_add_f32 v42, v42, v43")
    e(f"v_mul_f32 v40, {fhex(1/512)}, v40")
    e(f"v_mul_f32 v42, {fhex(1/512)}, v42")
    e("v_fma_f32 v42, -v40, v40, v42")
    e("v_max_f32 v42, 0, v42")
    e(f"v_add_f32 v42, {fhex(1e-5)}, v42")
    e("v_rsq_f32 v42, v42")
    for r in range(16, 24): e(f"v_sub_f32 {v(r)}, {v(r)}, v40")
    for r in range(16, 24): e(f"v_mul_f32 {v(r)}, {v(r)}, v42")
ln8()
for i in range(8):
    e(f"v_fma_f32 {v(16+i)}, {v(16+i)}, {v(108+i)}, {v(100+i)}")
nop(0)
ln8()
for k in range(4):
    e(f"v_cvt_pk_bf16_f32 {v(24+k)}, {v(16+2*k)}, {v(17+2*k)}")
e("ds_write_b128 v55, v[24:27]")
e("s_waitcnt lgkmcnt(0)")
e("ds_read_b128 v[16:19], v56")
e("ds_read_b128 v[20:23], v56 offset:64")
e("s_waitcnt lgkmcnt(1)")
e("v_mfma_f32_16x16x32_bf16 v[24:27], v[16:19], v[64:67], 0")
e("v_mfma_f32_16x16x32_bf16 v[28:31], v[16:19], v[68:71], 0")
e("s_waitcnt lgkmcnt(0)")
e("v_mfma_f32_16x16x32_bf16 v[24:27], v[20:23], v[72:75], v[24:27]")
e("v_mfma_f32_16x16x32_bf16 v[28:31], v[20:23], v[76:79], v[28:31]")
nop(7)
set_exec(0xffff, 0)
e("ds_write_b32 v57, v24")
e("ds_write_b32 v57, v28 offset:64")
full_exec()
e("s_waitcnt lgkmcnt(0)")
e("s_barrier")
for w in range(8):
    e(f"ds_read_b32 {v(16+w)}, v58 offset:{128*w}")
e("s_waitcnt lgkmcnt(0)")
e("v_add_f32 v16, v16, v17"); e("v_add_f32 v18, v18, v19"); e("v_add_f32 v20, v20, v21"); e("v_add_f32 v22, v22, v23")
e("v_add_f32 v16, v16, v18"); e("v_add_f32 v20, v20, v22")
e("v_add3_u32 v24, 0, 0, 0") if False else None
e("v_add_f32 v24, v16, v20")
K1 = -2 * 0.7978845608028654 * LOG2E
e("v_add_f32 v24, v24, v96")
e("v_mul_f32 v20, v24, v24")
e(f"v_mul_f32 v20, {fhex(0.044715)}, v20")
e("v_fma_f32 v20, v20, v24, v24")
e(f"v_mul_f32 v20, {fhex(K1)}, v20")
e("v_exp_f32 v20, v20")
nop(0)
e("v_add_f32 v20, 1.0, v20")
e("v_rcp_f32 v20, v20")
nop(0)
e("v_mul_f32 v24, v24, v20")
e("v_cvt_pk_bf16_f32 v24, v24, v24")
e("ds_write_b16 v59, v24")
e("s_waitcnt lgkmcnt(0)")
e("ds_read_b128 v[16:19], v60")
e("s_waitcnt lgkmcnt(0)")
for t in range(4):
    e(f"v_mfma_f32_16x16x32_bf16 {v(24+4*t,4)}, v[16:19], {v(80+4*t,4)}, 0")
nop(7)
pub_tiles(24, 61)
stamp(3)
e("s_branch L_end")

lab("L_final")
e("s_barrier")
e("s_sub_u32 s52, s50, 48")
e("v_lshrrev_b32 v3, 3, v0")
e("v_lshlrev_b32 v72, 11, v3")
e("v_and_b32 v2, 7, v0")
e("v_lshl_add_u32 v72, v2, 4, v72")
e("s_lshl_b32 s10, s52, 7")
e("v_add_u32 v72, s10, v72")
e("v_cmp_gt_u32 vcc, 32, v3")
e("s_mov_b64 s[54:55], vcc")
e("v_cmp_gt_u32 vcc, 43, v3")
e("s_mov_b64 s[56:57], vcc")
bitswap_rho(48, 3)
e("v_lshl_add_u32 v48, v2, 2, v48")
e("s_lshl_b32 s10, s3, 7")
e("v_lshl_add_u32 v48, v48, 2, s10")
e("v_and_b32 v3, 3, v1")
e("v_lshlrev_b32 v70, 4, v3")
e("v_bfe_u32 v3, v1, 2, 3")
e("v_add_u32 v70, v70, v3")
e("s_lshr_b32 s10, s52, 1")
e("s_lshl_b32 s10, s10, 6")
e("s_and_b32 s11, s52, 1")
e("s_lshl_b32 s11, s11, 3")
e("s_add_u32 s10, s10, s11")
e("v_add_u32 v70, s10, v70")
e("v_lshlrev_b32 v71, 1, v70")
e(f"global_load_ushort v64, v71, {sp(X)}")
e(f"global_load_ushort v65, v71, {sp(B2)}")
e("s_waitcnt vmcnt(0)")
get_tags()
skr = uid("d")
e("s_cmp_lg_u32 s3, 0")
e(f"s_cbranch_scc1 {skr}")
e(f"s_mov_b32 s10, {HB1 + 4096 + 31*256}")
hint_wait(10, 16)
e("v_lshrrev_b32 v3, 2, v70")
e("v_lshlrev_b32 v3, 4, v3")
e(f"v_add_u32 v10, {HB1 + 256*16}, v3")
e(f"v_add_u32 v11, {HB1 + 640*16}, v3")
lp = uid("g")
lab(lp)
e(f"global_load_dwordx4 v[16:19], v10, {sp(WS)} sc1")
e(f"global_load_dwordx4 v[20:23], v11, {sp(WS)} sc1")
e("s_waitcnt vmcnt(0)")
tagcheck([16, 20], 40, lp)
e("v_and_b32 v3, 2, v70")
e("v_cmp_ne_u32 vcc, 0, v3")
nop(1)
e("v_cndmask_b32 v66, v16, v17, vcc")
e("v_cndmask_b32 v67, v20, v21, vcc")
e("v_and_b32 v3, 1, v70")
e("v_lshlrev_b32 v3, 4, v3")
e("v_lshrrev_b32 v66, v3, v66")
e("v_lshrrev_b32 v67, v3, v67")
for d in (64, 65, 66, 67):
    e(f"v_lshlrev_b32 {v(d)}, 16, {v(d)}")
lab(skr)
def fin_gather(hb, mask, ldsoff):
    e(f"v_add_u32 v10, {hb:#x}, v72")
    e("v_mov_b32 v16, 0"); e("v_mov_b32 v17, 0"); e(f"v_mov_b32 v18, {T0}"); e(f"v_mov_b32 v19, {T1}")
    lp = uid("g"); sk = uid("r")
    e(f"s_cmp_eq_u64 {mask}, 0")
    e(f"s_cbranch_scc1 {sk}")
    lab(lp)
    e(f"s_mov_b64 exec, {mask}")
    e(f"global_load_dwordx4 v[16:19], v10, {sp(WS)} sc1")
    full_exec()
    e("s_waitcnt vmcnt(0)")
    tagcheck([16], 40, lp)
    lab(sk)
    unpack2(16, 20); unpack2(17, 22)
    red4_sg(20)
    nop(1)
    dpp("v_add_f32", 20, 20, 20, "row_ror:8")
    set_exec(0x00ff00ff, 0x00ff00ff)
    e(f"ds_write_b32 v48, v20 offset:{ldsoff}")
    full_exec()
    e("s_waitcnt lgkmcnt(0)")
    e("s_barrier")
    e("s_cmp_lg_u32 s3, 0")
    skw = uid("rw")
    e(f"s_cbranch_scc1 {skw}")
    e("v_and_b32 v3, 31, v1")
    e("v_lshlrev_b32 v3, 2, v3")
    for w in range(8):
        e(f"ds_read_b32 {v(24+w)}, v3 offset:{ldsoff+128*w}")
    e("s_waitcnt lgkmcnt(0)")
    e("v_add_f32 v24, v24, v25"); e("v_add_f32 v26, v26, v27"); e("v_add_f32 v28, v28, v29"); e("v_add_f32 v30, v30, v31")
    e("v_add_f32 v24, v24, v26"); e("v_add_f32 v28, v28, v30"); e("v_add_f32 v16, v24, v28")
    return skw
e(f"s_mov_b32 s10, {HB3ML:#x}")
wave0_hint_barrier(10, 16)
skw = fin_gather(HB4A, "s[54:55]", 0)
e("v_fma_f32 v68, v66, v16, v64")
e("v_cvt_pk_bf16_f32 v68, v68, v68")
e("v_lshlrev_b32 v68, 16, v68")
lab(skw)
stamp(3)
skw = fin_gather(HB6, "s[56:57]", 1024)
e("v_add_f32 v16, v16, v65")
e("v_fma_f32 v16, v67, v16, v68")
e("v_cvt_pk_bf16_f32 v16, v16, v16")
set_exec(0xffffffff, 0)
e(f"global_store_short v71, v16, {sp(OUT)}")
e("s_cmp_lg_u32 s52, 0")
e(f"s_cbranch_scc1 {skw}")
set_exec(1, 0)
e(f"v_mov_b32 v3, {EPOCH:#x}")
e(f"v_mov_b32 v24, {T0}")
e(f"global_store_dword v3, v24, {sp(WS)} sc1")
lab(skw)
full_exec()
stamp(5)
e("s_branch L_end")

lab("L_roleB")
e("s_lshl_b32 s50, s48, 1")
e("s_add_u32 s50, s50, s49")
e("s_lshl_b32 s50, s50, 11")
e(f"s_add_u32 s50, s50, {HB2:#x}")
e("v_lshlrev_b32 v2, 4, v1")
e(f"global_load_dwordx4 v[128:131], v2, {sp(X)}")
e("v_and_b32 v2, 255, v0")
e("v_lshlrev_b32 v2, 2, v2")
e(f"global_load_dword v132, v2, {sp(X)}")
seg64_off()
load_seg64(WQ, 64, 8192)
WK = 8192
e("v_lshrrev_b32 v3, 3, v1")
e("v_lshlrev_b32 v10, 13, v3")
e("v_and_b32 v11, 7, v1")
e("v_xor_b32 v11, v11, v3")
e("v_lshl_add_u32 v10, v11, 4, v10")
e("s_lshl_b32 s10, s3, 19")
e("s_lshl_b32 s11, s48, 8")
e("s_add_u32 s10, s10, s11")
e("s_lshl_b32 s11, s49, 7")
e("s_add_u32 s10, s10, s11")
e("v_add_u32 v10, s10, v10")
e(f"s_mul_i32 s11, s3, {8*1040}")
e(f"s_add_u32 s11, s11, {WK}")
for i in range(8):
    sadd64(12, WUK, i * 8 * 8192)
    e("s_mov_b32 m0, s11")
    nop(0)
    e("global_load_lds_dwordx4 v10, s[12:13] nt")
    e("s_add_u32 s11, s11, 1040")
e("v_bfe_u32 v3, v1, 3, 1")
e("s_lshl_b32 s10, s3, 3")
e("v_add_u32 v3, s10, v3")
e("s_movk_i32 s10, 1040")
e("v_mul_lo_u32 v59, v3, s10")
e("v_and_b32 v3, 7, v1")
e("v_lshl_add_u32 v59, v3, 7, v59")
e("v_lshrrev_b32 v11, 4, v1")
e("v_xor_b32 v3, v3, v11")
e(f"v_add_u32 v59, {WK}, v59")
e("v_xor_b32 v11, 4, v3")
e("v_lshl_add_u32 v60, v11, 4, v59")
e("v_lshl_add_u32 v59, v3, 4, v59")
gemv64m_setup(52)
e("s_lshl_b32 s10, s3, 7")
e("v_lshl_add_u32 v56, v1, 1, s10")
e("v_lshrrev_b32 v3, 4, v1")
e("v_lshl_add_u32 v57, v3, 4, s10")
e("s_lshl_b32 s10, s3, 8")
e("s_add_u32 s10, s10, s50")
e("v_lshl_add_u32 v58, v3, 4, s10")
e("s_waitcnt vmcnt(16)")
get_tags()
skB = uid("b")
e("s_cmp_ge_u32 s3, 4")
e(f"s_cbranch_scc1 {skB}")
for k in range(4): unpack2(128 + k, 16 + 2 * k)
unpack2(132, 134)
e("v_add_f32 v40, v16, v17")
for r in range(18, 24): e(f"v_add_f32 v40, v40, {v(r)}")
wave_red("v_add_f32", 40, 41)
e(f"v_mul_f32 v40, {fhex(1/512)}, v40")
for r in list(range(16, 24)) + [134, 135]: e(f"v_sub_f32 {v(r)}, {v(r)}, v40")
e("v_mul_f32 v42, v16, v16")
for r in range(17, 24): e(f"v_fmac_f32 v42, {v(r)}, {v(r)}")
wave_red("v_add_f32", 42, 41)
e(f"v_mov_b32 v41, {fhex(1e-5)}")
e(f"v_fmac_f32 v41, {fhex(1/512)}, v42")
e("v_rsq_f32 v41, v41")
nop(0)
for r in (134, 135): e(f"v_mul_f32 {v(r)}, {v(r)}, v41")
stamp(5)
e("v_lshlrev_b32 v3, 4, v0")
e(f"v_add_u32 v3, {HB1C:#x}, v3")
for k in range(4):
    sadd64(54 + 2 * k, WS, k * 8192)
    sadd64(62 + 2 * k, WS, k * 8192 + 4096)
_ld = []
for k in range(4):
    _ld.append((f"global_load_dwordx4 {v(16+4*k,4)}, v3, s[{54+2*k}:{55+2*k}] sc1", 16 + 4 * k))
    _ld.append((f"global_load_dwordx4 {v(32+4*k,4)}, v3, s[{62+2*k}:{63+2*k}] sc1", 32 + 4 * k))
sweep_pending(_ld, 136)
for base in (16, 32):
    for o in (0, 1):
        e(f"v_add_f32 {v(base+o)}, {v(base+o)}, {v(base+4+o)}")
        e(f"v_add_f32 {v(base+8+o)}, {v(base+8+o)}, {v(base+12+o)}")
        e(f"v_add_f32 {v(base+o)}, {v(base+o)}, {v(base+8+o)}")
    e(f"v_cvt_pk_bf16_f32 {v(base)}, {v(base)}, {v(base+1)}")
    unpack2(base, base + 2)
for o in (0, 1):
    e(f"v_fma_f32 {v(34+o)}, {v(134+o)}, {v(34+o)}, {v(134+o)}")
    e(f"v_add_f32 {v(34+o)}, {v(34+o)}, {v(18+o)}")
e("v_lshlrev_b32 v3, 3, v0")
e("ds_write_b64 v3, v[34:35]")
stamp(4)
lab(skB)
e("s_waitcnt vmcnt(0)")
for rt in range(4):
    e(f"ds_read_b128 {v(96+8*rt,4)}, v59 offset:{2080*rt}")
    e(f"ds_read_b128 {v(100+8*rt,4)}, v60 offset:{2080*rt}")
e("s_waitcnt lgkmcnt(0)")
e("s_barrier")
stamp(1)
gemv64m(64, 0, 2048, 52)
e("s_waitcnt lgkmcnt(0)")
e("s_barrier")
sum64(2048, 24)
e("v_cvt_pk_bf16_f32 v24, v24, v24")
e("ds_write_b16 v56, v24 offset:4096")
e("s_waitcnt lgkmcnt(0)")
e("ds_read_b128 v[16:19], v57 offset:4096")
e("ds_read_b128 v[20:23], v57 offset:4160")
e("s_waitcnt lgkmcnt(1)")
for rt in range(4):
    e(f"v_mfma_f32_16x16x32_bf16 {v(24+4*rt,4)}, {v(96+8*rt,4)}, v[16:19], 0")
e("s_waitcnt lgkmcnt(0)")
for rt in range(4):
    e(f"v_mfma_f32_16x16x32_bf16 {v(24+4*rt,4)}, {v(100+8*rt,4)}, v[20:23], {v(24+4*rt,4)}")
nop(4)
set_exec(0x00010001, 0x00010001)
for rt in range(4):
    d = 64 + 4 * rt
    e(f"v_cvt_pk_bf16_f32 {v(d)}, {v(24+4*rt)}, {v(25+4*rt)}")
    e(f"v_cvt_pk_bf16_f32 {v(d+1)}, {v(26+4*rt)}, {v(27+4*rt)}")
    e(f"v_mov_b32 {v(d+2)}, {T0}")
    e(f"v_mov_b32 {v(d+3)}, {T1}")
    e(f"global_store_dwordx4 v58, {v(d,4)}, {sp(WS)} offset:{64*rt} sc1")
full_exec()
stamp(2)
e("s_branch L_end")

CK_ROW = 1040
QA = 128 * CK_ROW
PB = QA + 16 * CK_ROW
MX = PB + 16 * 272
lab("L_roleC")
e("v_lshrrev_b32 v2, 4, v1")
e("v_lshlrev_b32 v50, 18, v2")
e("v_and_b32 v3, 15, v1")
e("v_lshl_add_u32 v50, v3, 4, v50")
e("s_lshl_b32 s10, s49, 20")
e("s_lshl_b32 s11, s48, 11")
e("s_add_u32 s10, s10, s11")
e("s_lshl_b32 s11, s3, 8")
e("s_add_u32 s10, s10, s11")
e(f"s_add_u32 s10, s10, {HB3:#x}")
e("v_add_u32 v50, s10, v50")
for r in range(4):
    sadd64(54 + 2 * r, WS, r * 65536)
e("v_lshlrev_b32 v51, 9, v1")
e("s_lshl_b32 s10, s49, 13")
e("s_lshl_b32 s11, s48, 4")
e("s_add_u32 s10, s10, s11")
e(f"s_add_u32 s10, s10, {HB3ML:#x}")
e("v_add_u32 v51, s10, v51")
e("v_and_b32 v2, 127, v0")
e("v_lshlrev_b32 v52, 4, v2")
e("s_lshr_b32 s10, s3, 1")
e("s_lshl_b32 s11, s49, 4")
e("s_add_u32 s11, s11, s10")
e("s_lshl_b32 s11, s11, 12")
e(f"s_add_u32 s11, s11, {HB2:#x}")
e("v_add_u32 v52, s11, v52")
e(f"s_mul_i32 s10, s10, {CK_ROW}")
e("v_lshlrev_b32 v53, 3, v2")
e("v_add_u32 v53, s10, v53")
e(f"v_add_u32 v53, {QA}, v53")
for i in range(4):
    sadd64(62 + 2 * i, WS, i * 16384)
e("v_and_b32 v2, 15, v1")
e(f"s_movk_i32 s10, {CK_ROW}")
e("v_mul_lo_u32 v49, v2, s10")
e("v_lshrrev_b32 v3, 4, v1")
e("v_lshl_add_u32 v49, v3, 4, v49")
e(f"v_add_u32 v49, {QA}, v49")
e("v_lshlrev_b32 v54, 5, v2")
e(f"v_add_u32 v54, {MX}, v54")
e("s_lshl_b32 s10, s3, 2")
e("v_add_u32 v58, s10, v54")
e("s_movk_i32 s10, 272")
e("v_mul_lo_u32 v56, v2, s10")
e(f"v_add_u32 v56, {PB}, v56")
e("v_lshl_add_u32 v55, v3, 3, v56")
e("s_lshl_b32 s10, s3, 5")
e("v_add_u32 v55, s10, v55")
e("v_lshl_add_u32 v56, v3, 4, v56")
e("v_lshlrev_b32 v2, 4, v1")
e("s_lshl_b32 s10, s48, 17")
e("s_lshl_b32 s11, s3, 14")
e("s_add_u32 s10, s10, s11")
e(f"s_add_u32 s12, s{CKV}, s10")
e(f"s_addc_u32 s13, s{CKV+1}, 0")
e(f"s_mul_i32 s11, s3, {16*CK_ROW}")
for i in range(16):
    e("s_mov_b32 m0, s11")
    e("s_nop 0")
    e("global_load_lds_dwordx4 v2, s[12:13] nt")
    if i < 15:
        e("s_add_u32 s12, s12, 1024")
        e("s_addc_u32 s13, s13, 0")
        e(f"s_add_u32 s11, s11, {CK_ROW}")
e("s_waitcnt vmcnt(0)")
get_tags()
e("s_barrier")
stamp(4)
e("v_and_b32 v2, 15, v1")
e("s_lshl_b32 s10, s3, 4")
e("v_add_u32 v2, s10, v2")
e(f"s_movk_i32 s10, {CK_ROW}")
e("v_mul_lo_u32 v2, v2, s10")
e("v_lshrrev_b32 v3, 4, v1")
e("v_lshl_add_u32 v2, v3, 4, v2")
for j in range(16):
    e(f"ds_read_b128 {v(64+4*j,4)}, v2 offset:{64*j}")
e("v_lshrrev_b32 v2, 4, v1")
e("v_lshlrev_b32 v2, 3, v2")
e("v_and_b32 v3, 15, v1")
e("v_lshrrev_b32 v3, 2, v3")
e("v_add_u32 v2, v2, v3")
e("v_mul_lo_u32 v2, v2, s10")
e("v_and_b32 v3, 3, v1")
e("v_lshl_add_u32 v2, v3, 3, v2")
e("s_lshl_b32 s11, s3, 7")
e("v_add_u32 v2, s11, v2")
e(f"v_add_u32 v3, {64*CK_ROW}, v2")
for j in range(4):
    for jj in range(4):
        base = 2 if j < 2 else 3
        off = (j % 2) * 32 * CK_ROW + jj * 32
        d = 128 + (j * 4 + jj) * 4
        e(f"ds_read_b64_tr_b16 {v(d,2)}, {v(base)} offset:{off}")
        e(f"ds_read_b64_tr_b16 {v(d+2,2)}, {v(base)} offset:{off+4*CK_ROW}")
e("s_waitcnt lgkmcnt(0)")
e(f"s_mov_b32 s10, {HB1C:#x}")
def _c():
    e("v_lshlrev_b32 v20, 11, v1")
    e("s_lshl_b32 s10, s49, 16")
    e(f"s_add_u32 s10, s10, {HB2+2032:#x}")
    e("v_add_u32 v20, s10, v20")
wave0_hint2_barrier(10, _c, 0xffffffff, 0, 16)
stamp(1)
_ld = []
for i in range(4):
    _ld.append((f"global_load_dwordx4 {v(16+8*i,4)}, v52, s[{62+2*i}:{63+2*i}] sc1", 16 + 8 * i))
    _ld.append((f"global_load_dwordx4 {v(20+8*i,4)}, v52, s[{62+2*i}:{63+2*i}] offset:2048 sc1", 20 + 8 * i))
sweep_pending(_ld, 192)
stamp(3)
for i in range(4):
    a, b = 16 + 8 * i, 20 + 8 * i
    for k in (0, 1):
        e(f"v_lshlrev_b32 v2, 16, {v(a+k)}")
        e(f"v_lshlrev_b32 v3, 16, {v(b+k)}")
        e("v_add_f32 v2, v2, v3")
        e(f"v_and_b32 v3, 0xffff0000, {v(a+k)}")
        e(f"v_and_b32 v57, 0xffff0000, {v(b+k)}")
        e("v_add_f32 v3, v3, v57")
        e(f"v_cvt_pk_bf16_f32 {v(a+k)}, v2, v3")
    e(f"ds_write_b64 v53, {v(a,2)} offset:{i*4*CK_ROW}")
e("s_waitcnt lgkmcnt(0)")
stamp(5)
e("s_barrier")
stamp(6)
for j in range(16):
    e(f"ds_read_b128 {v(192+4*j,4)}, v49 offset:{64*j}")
for j in range(16):
    e(f"s_waitcnt lgkmcnt({15-j})")
    c = "0" if j == 0 else "v[16:19]"
    e(f"v_mfma_f32_16x16x32_bf16 v[16:19], {v(64+4*j,4)}, {v(192+4*j,4)}, {c}")
nop(7)
SCL = 128 ** -0.5 * LOG2E
for r in range(4): e(f"v_mul_f32 {v(16+r)}, {fhex(SCL)}, {v(16+r)}")
e("v_max_f32 v20, v16, v17")
e("v_max3_f32 v20, v20, v18, v19")
e("v_mov_b32 v21, v20")
nop(1)
e("v_permlane16_swap_b32 v21, v20")
e("v_max_f32 v20, v20, v21")
e("v_mov_b32 v21, v20")
nop(1)
e("v_permlane32_swap_b32 v21, v20")
e("v_max_f32 v20, v20, v21")
set_exec(0xffff, 0)
e("ds_write_b32 v58, v20")
full_exec()
e("s_waitcnt lgkmcnt(0)")
stamp(7)
e("s_barrier")
stamp(8)
e("ds_read_b128 v[24:27], v54")
e("ds_read_b128 v[28:31], v54 offset:16")
e("s_waitcnt lgkmcnt(0)")
e("v_max3_f32 v20, v24, v25, v26")
e("v_max3_f32 v20, v20, v27, v28")
e("v_max3_f32 v20, v20, v29, v30")
e("v_max_f32 v20, v20, v31")
for r in range(4):
    e(f"v_sub_f32 {v(16+r)}, {v(16+r)}, v20")
for r in range(4):
    e(f"v_exp_f32 {v(16+r)}, {v(16+r)}")
nop(0)
e("v_cvt_pk_bf16_f32 v22, v16, v17")
e("v_cvt_pk_bf16_f32 v23, v18, v19")
e("ds_write_b64 v55, v[22:23]")
e("v_add_f32 v16, v16, v17")
e("v_add_f32 v18, v18, v19")
e("v_add_f32 v16, v16, v18")
e("v_mov_b32 v21, v16")
nop(1)
e("v_permlane16_swap_b32 v21, v16")
e("v_add_f32 v16, v16, v21")
e("v_mov_b32 v21, v16")
nop(1)
e("v_permlane32_swap_b32 v21, v16")
e("v_add_f32 v16, v16, v21")
set_exec(0xffff, 0)
e("ds_write_b32 v58, v16 offset:512")
full_exec()
e("s_waitcnt lgkmcnt(0)")
stamp(9)
e("s_barrier")
stamp(10)
for j in range(4):
    e(f"ds_read_b128 {v(192+4*j,4)}, v56 offset:{64*j}")
e("ds_read_b128 v[40:43], v54 offset:512")
e("ds_read_b128 v[44:47], v54 offset:528")
for j in range(4):
    e(f"s_waitcnt lgkmcnt({5-j})")
    for jj in range(4):
        c = "0" if j == 0 else v(24 + 4 * jj, 4)
        e(f"v_mfma_f32_16x16x32_bf16 {v(24+4*jj,4)}, {v(192+4*j,4)}, {v(128+(j*4+jj)*4,4)}, {c}")
e(f"v_mov_b32 v22, {T0}")
e(f"v_mov_b32 v23, {T1}")
e("s_waitcnt lgkmcnt(0)")
e("v_add_f32 v40, v40, v41"); e("v_add_f32 v42, v42, v43"); e("v_add_f32 v44, v44, v45"); e("v_add_f32 v46, v46, v47")
e("v_add_f32 v40, v40, v42"); e("v_add_f32 v44, v44, v46"); e("v_add_f32 v21, v40, v44")
nop(3)
pub_exec()
for r in range(4):
    d = 208 + 4 * r
    e(f"v_cvt_pk_bf16_f32 {v(d)}, {v(24+r)}, {v(28+r)}")
    e(f"v_cvt_pk_bf16_f32 {v(d+1)}, {v(32+r)}, {v(36+r)}")
    e(f"v_mov_b32 {v(d+2)}, {T0}")
    e(f"v_mov_b32 {v(d+3)}, {T1}")
    e(f"global_store_dwordx4 v50, {v(d,4)}, s[{54+2*r}:{55+2*r}] sc1")
sk = uid("c")
e("s_cmp_lg_u32 s3, 0")
e(f"s_cbranch_scc1 {sk}")
pub_exec(0xffff, 0)
e(f"global_store_dwordx4 v51, v[20:23], {sp(WS)} sc1")
lab(sk)
full_exec()
stamp(2)
e("s_branch L_end")


OB, CB = 133120, 134144
lab("L_roleA")
e("s_lshl_b32 s51, s48, 16")
e(f"s_add_u32 s51, s51, {HB3:#x}")
sweep8_addr(52, 51)
e("v_and_b32 v3, 31, v1")
e("s_lshl_b32 s10, s48, 9")
e(f"s_add_u32 s10, s10, {HB3ML:#x}")
e("v_lshl_add_u32 v54, v3, 4, s10")
e("v_lshrrev_b32 v55, 4, v1")
e("v_lshlrev_b32 v55, 5, v55")
col_of_lane(56, 3)
e("v_lshlrev_b32 v56, 1, v56")
e(f"v_add_u32 v56, {OB}, v56")
e("v_lshrrev_b32 v3, 4, v1")
e("v_lshlrev_b32 v57, 4, v3")
e(f"v_add_u32 v57, {OB}, v57")
e("v_and_b32 v3, 15, v1")
e("s_lshl_b32 s10, s3, 5")
e(f"s_add_u32 s10, s10, {CB}")
e("v_lshl_add_u32 v58, v3, 1, s10")
e("s_lshl_b32 s10, s48, 11")
e("s_lshl_b32 s11, s49, 10")
e("s_add_u32 s10, s10, s11")
e(f"s_add_u32 s10, s10, {HB4A:#x}")
e("v_lshl_add_u32 v59, v1, 4, s10")
e("s_lshl_b32 s10, s3, 6")
e(f"s_add_u32 s10, s10, {CB+256}")
e("v_lshl_add_u32 v60, v3, 2, s10")
e("v_lshrrev_b32 v61, 4, v1")
e("v_lshlrev_b32 v61, 7, v61")
e("v_lshl_add_u32 v61, v3, 2, v61")
e(f"v_add_u32 v61, {CB+256}, v61")
e("s_waitcnt vmcnt(0)")
get_tags()
e(f"s_mov_b32 s10, {HB1C:#x}")
wave0_hint_barrier(10, 16)
e("v_lshrrev_b32 v2, 4, v1")
e("v_lshlrev_b32 v2, 13, v2")
e("v_and_b32 v3, 15, v1")
e("v_lshl_add_u32 v2, v3, 4, v2")
e("s_lshl_b32 s10, s3, 19")
e("s_lshl_b32 s11, s48, 8")
e("s_add_u32 s10, s10, s11")
e("v_add_u32 v2, s10, v2")
e(f"s_mul_i32 s11, s3, {16*1040}")
e(f"s_mov_b32 s12, s{WUV}")
e(f"s_mov_b32 s13, s{WUV+1}")
for i in range(16):
    e("s_mov_b32 m0, s11")
    nop(0)
    e("global_load_lds_dwordx4 v2, s[12:13] nt")
    if i < 15:
        e("s_add_u32 s12, s12, 32768")
        e("s_addc_u32 s13, s13, 0")
        e("s_add_u32 s11, s11, 1040")
e("v_lshrrev_b32 v2, 4, v1")
e("s_movk_i32 s10, 2080")
e("v_mul_lo_u32 v2, v2, s10")
e("v_bfe_u32 v3, v1, 2, 2")
e("v_lshl_add_u32 v2, v3, 8, v2")
e("v_and_b32 v3, 3, v1")
e("v_lshl_add_u32 v2, v3, 3, v2")
e("s_lshl_b32 s10, s3, 5")
e("v_add_u32 v2, s10, v2")
e(f"v_add_u32 v3, {8*8320}, v2")
e("s_waitcnt vmcnt(0)")
e("s_barrier")
tr_frags(64, [2, 3], 16, 1, 8320, 0, 1040, jsplit=8)
e("s_waitcnt lgkmcnt(0)")
e("s_barrier")
e("v_lshrrev_b32 v2, 5, v1")
e("v_lshlrev_b32 v2, 10, v2")
e("v_and_b32 v3, 31, v1")
e("v_lshl_add_u32 v2, v3, 4, v2")
e("s_lshl_b32 s10, s48, 17")
e("s_lshl_b32 s11, s3, 14")
e("s_add_u32 s10, s10, s11")
e("s_lshl_b32 s11, s49, 9")
e("s_add_u32 s10, s10, s11")
e(f"s_add_u32 s12, s{WO}, s10")
e(f"s_addc_u32 s13, s{WO+1}, 0")
e(f"s_mul_i32 s11, s3, {8*1040}")
for i in range(8):
    e("s_mov_b32 m0, s11")
    nop(0)
    e("global_load_lds_dwordx4 v2, s[12:13] nt")
    if i < 7:
        e("s_add_u32 s12, s12, 2048")
        e("s_addc_u32 s13, s13, 0")
        e("s_add_u32 s11, s11, 1040")
e("v_lshrrev_b32 v2, 4, v1")
e("v_lshlrev_b32 v2, 2, v2")
e("v_bfe_u32 v3, v1, 3, 1")
e("v_add_u32 v2, v2, v3")
e("s_movk_i32 s10, 1040")
e("v_mul_lo_u32 v2, v2, s10")
e("v_bfe_u32 v3, v1, 2, 1")
e("v_lshl_add_u32 v2, v3, 9, v2")
e("v_and_b32 v3, 3, v1")
e("v_lshl_add_u32 v2, v3, 3, v2")
e("s_lshl_b32 s11, s3, 6")
e("v_add_u32 v2, s11, v2")
e("s_waitcnt vmcnt(0)")
e("s_barrier")
tr_frags(128, [2], 4, 2, 16 * 1040, 32, 2 * 1040)
e("s_waitcnt lgkmcnt(0)")
stamp(4)
e("s_lshl_b32 s10, s48, 12")
e(f"s_add_u32 s10, s10, {HB2:#x}")
def _a():
    e("v_mov_b32 v20, v54")
wave0_hint2_barrier(10, _a, 0xffffffff, 0, 16)
stamp(1)
stamp_s9(16)
sweep_pending(sweep8_list(52) + [(f"global_load_dwordx4 v[192:195], v54, {sp(WS)} sc1", 192)], 196)
stamp(3)
stamp_s9(17)
e("v_mov_b32 v196, v192")
wave_red("v_max_f32", 196, 197, half=True)
e("v_sub_f32 v192, v192, v196")
e("v_exp_f32 v192, v192")
nop(0)
e("v_mul_f32 v196, v192, v193")
wave_red("v_add_f32", 196, 197, half=True)
e("v_rcp_f32 v196, v196")
nop(0)
e("v_mul_f32 v192, v192, v196")
for i in range(8):
    e(f"ds_bpermute_b32 {v(200+i)}, v55, v192 offset:{4*i}")
for i in range(8):
    u = 16 + 4 * i
    e(f"s_waitcnt lgkmcnt({7-i})")
    for (src, a) in ((u, 208), (u + 1, 210)):
        e(f"v_lshlrev_b32 v196, 16, {v(src)}")
        e(f"v_and_b32 v197, 0xffff0000, {v(src)}")
        if i == 0:
            e(f"v_mul_f32 {v(a)}, {v(200+i)}, v196")
            e(f"v_mul_f32 {v(a+1)}, {v(200+i)}, v197")
        else:
            e(f"v_fmac_f32 {v(a)}, {v(200+i)}, v196")
            e(f"v_fmac_f32 {v(a+1)}, {v(200+i)}, v197")
red4_sg(208)
e("v_cvt_pk_bf16_f32 v208, v208, v208")
e("ds_write_b16 v56, v208")
e("s_waitcnt lgkmcnt(0)")
stamp(5)
e("s_barrier")
stamp(6)
for j in range(16):
    e(f"ds_read_b128 {v(192+4*j,4)}, v57 offset:{64*j}")
for j in range(16):
    e(f"s_waitcnt lgkmcnt({15-j})")
    c = "0" if j == 0 else "v[16:19]"
    e(f"v_mfma_f32_16x16x32_bf16 v[16:19], {v(192+4*j,4)}, {v(64+4*j,4)}, {c}")
nop(7)
e("v_cvt_pk_bf16_f32 v16, v16, v16")
set_exec(0xffff, 0)
e("ds_write_b16 v58, v16")
full_exec()
e("s_waitcnt lgkmcnt(0)")
e("s_barrier")
stamp(7)
for j in range(4):
    e(f"ds_read_b128 {v(192+4*j,4)}, v57 offset:{1024+64*j}")
for j in range(4):
    e(f"s_waitcnt lgkmcnt({3-j})")
    for t in range(2):
        c = "0" if j == 0 else v(24 + 4 * t, 4)
        e(f"v_mfma_f32_16x16x32_bf16 {v(24+4*t,4)}, {v(192+4*j,4)}, {v(128+(j*2+t)*4,4)}, {c}")
nop(7)
e("v_cvt_pk_bf16_f32 v24, v24, v28")
set_exec(0xffff, 0)
e("ds_write_b32 v60, v24")
full_exec()
e("s_waitcnt lgkmcnt(0)")
e("s_barrier")
sk = uid("a")
e("s_cmp_lg_u32 s3, 0")
e(f"s_cbranch_scc1 {sk}")
e("ds_read_b32 v16, v61")
e("ds_read_b32 v17, v61 offset:64")
e(f"v_mov_b32 v18, {T0}")
e(f"v_mov_b32 v19, {T1}")
e("s_waitcnt lgkmcnt(0)")
e(f"global_store_dwordx4 v59, v[16:19], {sp(WS)} sc1")
lab(sk)
stamp(2)

lab("L_end")
e("s_endpgm")
L.append('.section .rodata,"a"')
L.append(".p2align 6")
L.append(f".amdhsa_kernel {NAME}_kernel")
L.append("  .amdhsa_next_free_vgpr 256")
L.append("  .amdhsa_next_free_sgpr 102")
L.append("  .amdhsa_accum_offset 256")
L.append("  .amdhsa_group_segment_fixed_size 0")
L.append("  .amdhsa_kernarg_size 128")
L.append("  .amdhsa_user_sgpr_count 2")
L.append("  .amdhsa_user_sgpr_kernarg_segment_ptr 1")
L.append("  .amdhsa_system_sgpr_workgroup_id_x 1")
L.append(".end_amdhsa_kernel")
open(OUTF, "w").write("\n".join(L) + "\n")
print("wrote", OUTF, len(L), "lines")
```

```python
import sys, struct

DEBUG = "--debug" in sys.argv
NODRY = "--nodry" in sys.argv
DIAG = "--diag" in sys.argv
OUTF = [a for a in sys.argv[1:] if not a.startswith("--")]
NAME = "adaLN_cond__compressed_kv_cla__mixer_channel_mlp__decode"
OUTF = OUTF[0] if OUTF else f"cdna_kernels/{NAME}.s"

HB1C = 0x8000
HBQ = 0x4000
PS3 = 0x308000
PSQ = 0x310000
PS4 = 0x320000
PSA = 0x330000
PS1 = 0x340000
HBQL = 0x350000
HB1, HB2, HB3, HB3ML, HB4A, HB4B, HB6, EPOCH = 0x0, 0x10000, 0x100000, 0x300000, 0x400000, 0x480000, 0x500000, 0x600000
TS = 0x2000000
X, CKV, WQ, WUK, WUV, WO, BX, W1, B1, W2, B2, C, WMOD, OUT, DBG, WS = [16 + 2 * i for i in range(16)]
def sp(b): return f"s[{b}:{b+1}]"
LDS_BYTES = 155136
SPIN = 400000
LOG2E = 1.4426950408889634
T0, T1 = "s8", "s93"
PM = "s[96:97]"

L = []
def e(s): L.append("    " + s)
def lab(s): L.append(s + ":")
_uid = [0]
def uid(p="L"):
    _uid[0] += 1
    return f"{p}_{_uid[0]}"
def v(a, n=1): return f"v{a}" if n == 1 else f"v[{a}:{a+n-1}]"
def nop(n): e(f"s_nop {n}")
def fhex(x): return "0x%08x" % struct.unpack("<I", struct.pack("<f", x))[0]

def stamp(k):
    if not DEBUG: return
    sk = uid("st")
    e("s_cmp_lg_u32 s3, 0")
    e(f"s_cbranch_scc1 {sk}")
    e("s_memrealtime s[90:91]")
    e("s_waitcnt lgkmcnt(0)")
    e("v_mov_b32 v255, s90")
    e("v_mov_b32 v254, s92")
    e(f"global_store_dword v254, v255, {sp(WS)} offset:{4*k}")
    lab(sk)

def diag(k, neg=False):
    if not DIAG or neg: return
    sk = uid("dg")
    e("s_cmp_lg_u32 s3, 0")
    e(f"s_cbranch_scc1 {sk}")
    e("s_cmp_lg_u32 s4, 0")
    e(f"s_cbranch_scc1 {sk}")
    e(f"s_cmp_lg_u32 s7, {6 if k == 8 else 0}")
    e(f"s_cbranch_scc1 {sk}")
    if k == 1:
        e("s_cmp_lg_u32 s6, 0")
        e(f"s_cbranch_scc1 {sk}")
    e("s_memrealtime s[90:91]")
    e("s_waitcnt lgkmcnt(0)")
    e("v_mov_b32 v255, s90")
    e(f"v_mov_b32 v254, {4*k}")
    e("s_mov_b64 s[94:95], exec")
    set_exec(1, 0)
    e(f"global_store_dword v254, v255, {sp(DBG)}")
    e("s_mov_b64 exec, s[94:95]")
    lab(sk)

def stamp_w(k):
    if not DEBUG: return
    e("s_memrealtime s[90:91]")
    e("s_lshl_b32 s94, s3, 2")
    e("s_add_u32 s94, s94, s92")
    e("s_waitcnt lgkmcnt(0)")
    e("v_mov_b32 v255, s90")
    e("v_mov_b32 v254, s94")
    e(f"global_store_dword v254, v255, {sp(WS)} offset:{4*k}")

def stamp_s9(k):
    if not DEBUG: return
    sk = uid("st")
    e("s_cmp_lg_u32 s3, 0")
    e(f"s_cbranch_scc1 {sk}")
    e("v_mov_b32 v255, s9")
    e("v_mov_b32 v254, s92")
    e(f"global_store_dword v254, v255, {sp(WS)} offset:{4*k}")
    lab(sk)

def set_exec(lo, hi):
    e(f"s_mov_b32 exec_lo, {lo:#x}")
    e(f"s_mov_b32 exec_hi, {hi:#x}")
def full_exec(): e("s_mov_b64 exec, -1")
def pub_exec(lo=None, hi=None):
    if lo is None:
        e(f"s_mov_b64 exec, {PM}")
    else:
        set_exec(lo, hi)
        e(f"s_and_b64 exec, exec, {PM}")

def spin_bound():
    e("s_add_u32 s9, s9, 1")
    e(f"s_cmp_gt_u32 s9, {SPIN}")
    e("s_cbranch_scc1 L_end")

def tagcheck(units, t, retry):
    us = list(units)
    if len(us) % 2: us.append(us[-1])
    first = True
    for a, b in zip(us[0::2], us[1::2]):
        for k in (0, 1):
            if first:
                e(f"v_min_u32 {v(t+2*k)}, {v(a+2+k)}, {v(b+2+k)}")
                e(f"v_max_u32 {v(t+2*k+1)}, {v(a+2+k)}, {v(b+2+k)}")
            else:
                e(f"v_min3_u32 {v(t+2*k)}, {v(t+2*k)}, {v(a+2+k)}, {v(b+2+k)}")
                e(f"v_max3_u32 {v(t+2*k+1)}, {v(t+2*k+1)}, {v(a+2+k)}, {v(b+2+k)}")
        first = False
    e(f"v_xor_b32 {v(t)}, {T0}, {v(t)}")
    e(f"v_xor_b32 {v(t+1)}, {T0}, {v(t+1)}")
    e(f"v_xor_b32 {v(t+2)}, {T1}, {v(t+2)}")
    e(f"v_xor_b32 {v(t+3)}, {T1}, {v(t+3)}")
    e(f"v_or3_b32 {v(t)}, {v(t)}, {v(t+1)}, {v(t+2)}")
    e(f"v_or_b32 {v(t)}, {v(t)}, {v(t+3)}")
    e(f"v_cmp_ne_u32 vcc, 0, {v(t)}")
    ok = uid("ok")
    e(f"s_cbranch_vccz {ok}")
    spin_bound()
    e(f"s_branch {retry}")
    lab(ok)

def hint_wait(saddr_expr_sgpr, u, sleep=4):
    lp, dn = uid("hw"), uid("hd")
    e(f"v_mov_b32 {v(u+4)}, s{saddr_expr_sgpr}")
    set_exec(1, 0)
    lab(lp)
    e(f"global_load_dwordx4 {v(u,4)}, {v(u+4)}, {sp(WS)} sc1")
    e("s_waitcnt vmcnt(0)")
    e(f"v_xor_b32 {v(u)}, {T0}, {v(u+2)}")
    e(f"v_xor_b32 {v(u+1)}, {T1}, {v(u+3)}")
    e(f"v_or_b32 {v(u)}, {v(u)}, {v(u+1)}")
    e(f"v_cmp_ne_u32 vcc, 0, {v(u)}")
    e(f"s_cbranch_vccz {dn}")
    spin_bound()
    e(f"s_sleep {sleep}")
    e(f"s_branch {lp}")
    lab(dn)
    full_exec()

def hint_multi(addr_v, lo, hi, u, sleep=1, base=224):
    lp, dn = uid("hw"), uid("hd")
    set_exec(lo, hi)
    for k in range(3):
        e(f"global_load_dwordx4 {v(base+4*k,4)}, {v(addr_v)}, {sp(WS)} sc1")
        e(f"s_sleep {sleep+1}")
    lab(lp)
    for k in range(4):
        e(f"global_load_dwordx4 {v(base+4*((k+3)%4),4)}, {v(addr_v)}, {sp(WS)} sc1")
        e("s_waitcnt vmcnt(3)")
        e(f"v_xor_b32 {v(u)}, {T0}, {v(base+4*k+2)}")
        e(f"v_xor_b32 {v(u+1)}, {T1}, {v(base+4*k+3)}")
        e(f"v_or_b32 {v(u)}, {v(u)}, {v(u+1)}")
        e(f"v_cmp_ne_u32 vcc, 0, {v(u)}")
        e(f"s_cbranch_vccz {dn}")
        e(f"s_sleep {sleep}")
    spin_bound()
    e(f"s_branch {lp}")
    lab(dn)
    full_exec()

def wave0_hint2_barrier(sreg, addr_code, lo, hi, u):
    sk = uid("h")
    e("s_cmp_lg_u32 s3, 0")
    e(f"s_cbranch_scc1 {sk}")
    hint_wait(sreg, u)
    addr_code()
    hint_multi(u + 4, lo, hi, u)
    lab(sk)
    e("s_barrier")

def presignal(sreg, shift=0, nl=1, guard=True):
    sk = uid("ps")
    if guard:
        e("s_cmp_lg_u32 s3, 0")
        e(f"s_cbranch_scc1 {sk}")
    e(f"v_mov_b32 v246, {T0}")
    e(f"v_mov_b32 v247, {T1}")
    e(f"v_lshl_add_u32 v248, v1, {shift}, s{sreg}")
    m = (1 << nl) - 1
    set_exec(m & 0xffffffff, m >> 32)
    e(f"global_store_dwordx4 v248, v[244:247], {sp(WS)} sc1")
    full_exec()
    lab(sk)

def wave0_multi_barrier(addr_code, lo, hi, u):
    sk = uid("h")
    e("s_cmp_lg_u32 s3, 0")
    e(f"s_cbranch_scc1 {sk}")
    addr_code()
    hint_multi(u + 4, lo, hi, u)
    lab(sk)
    e("s_barrier")

def wave0_hint_barrier(sreg, u):
    sk = uid("h")
    e("s_cmp_lg_u32 s3, 0")
    e(f"s_cbranch_scc1 {sk}")
    hint_wait(sreg, u)
    lab(sk)
    e("s_barrier")

def dpp(op, d, s0, s1, ctrl):
    e(f"{op}_dpp {v(d)}, {v(s0)}, {v(s1)} {ctrl} row_mask:0xf bank_mask:0xf")

def wave_red(op, a, t, half=False):
    for r in (8, 4, 2, 1):
        nop(1)
        dpp(op, a, a, a, f"row_ror:{r}")
    e(f"v_mov_b32 {v(t)}, {v(a)}")
    nop(1)
    e(f"v_permlane16_swap_b32 {v(t)}, {v(a)}")
    e(f"{op} {v(a)}, {v(a)}, {v(t)}")
    if not half:
        e(f"v_mov_b32 {v(t)}, {v(a)}")
        nop(1)
        e(f"v_permlane32_swap_b32 {v(t)}, {v(a)}")
        e(f"{op} {v(a)}, {v(a)}, {v(t)}")

def red8_to2(acc):
    for k in range(4):
        e(f"v_permlane32_swap_b32 {v(acc+2*k)}, {v(acc+2*k+1)}")
    for k in range(4):
        e(f"v_add_f32 {v(acc+2*k)}, {v(acc+2*k)}, {v(acc+2*k+1)}")
    nop(1)
    e(f"v_permlane16_swap_b32 {v(acc+0)}, {v(acc+2)}")
    e(f"v_permlane16_swap_b32 {v(acc+4)}, {v(acc+6)}")
    e(f"v_add_f32 {v(acc+0)}, {v(acc+0)}, {v(acc+2)}")
    e(f"v_add_f32 {v(acc+4)}, {v(acc+4)}, {v(acc+6)}")

def bitswap_rho(dst, t):
    e(f"v_lshrrev_b32 {v(dst)}, 5, v1")
    e(f"v_lshrrev_b32 {v(t)}, 3, v1")
    e(f"v_and_b32 {v(t)}, 2, {v(t)}")
    e(f"v_or_b32 {v(dst)}, {v(dst)}, {v(t)}")

def gemv_row8(W, nrows, vf, acc, lo, hi):
    for i in range(nrows):
        e(f"v_cvt_pk_bf16_f32 {v(lo+i)}, {v(vf+i)}, 0")
        e(f"v_cvt_pk_bf16_f32 {v(hi+i)}, 0, {v(vf+i)}")
    for i in range(nrows):
        for k in range(4):
            c0 = "0" if i == 0 else v(acc + 2 * k)
            c1 = "0" if i == 0 else v(acc + 2 * k + 1)
            e(f"v_dot2_f32_bf16 {v(acc+2*k)}, {v(W+4*i+k)}, {v(lo+i)}, {c0}")
            e(f"v_dot2_f32_bf16 {v(acc+2*k+1)}, {v(W+4*i+k)}, {v(hi+i)}, {c1}")
    nop(2)

def sadd64(dst, src, imm):
    e(f"s_add_u32 s{dst}, s{src}, {imm}")
    e(f"s_addc_u32 s{dst+1}, s{src+1}, 0")

def unpack2(src, d):
    e(f"v_lshlrev_b32 {v(d)}, 16, {v(src)}")
    e(f"v_and_b32 {v(d+1)}, 0xffff0000, {v(src)}")

def gemv64(W, ldsV, ldsRW, nparts=1, pstride=0):
    e(f"ds_read_b128 v[16:19], v2 offset:{ldsV}")
    e(f"ds_read_b128 v[20:23], v2 offset:{ldsV+16}")
    for p in range(1, nparts):
        e(f"ds_read_b128 {v(24+8*(p-1),4)}, v2 offset:{ldsV+p*pstride}")
        e(f"ds_read_b128 {v(28+8*(p-1),4)}, v2 offset:{ldsV+p*pstride+16}")
    e("s_waitcnt lgkmcnt(0)")
    for p in range(1, nparts):
        for i in range(8):
            e(f"v_add_f32 {v(16+i)}, {v(16+i)}, {v(24+8*(p-1)+i)}")
    gemv_row8(W, 8, 16, 40, 24, 32)
    red8_to2(40)
    nop(0)
    dpp("v_add_f32", 40, 40, 40, "row_ror:8")
    dpp("v_add_f32", 44, 44, 44, "row_ror:8")
    set_exec(0x00ff00ff, 0x00ff00ff)
    e(f"ds_write_b32 v48, v40 offset:{ldsRW}")
    e(f"ds_write_b32 v48, v44 offset:{ldsRW+16}")
    full_exec()
def gemv64_setup():
    e("v_lshrrev_b32 v2, 3, v1")
    e("v_lshlrev_b32 v2, 5, v2")
    e("s_lshl_b32 s10, s3, 8")
    e("v_add_u32 v2, s10, v2")
    bitswap_rho(48, 3)
    e("v_and_b32 v3, 7, v1")
    e("v_lshl_add_u32 v48, v3, 3, v48")
    e("v_lshl_add_u32 v48, v48, 2, s10")
def sum64(ldsRW, dst):
    e("v_lshlrev_b32 v3, 2, v1")
    for w in range(8):
        e(f"ds_read_b32 {v(16+w)}, v3 offset:{ldsRW+256*w}")
    e("s_waitcnt lgkmcnt(0)")
    e("v_add_f32 v16, v16, v17"); e("v_add_f32 v18, v18, v19"); e("v_add_f32 v20, v20, v21"); e("v_add_f32 v22, v22, v23")
    e("v_add_f32 v16, v16, v18"); e("v_add_f32 v20, v20, v22")
    e(f"v_add_f32 {v(dst)}, v16, v20")
def load_seg64(ptr, dst, stride):
    for i in range(8):
        sadd64(12, ptr, i * stride)
        e(f"global_load_dwordx4 {v(dst+4*i,4)}, v10, s[12:13] nt")
def seg64_off():
    e("v_lshrrev_b32 v10, 3, v1")
    e("v_lshlrev_b32 v10, 16, v10")
    e("s_lshl_b32 s10, s3, 19")
    e("s_lshl_b32 s11, s48, 8")
    e("s_add_u32 s10, s10, s11")
    e("s_lshl_b32 s11, s49, 7")
    e("s_add_u32 s10, s10, s11")
    e("v_add_u32 v10, s10, v10")
    e("v_and_b32 v3, 7, v1")
    e("v_lshl_add_u32 v10, v3, 4, v10")
def out512_write(ldsO):
    e("v_lshlrev_b32 v3, 5, v1")
    e("s_lshl_b32 s10, s3, 11")
    e("v_add_u32 v3, s10, v3")
    e(f"ds_write_b128 v3, v[40:43] offset:{ldsO}")
    e(f"ds_write_b128 v3, v[44:47] offset:{ldsO+16}")
def publish512(ldsO, sbase):
    sk = uid("p")
    e("s_cmp_ge_u32 s3, 4")
    e(f"s_cbranch_scc1 {sk}")
    e("v_lshlrev_b32 v3, 3, v0")
    for w in range(8):
        e(f"ds_read_b64 {v(16+2*w,2)}, v3 offset:{ldsO+2048*w}")
    e(f"v_mov_b32 v42, {T0}")
    e(f"v_mov_b32 v43, {T1}")
    e("v_lshlrev_b32 v3, 4, v0")
    e(f"v_add_u32 v3, s{sbase}, v3")
    e("s_waitcnt lgkmcnt(0)")
    for o in (0, 1):
        e(f"v_add_f32 {v(16+o)}, {v(16+o)}, {v(18+o)}"); e(f"v_add_f32 {v(20+o)}, {v(20+o)}, {v(22+o)}")
        e(f"v_add_f32 {v(24+o)}, {v(24+o)}, {v(26+o)}"); e(f"v_add_f32 {v(28+o)}, {v(28+o)}, {v(30+o)}")
        e(f"v_add_f32 {v(16+o)}, {v(16+o)}, {v(20+o)}"); e(f"v_add_f32 {v(24+o)}, {v(24+o)}, {v(28+o)}")
        e(f"v_add_f32 {v(40+o)}, {v(16+o)}, {v(24+o)}")
    pub_exec()
    e(f"global_store_dwordx4 v3, v[40:43], {sp(WS)} sc1")
    full_exec()
    lab(sk)

def get_tags():
    e("v_readfirstlane_b32 s8, v253")
    nop(3)
    e("s_add_u32 s8, s8, 1")
    e("s_xor_b32 s93, s8, 0x5bd1e995")

def dry_begin(name):
    if NODRY:
        return
    e(f"s_mov_b64 {PM}, 0")
    e(f"s_branch {name}_crit")
    lab(f"{name}_ret")
    e(f"s_mov_b64 {PM}, -1")
def dry_end(name):
    if NODRY:
        return
    e(f"s_cmp_eq_u64 {PM}, 0")
    e(f"s_cbranch_scc1 {name}_ret")


def masks_setup(m):
    e("v_and_b32 v3, 1, v1")
    e("v_lshlrev_b32 v3, 4, v3")
    e(f"v_mov_b32 {v(m+3)}, 0xffff")
    e(f"v_lshlrev_b32 {v(m+3)}, v3, {v(m+3)}")
    e("v_bfe_u32 v3, v1, 1, 2")
    for r in range(3):
        e(f"v_cmp_eq_u32 vcc, {r}, v3")
        nop(1)
        e(f"v_cndmask_b32 {v(m+r)}, 0, {v(m+3)}, vcc")
    e("v_cmp_eq_u32 vcc, 3, v3")
    nop(1)
    e(f"v_cndmask_b32 {v(m+3)}, 0, {v(m+3)}, vcc")

def gemv64m_setup(m):
    e("v_lshrrev_b32 v2, 3, v1")
    e("v_lshlrev_b32 v2, 5, v2")
    e("s_lshl_b32 s10, s3, 8")
    e("v_add_u32 v2, s10, v2")
    e("v_and_b32 v48, 7, v1")
    e("v_lshlrev_b32 v48, 5, v48")
    e("v_and_b32 v3, 16, v1")
    e("v_add3_u32 v48, v48, v3, s10")
    masks_setup(m)

def gemv64m(W, ldsV, ldsRW, m, nl=8, va=2):
    if nl == 8:
        e(f"ds_read_b128 v[16:19], {v(va)} offset:{ldsV}")
        e(f"ds_read_b128 v[20:23], {v(va)} offset:{ldsV+16}")
    else:
        e(f"ds_read_b64 v[16:17], {v(va)} offset:{ldsV}")
    e("s_waitcnt lgkmcnt(0)")
    for i in range(nl):
        e(f"v_cvt_pk_bf16_f32 {v(16+i)}, {v(16+i)}, {v(16+i)}")
    for i in range(nl):
        a = 24 + 4 * (i % 3)
        for r in range(4):
            e(f"v_and_b32 {v(a+r)}, {v(16+i)}, {v(m+r)}")
        if i > 0:
            pa = 24 + 4 * ((i - 1) % 3)
            c = "0" if i == 1 else "v[40:43]"
            e(f"v_mfma_f32_16x16x32_bf16 v[40:43], {v(pa,4)}, {v(W+4*(i-1),4)}, {c}")
    nop(1)
    e(f"v_mfma_f32_16x16x32_bf16 v[40:43], {v(24+4*((nl-1)%3),4)}, {v(W+4*(nl-1),4)}, v[40:43]")
    nop(7)
    for r in range(4):
        e(f"v_mov_b32 {v(44+r)}, {v(40+r)}")
    nop(0)
    for r in range(4):
        e(f"v_permlane32_swap_b32 {v(40+r)}, {v(44+r)}")
    nop(0)
    for r in range(4):
        dpp("v_add_f32", 40 + r, 44 + r, 40 + r, "row_ror:8")
    set_exec(0x00ff00ff, 0)
    e(f"ds_write_b128 v48, v[40:43] offset:{ldsRW}")
    full_exec()

def tr_frags(dst, bases, njs, ntiles, jstep, tstep, half_off, jsplit=None):
    for j in range(njs):
        for t in range(ntiles):
            if jsplit is None: b, jj = bases[0], j
            else: b, jj = bases[j // jsplit], j % jsplit
            off = jj * jstep + t * tstep
            d = dst + (j * ntiles + t) * 4
            e(f"ds_read_b64_tr_b16 {v(d,2)}, {v(b)} offset:{off}")
            e(f"ds_read_b64_tr_b16 {v(d+2,2)}, {v(b)} offset:{off+half_off}")

def red4_sg(a):
    nop(1)
    e(f"v_permlane32_swap_b32 {v(a)}, {v(a+1)}")
    e(f"v_permlane32_swap_b32 {v(a+2)}, {v(a+3)}")
    e(f"v_add_f32 {v(a)}, {v(a)}, {v(a+1)}")
    e(f"v_add_f32 {v(a+2)}, {v(a+2)}, {v(a+3)}")
    nop(1)
    e(f"v_permlane16_swap_b32 {v(a)}, {v(a+2)}")
    e(f"v_add_f32 {v(a)}, {v(a)}, {v(a+2)}")

def col_of_lane(dst, t):
    bitswap_rho(dst, t)
    e(f"v_lshlrev_b32 {v(dst)}, 4, {v(dst)}")
    e(f"v_and_b32 {v(t)}, 15, v1")
    e("s_lshl_b32 s10, s3, 6")
    e(f"v_add3_u32 {v(dst)}, {v(dst)}, {v(t)}, s10")

def pub_tiles(D, addr):
    e(f"v_cvt_pk_bf16_f32 v16, {v(D)}, {v(D+4)}")
    e(f"v_cvt_pk_bf16_f32 v17, {v(D+8)}, {v(D+12)}")
    e(f"v_mov_b32 v18, {T0}")
    e(f"v_mov_b32 v19, {T1}")
    pub_exec(0xffff, 0)
    e(f"global_store_dwordx4 {v(addr)}, v[16:19], {sp(WS)} sc1")
    full_exec()

def sweep8_addr(dst, hb_sgpr):
    e(f"v_lshrrev_b32 {v(dst)}, 4, v1")
    e(f"v_lshlrev_b32 {v(dst)}, 14, {v(dst)}")
    e("v_and_b32 v3, 15, v1")
    e(f"v_lshl_add_u32 {v(dst)}, v3, 4, {v(dst)}")
    e("s_lshl_b32 s10, s3, 8")
    e(f"s_add_u32 s10, s10, s{hb_sgpr}")
    e(f"v_add_u32 {v(dst)}, s10, {v(dst)}")
    for k in range(4):
        sadd64(54 + 2 * k, WS, k * 4096)
def sweep_pending(loads, t):
    n = len(loads)
    e(f"s_mov_b32 s53, {(1 << n) - 1:#x}")
    lp, dn = uid("sw"), uid("sd")
    lab(lp)
    for i, (line, u) in enumerate(loads):
        sk = uid("sk")
        e(f"s_bitcmp1_b32 s53, {i}")
        e(f"s_cbranch_scc0 {sk}")
        e(line)
        lab(sk)
    e("s_waitcnt vmcnt(0)")
    for i, (line, u) in enumerate(loads):
        e(f"v_xor_b32 {v(t)}, {T0}, {v(u+2)}")
        e(f"v_xor_b32 {v(t+1)}, {T1}, {v(u+3)}")
        e(f"v_or_b32 {v(t)}, {v(t)}, {v(t+1)}")
        e(f"v_cmp_ne_u32 vcc, 0, {v(t)}")
        e("s_cmp_eq_u64 vcc, 0")
        e(f"s_cselect_b32 s10, {~(1 << i) & 0xffffffff:#x}, -1")
        e("s_and_b32 s53, s53, s10")
    e("s_cmp_eq_u32 s53, 0")
    e(f"s_cbranch_scc1 {dn}")
    spin_bound()
    e(f"s_branch {lp}")
    lab(dn)
def sweep8_list(addr):
    return [(f"global_load_dwordx4 {v(16+4*i,4)}, {v(addr)}, s[{54+2*(i//2)}:{55+2*(i//2)}] offset:{2048*(i%2)} sc1", 16 + 4 * i) for i in range(8)]
def sweep8_loads(addr):
    for i in range(8):
        e(f"global_load_dwordx4 {v(16+4*i,4)}, {v(addr)}, s[{54+2*(i//2)}:{55+2*(i//2)}] offset:{2048*(i%2)} sc1")

L.append(f"; @launch grid=(256,1,1) block=(512,1,1) lds={LDS_BYTES}")
L.append('.amdgcn_target "amdgcn-amd-amdhsa--gfx950"')
L.append(".text")
L.append(f".globl {NAME}_kernel")
L.append(".p2align 8")
L.append(f".type {NAME}_kernel,@function")
lab(f"{NAME}_kernel")
e("s_cmp_ge_u32 s2, 256")
e("s_cbranch_scc1 L_end")
e("s_load_dwordx16 s[16:31], s[0:1], 0")
e("s_load_dwordx16 s[32:47], s[0:1], 64")
e("v_and_b32 v1, 63, v0")
e("v_lshrrev_b32 v2, 6, v0")
e("s_and_b32 s4, s2, 7")
e("v_readfirstlane_b32 s3, v2")
e("s_lshr_b32 s5, s2, 3")
e("s_and_b32 s6, s5, 3")
e("s_lshr_b32 s7, s5, 2")
e("s_mov_b32 s9, 0")
e("s_mov_b32 s8, 0")
e("s_mov_b32 s93, 0")
e(f"s_mov_b64 {PM}, -1")
if DEBUG:
    e("s_lshl_b32 s92, s2, 8")
    e(f"s_add_u32 s92, s92, {TS:#x}")
e("s_lshr_b32 s48, s7, 1")
e("s_lshl_b32 s10, s4, 2")
e("s_add_u32 s48, s48, s10")
e("s_and_b32 s49, s7, 1")
e(f"v_mov_b32 v252, {EPOCH:#x}")
e("s_waitcnt lgkmcnt(0)")
e(f"global_load_dword v253, v252, {sp(WS)} sc1")
stamp(0)
diag(0, True)
diag(1)
if DEBUG:
    e("s_getreg_b32 s9, hwreg(HW_REG_XCC_ID)")
    stamp_s9(20)
    e("s_mov_b32 s9, 0")
e("s_cmp_eq_u32 s6, 1")
e("s_cbranch_scc1 L_roleB")
e("s_cmp_eq_u32 s6, 2")
e("s_cbranch_scc1 L_roleC")
e("s_cmp_eq_u32 s6, 3")
e("s_cbranch_scc1 L_roleA")


lab("L_roleD")
e("s_lshl_b32 s50, s7, 3")
e("s_add_u32 s50, s50, s4")
e("v_lshlrev_b32 v3, 1, v0")
e(f"global_load_ushort v8, v3, {sp(C)}")
e("s_lshr_b32 s51, s50, 4")
e("s_and_b32 s52, s50, 15")
e("v_lshrrev_b32 v10, 3, v1")
e("v_lshlrev_b32 v10, 1, v10")
e("s_lshl_b32 s10, s3, 4")
e("s_lshl_b32 s11, s51, 7")
e("s_add_u32 s10, s10, s11")
e("v_add_u32 v10, s10, v10")
e("v_lshlrev_b32 v49, 2, v10")
e("s_movk_i32 s10, 6144")
e("v_mul_lo_u32 v10, v10, s10")
e("v_and_b32 v3, 7, v1")
e("v_lshl_add_u32 v10, v3, 4, v10")
e("s_lshl_b32 s10, s52, 7")
e("v_add_u32 v10, s10, v10")
e(f"global_load_dwordx4 v[56:59], v10, {sp(WMOD)} nt")
sadd64(12, WMOD, 6144)
e("global_load_dwordx4 v[60:63], v10, s[12:13] nt")
gemv64m_setup(52)
e("s_waitcnt vmcnt(2)")
get_tags()
e("v_lshlrev_b32 v9, 16, v8")
e(f"v_mul_f32 v3, {fhex(-LOG2E)}, v9")
e("v_exp_f32 v3, v3")
nop(0)
e("v_add_f32 v3, 1.0, v3")
e("v_rcp_f32 v3, v3")
nop(0)
e("v_mul_f32 v9, v9, v3")
e("v_lshlrev_b32 v3, 2, v0")
e("ds_write_b32 v3, v9")
e("s_waitcnt vmcnt(0) lgkmcnt(0)")
e("s_barrier")
gemv64m(56, 0, 2048, 52, nl=2, va=49)
e("s_waitcnt lgkmcnt(0)")
e("s_barrier")
sk = uid("d")
e("s_cmp_lg_u32 s3, 0")
e(f"s_cbranch_scc1 {sk}")
sum64(2048, 24)
nop(1)
e("v_mov_b32_dpp v32, v24 quad_perm:[0,0,2,2] row_mask:0xf bank_mask:0xf")
e("v_mov_b32_dpp v33, v24 quad_perm:[1,1,3,3] row_mask:0xf bank_mask:0xf")
e(f"v_mov_b32 v34, {T0}")
e(f"v_mov_b32 v35, {T1}")
e("s_lshl_b32 s10, s51, 13")
e("s_lshl_b32 s11, s52, 9")
e("s_add_u32 s10, s10, s11")
e(f"s_add_u32 s10, s10, {HB1C:#x}")
e("v_lshl_add_u32 v3, v1, 3, s10")
set_exec(0x55555555, 0x55555555)
e(f"global_store_dwordx4 v3, v[32:35], {sp(WS)} sc1")
full_exec()
e("s_lshl_b32 s10, s50, 6")
e(f"s_add_u32 s10, s10, {PSA:#x}")
presignal(10, 0, 1, guard=False)
lab(sk)
stamp(1)
diag(2)
if DEBUG:
    e("s_waitcnt vmcnt(0)")
    stamp(9)
e("s_cmp_ge_u32 s50, 48")
e("s_cbranch_scc1 L_final")
e("s_cmp_ge_u32 s50, 32")
e("s_cbranch_scc1 L_ph5pre")
e("v_lshrrev_b32 v10, 3, v1")
e("v_lshlrev_b32 v10, 3, v10")
e("s_lshl_b32 s10, s3, 6")
e("v_add_u32 v10, s10, v10")
e("s_movk_i32 s10, 6144")
e("v_mul_lo_u32 v10, v10, s10")
e("v_and_b32 v3, 7, v1")
e("v_lshl_add_u32 v10, v3, 4, v10")
e("s_lshl_b32 s10, s50, 7")
e("s_add_u32 s10, s10, 2048")
e("v_add_u32 v10, s10, v10")
load_seg64(WMOD, 64, 6144)
e("s_waitcnt vmcnt(0)")
e("s_barrier")
gemv64m(64, 0, 2048, 52)
e("s_waitcnt lgkmcnt(0)")
e("s_barrier")
sk = uid("d")
e("s_cmp_lg_u32 s3, 0")
e(f"s_cbranch_scc1 {sk}")
sum64(2048, 24)
nop(1)
for k in range(4):
    e(f"v_mov_b32_dpp {v(28+k)}, v24 quad_perm:[{k},{k},{k},{k}] row_mask:0xf bank_mask:0xf")
e("v_cvt_pk_bf16_f32 v32, v28, v29")
e("v_cvt_pk_bf16_f32 v33, v30, v31")
e(f"v_mov_b32 v34, {T0}")
e(f"v_mov_b32 v35, {T1}")
e("s_lshl_b32 s10, s50, 8")
e("s_add_u32 s10, s10, 4096")
e("v_lshl_add_u32 v3, v1, 2, s10")
set_exec(0x11111111, 0x11111111)
e(f"global_store_dwordx4 v3, v[32:35], {sp(WS)} sc1")
full_exec()
lab(sk)
lab("L_ph5pre")
e("s_cmp_ge_u32 s50, 43")
e("s_cbranch_scc1 L_end")
e("s_barrier")

W1S, W2S, MODL, X1L, YL, HPL, HL = 0, 33280, 66560, 69632, 71680, 79872, 80896
e("v_lshrrev_b32 v2, 2, v1")
e("s_lshl_b32 s10, s3, 6")
e("v_add_u32 v2, s10, v2")
e("s_movk_i32 s10, 2752")
e("v_mul_lo_u32 v2, v2, s10")
e("v_and_b32 v3, 3, v1")
e("v_lshl_add_u32 v2, v3, 4, v2")
e("s_lshl_b32 s10, s50, 6")
e("v_add_u32 v2, s10, v2")
e(f"s_mul_i32 s11, s3, {4*1040}")
e(f"s_add_u32 s11, s11, {W1S}")
for i in range(4):
    sadd64(12, W1, i * 16 * 2752)
    e("s_mov_b32 m0, s11")
    nop(0)
    e("global_load_lds_dwordx4 v2, s[12:13] nt")
    e("s_add_u32 s11, s11, 1040")
e("s_lshl_b32 s10, s50, 5")
e("s_lshl_b32 s11, s3, 2")
e("s_add_u32 s10, s10, s11")
e("s_lshl_b32 s10, s10, 10")
e("v_lshlrev_b32 v2, 4, v1")
e("v_add_u32 v2, s10, v2")
e(f"s_mul_i32 s11, s3, {4*1040}")
e(f"s_add_u32 s11, s11, {W2S}")
for i in range(4):
    sadd64(12, W2, i * 1024)
    e("s_mov_b32 m0, s11")
    nop(0)
    e("global_load_lds_dwordx4 v2, s[12:13] nt")
    e("s_add_u32 s11, s11, 1040")
e("v_and_b32 v3, 31, v1")
e("s_lshl_b32 s10, s50, 6")
e("v_lshl_add_u32 v3, v3, 1, s10")
e(f"global_load_ushort v96, v3, {sp(B1)}")
col_of_lane(97, 3)
e("v_lshlrev_b32 v3, 1, v97")
e(f"global_load_ushort v98, v3, {sp(X)}")
e(f"s_mov_b32 s10, {HB1 + 4096 + 23*256}")
wave0_hint_barrier(10, 16)
skm = uid("d")
e("s_cmp_ge_u32 s3, 6")
e(f"s_cbranch_scc1 {skm}")
e("v_lshlrev_b32 v12, 4, v0")
e(f"v_add_u32 v12, {HB1 + 256*16}, v12")
lp = uid("g")
lab(lp)
e(f"global_load_dwordx4 v[16:19], v12, {sp(WS)} sc1")
e("s_waitcnt vmcnt(0)")
tagcheck([16], 40, lp)
e("v_lshlrev_b32 v3, 3, v0")
e(f"ds_write_b64 v3, v[16:17] offset:{MODL}" if MODL < 65536 else "")
if MODL >= 65536:
    L.pop()
    e(f"v_add_u32 v3, {MODL}, v3")
    e("ds_write_b64 v3, v[16:17]")
lab(skm)
e("s_waitcnt vmcnt(0) lgkmcnt(0)")
e("s_barrier")
e("v_lshrrev_b32 v2, 5, v1")
e("s_lshl_b32 s10, s3, 2")
e("v_add_u32 v2, s10, v2")
e("s_movk_i32 s10, 1040")
e("v_mul_lo_u32 v2, v2, s10")
e("v_bfe_u32 v3, v1, 4, 1")
e("v_lshl_add_u32 v2, v3, 9, v2")
e("v_bfe_u32 v3, v1, 2, 2")
e("v_lshl_add_u32 v2, v3, 6, v2")
e("v_and_b32 v3, 3, v1")
e("v_lshl_add_u32 v2, v3, 3, v2")
tr_frags(64, [2], 2, 2, 2 * 1040, 32, 256)
e("v_lshrrev_b32 v2, 4, v1")
e("v_lshlrev_b32 v2, 3, v2")
e("v_bfe_u32 v3, v1, 2, 2")
e("v_add_u32 v2, v2, v3")
e("v_mul_lo_u32 v2, v2, s10")
e("v_and_b32 v3, 3, v1")
e("v_lshl_add_u32 v2, v3, 3, v2")
e("s_lshl_b32 s11, s3, 7")
e(f"s_add_u32 s11, s11, {W2S}")
e("v_add_u32 v2, s11, v2")
tr_frags(80, [2], 1, 4, 0, 32, 4 * 1040)
e("v_lshlrev_b32 v3, 1, v97")
e(f"v_add_u32 v3, {MODL}, v3")
e("ds_read_u16 v99, v3")
e("v_lshlrev_b32 v3, 4, v1")
e(f"v_add_u32 v3, {MODL}, v3")
e("ds_read_b128 v[16:19], v3 offset:1024")
e("ds_read_b128 v[20:23], v3 offset:2048")
e("s_waitcnt lgkmcnt(0)")
for k in range(4):
    unpack2(16 + k, 100 + 2 * k)
    unpack2(20 + k, 108 + 2 * k)
for d in range(108, 116):
    e(f"v_add_f32 {v(d)}, 1.0, {v(d)}")
for d in (96, 98, 99):
    e(f"v_lshlrev_b32 {v(d)}, 16, {v(d)}")
e(f"s_mov_b32 s51, {HB4A:#x}")
sweep8_addr(52, 51)
e("v_lshlrev_b32 v53, 2, v97")
e(f"v_add_u32 v53, {X1L}, v53")
e("v_lshlrev_b32 v54, 5, v1")
e(f"v_add_u32 v54, {X1L}, v54")
e("s_lshl_b32 s10, s3, 10")
e(f"s_add_u32 s10, s10, {YL}")
e("v_lshl_add_u32 v55, v1, 4, s10")
e("v_lshrrev_b32 v3, 4, v1")
e("s_lshl_b32 s11, s3, 7")
e("s_add_u32 s10, s10, s11")
e("v_lshl_add_u32 v56, v3, 4, s10")
e("v_and_b32 v3, 15, v1")
e("s_lshl_b32 s10, s3, 7")
e(f"s_add_u32 s10, s10, {HPL}")
e("v_lshl_add_u32 v57, v3, 2, s10")
e("v_and_b32 v3, 31, v1")
e("v_lshlrev_b32 v58, 2, v3")
e(f"v_add_u32 v58, {HPL}, v58")
e("s_lshl_b32 s10, s3, 6")
e(f"s_add_u32 s10, s10, {HL}")
e("v_lshl_add_u32 v59, v3, 1, s10")
e("v_lshrrev_b32 v3, 4, v1")
e("v_lshl_add_u32 v60, v3, 4, s10")
e("v_and_b32 v3, 15, v1")
e("s_lshl_b32 s10, s50, 11")
e("s_lshl_b32 s11, s3, 8")
e("s_add_u32 s10, s10, s11")
e(f"s_add_u32 s10, s10, {HB6:#x}")
e("v_lshl_add_u32 v61, v3, 4, s10")
def _p():
    e("s_lshl_b32 s10, s50, 10")
    e(f"s_add_u32 s10, s10, {PS4:#x}")
    e("v_lshl_add_u32 v20, v1, 4, s10")
wave0_multi_barrier(_p, 0xffffffff, 0xffffffff, 16)
stamp(2)
sweep_pending(sweep8_list(52), 120)
stamp(8)
for i in range(8):
    u = 16 + 4 * i
    for (src, a) in ((u, 120), (u + 1, 122)):
        if i == 0:
            unpack2(src, a)
        else:
            e(f"v_lshlrev_b32 v124, 16, {v(src)}")
            e(f"v_and_b32 v125, 0xffff0000, {v(src)}")
            e(f"v_add_f32 {v(a)}, {v(a)}, v124")
            e(f"v_add_f32 {v(a+1)}, {v(a+1)}, v125")
red4_sg(120)
e("v_fma_f32 v120, v99, v120, v98")
e("v_cvt_pk_bf16_f32 v120, v120, v120")
e("v_lshlrev_b32 v120, 16, v120")
e("ds_write_b32 v53, v120")
e("s_waitcnt lgkmcnt(0)")
e("s_barrier")
e("ds_read_b128 v[16:19], v54")
e("ds_read_b128 v[20:23], v54 offset:16")
e("s_waitcnt lgkmcnt(0)")
def ln8():
    e("v_readfirstlane_b32 s10, v16")
    nop(1)
    for r in range(16, 24): e(f"v_subrev_f32 {v(r)}, s10, {v(r)}")
    e("v_add_f32 v40, v16, v17")
    e("v_mul_f32 v42, v16, v16")
    for r in range(18, 24): e(f"v_add_f32 v40, v40, {v(r)}")
    for r in range(17, 24): e(f"v_fmac_f32 v42, {v(r)}, {v(r)}")
    for r_ in (8, 4, 2, 1):
        nop(0)
        dpp("v_add_f32", 40, 40, 40, f"row_ror:{r_}")
        dpp("v_add_f32", 42, 42, 42, f"row_ror:{r_}")
    for sw in ("v_permlane16_swap_b32", "v_permlane32_swap_b32"):
        e("v_mov_b32 v41, v40")
        e("v_mov_b32 v43, v42")
        nop(0)
        e(f"{sw} v41, v40")
        e(f"{sw} v43, v42")
        e("v_add_f32 v40, v40, v41")
        e("v_add_f32 v42, v42, v43")
    e(f"v_mul_f32 v40, {fhex(1/512)}, v40")
    e(f"v_mul_f32 v42, {fhex(1/512)}, v42")
    e("v_fma_f32 v42, -v40, v40, v42")
    e("v_max_f32 v42, 0, v42")
    e(f"v_add_f32 v42, {fhex(1e-5)}, v42")
    e("v_rsq_f32 v42, v42")
    for r in range(16, 24): e(f"v_sub_f32 {v(r)}, {v(r)}, v40")
    for r in range(16, 24): e(f"v_mul_f32 {v(r)}, {v(r)}, v42")
ln8()
for i in range(8):
    e(f"v_fma_f32 {v(16+i)}, {v(16+i)}, {v(108+i)}, {v(100+i)}")
nop(0)
ln8()
for k in range(4):
    e(f"v_cvt_pk_bf16_f32 {v(24+k)}, {v(16+2*k)}, {v(17+2*k)}")
e("ds_write_b128 v55, v[24:27]")
e("s_waitcnt lgkmcnt(0)")
e("ds_read_b128 v[16:19], v56")
e("ds_read_b128 v[20:23], v56 offset:64")
e("s_waitcnt lgkmcnt(1)")
e("v_mfma_f32_16x16x32_bf16 v[24:27], v[16:19], v[64:67], 0")
e("v_mfma_f32_16x16x32_bf16 v[28:31], v[16:19], v[68:71], 0")
e("s_waitcnt lgkmcnt(0)")
e("v_mfma_f32_16x16x32_bf16 v[24:27], v[20:23], v[72:75], v[24:27]")
e("v_mfma_f32_16x16x32_bf16 v[28:31], v[20:23], v[76:79], v[28:31]")
nop(7)
set_exec(0xffff, 0)
e("ds_write_b32 v57, v24")
e("ds_write_b32 v57, v28 offset:64")
full_exec()
e("s_waitcnt lgkmcnt(0)")
e("s_barrier")
for w in range(8):
    e(f"ds_read_b32 {v(16+w)}, v58 offset:{128*w}")
e("s_waitcnt lgkmcnt(0)")
e("v_add_f32 v16, v16, v17"); e("v_add_f32 v18, v18, v19"); e("v_add_f32 v20, v20, v21"); e("v_add_f32 v22, v22, v23")
e("v_add_f32 v16, v16, v18"); e("v_add_f32 v20, v20, v22")
e("v_add3_u32 v24, 0, 0, 0") if False else None
e("v_add_f32 v24, v16, v20")
K1 = -2 * 0.7978845608028654 * LOG2E
e("v_add_f32 v24, v24, v96")
e("v_mul_f32 v20, v24, v24")
e(f"v_mul_f32 v20, {fhex(0.044715)}, v20")
e("v_fma_f32 v20, v20, v24, v24")
e(f"v_mul_f32 v20, {fhex(K1)}, v20")
e("v_exp_f32 v20, v20")
nop(0)
e("v_add_f32 v20, 1.0, v20")
e("v_rcp_f32 v20, v20")
nop(0)
e("v_mul_f32 v24, v24, v20")
e("v_cvt_pk_bf16_f32 v24, v24, v24")
e("ds_write_b16 v59, v24")
e("s_waitcnt lgkmcnt(0)")
e("ds_read_b128 v[16:19], v60")
e("s_waitcnt lgkmcnt(0)")
for t in range(4):
    e(f"v_mfma_f32_16x16x32_bf16 {v(24+4*t,4)}, v[16:19], {v(80+4*t,4)}, 0")
nop(7)
pub_tiles(24, 61)
stamp(3)
diag(7)
e("s_branch L_end")

lab("L_final")
e("s_barrier")
e("s_sub_u32 s52, s50, 48")
e("v_lshrrev_b32 v3, 3, v0")
e("v_lshlrev_b32 v72, 11, v3")
e("v_and_b32 v2, 7, v0")
e("v_lshl_add_u32 v72, v2, 4, v72")
e("s_lshl_b32 s10, s52, 7")
e("v_add_u32 v72, s10, v72")
e("v_cmp_gt_u32 vcc, 32, v3")
e("s_mov_b64 s[54:55], vcc")
e("v_cmp_gt_u32 vcc, 43, v3")
e("s_mov_b64 s[56:57], vcc")
bitswap_rho(48, 3)
e("v_lshl_add_u32 v48, v2, 2, v48")
e("s_lshl_b32 s10, s3, 7")
e("v_lshl_add_u32 v48, v48, 2, s10")
e("v_and_b32 v3, 3, v1")
e("v_lshlrev_b32 v70, 4, v3")
e("v_bfe_u32 v3, v1, 2, 3")
e("v_add_u32 v70, v70, v3")
e("s_lshr_b32 s10, s52, 1")
e("s_lshl_b32 s10, s10, 6")
e("s_and_b32 s11, s52, 1")
e("s_lshl_b32 s11, s11, 3")
e("s_add_u32 s10, s10, s11")
e("v_add_u32 v70, s10, v70")
e("v_lshlrev_b32 v71, 1, v70")
e(f"global_load_ushort v64, v71, {sp(X)}")
e(f"global_load_ushort v65, v71, {sp(B2)}")
e("s_waitcnt vmcnt(0)")
get_tags()
skr = uid("d")
e("s_cmp_lg_u32 s3, 0")
e(f"s_cbranch_scc1 {skr}")
e(f"s_mov_b32 s10, {HB1 + 4096 + 31*256}")
hint_wait(10, 16)
e("v_lshrrev_b32 v3, 2, v70")
e("v_lshlrev_b32 v3, 4, v3")
e(f"v_add_u32 v10, {HB1 + 256*16}, v3")
e(f"v_add_u32 v11, {HB1 + 640*16}, v3")
lp = uid("g")
lab(lp)
e(f"global_load_dwordx4 v[16:19], v10, {sp(WS)} sc1")
e(f"global_load_dwordx4 v[20:23], v11, {sp(WS)} sc1")
e("s_waitcnt vmcnt(0)")
tagcheck([16, 20], 40, lp)
e("v_and_b32 v3, 2, v70")
e("v_cmp_ne_u32 vcc, 0, v3")
nop(1)
e("v_cndmask_b32 v66, v16, v17, vcc")
e("v_cndmask_b32 v67, v20, v21, vcc")
e("v_and_b32 v3, 1, v70")
e("v_lshlrev_b32 v3, 4, v3")
e("v_lshrrev_b32 v66, v3, v66")
e("v_lshrrev_b32 v67, v3, v67")
for d in (64, 65, 66, 67):
    e(f"v_lshlrev_b32 {v(d)}, 16, {v(d)}")
lab(skr)
def fin_gather(hb, mask, ldsoff):
    e(f"v_add_u32 v10, {hb:#x}, v72")
    e("v_mov_b32 v16, 0"); e("v_mov_b32 v17, 0"); e(f"v_mov_b32 v18, {T0}"); e(f"v_mov_b32 v19, {T1}")
    lp = uid("g"); sk = uid("r")
    e(f"s_cmp_eq_u64 {mask}, 0")
    e(f"s_cbranch_scc1 {sk}")
    lab(lp)
    e(f"s_mov_b64 exec, {mask}")
    e(f"global_load_dwordx4 v[16:19], v10, {sp(WS)} sc1")
    full_exec()
    e("s_waitcnt vmcnt(0)")
    tagcheck([16], 40, lp)
    lab(sk)
    unpack2(16, 20); unpack2(17, 22)
    red4_sg(20)
    nop(1)
    dpp("v_add_f32", 20, 20, 20, "row_ror:8")
    set_exec(0x00ff00ff, 0x00ff00ff)
    e(f"ds_write_b32 v48, v20 offset:{ldsoff}")
    full_exec()
    e("s_waitcnt lgkmcnt(0)")
    e("s_barrier")
    e("s_cmp_lg_u32 s3, 0")
    skw = uid("rw")
    e(f"s_cbranch_scc1 {skw}")
    e("v_and_b32 v3, 31, v1")
    e("v_lshlrev_b32 v3, 2, v3")
    for w in range(8):
        e(f"ds_read_b32 {v(24+w)}, v3 offset:{ldsoff+128*w}")
    e("s_waitcnt lgkmcnt(0)")
    e("v_add_f32 v24, v24, v25"); e("v_add_f32 v26, v26, v27"); e("v_add_f32 v28, v28, v29"); e("v_add_f32 v30, v30, v31")
    e("v_add_f32 v24, v24, v26"); e("v_add_f32 v28, v28, v30"); e("v_add_f32 v16, v24, v28")
    return skw
def _f():
    e("s_add_u32 s10, s52, 43")
    e("s_lshl_b32 s10, s10, 10")
    e(f"s_add_u32 s10, s10, {PS4:#x}")
    e("v_lshl_add_u32 v20, v1, 4, s10")
wave0_multi_barrier(_f, 0xffffffff, 0xffffffff, 16)
skw = fin_gather(HB4A, "s[54:55]", 0)
e("v_fma_f32 v68, v66, v16, v64")
e("v_cvt_pk_bf16_f32 v68, v68, v68")
e("v_lshlrev_b32 v68, 16, v68")
lab(skw)
stamp(3)
skw = fin_gather(HB6, "s[56:57]", 1024)
e("v_add_f32 v16, v16, v65")
e("v_fma_f32 v16, v67, v16, v68")
e("v_cvt_pk_bf16_f32 v16, v16, v16")
set_exec(0xffffffff, 0)
e(f"global_store_short v71, v16, {sp(OUT)}")
e("s_cmp_lg_u32 s52, 0")
e(f"s_cbranch_scc1 {skw}")
set_exec(1, 0)
e(f"v_mov_b32 v3, {EPOCH:#x}")
e(f"v_mov_b32 v24, {T0}")
e(f"global_store_dword v3, v24, {sp(WS)} sc1")
lab(skw)
full_exec()
stamp(5)
diag(8)
e("s_branch L_end")

lab("L_roleB")
e("s_lshl_b32 s50, s48, 1")
e("s_add_u32 s50, s50, s49")
e("s_lshl_b32 s50, s50, 11")
e(f"s_add_u32 s50, s50, {HB2:#x}")
e("s_cmp_ge_u32 s3, 4")
e("s_cbranch_scc1 L_Bload")
e("v_lshlrev_b32 v2, 4, v1")
e(f"global_load_dwordx4 v[128:131], v2, {sp(X)}")
e("v_lshlrev_b32 v2, 2, v0")
e(f"global_load_dword v132, v2, {sp(X)}")
e("s_waitcnt vmcnt(0)")
get_tags()
for k in range(4): unpack2(128 + k, 16 + 2 * k)
unpack2(132, 134)
e("v_add_f32 v40, v16, v17")
for r in range(18, 24): e(f"v_add_f32 v40, v40, {v(r)}")
wave_red("v_add_f32", 40, 41)
e(f"v_mul_f32 v40, {fhex(1/512)}, v40")
for r in list(range(16, 24)) + [134, 135]: e(f"v_sub_f32 {v(r)}, {v(r)}, v40")
e("v_mul_f32 v42, v16, v16")
for r in range(17, 24): e(f"v_fmac_f32 v42, {v(r)}, {v(r)}")
wave_red("v_add_f32", 42, 41)
e(f"v_mov_b32 v41, {fhex(1e-5)}")
e(f"v_fmac_f32 v41, {fhex(1/512)}, v42")
e("v_rsq_f32 v41, v41")
nop(0)
for r in (134, 135): e(f"v_mul_f32 {v(r)}, {v(r)}, v41")
stamp(5)
e("s_lshl_b32 s10, s48, 11")
e("s_lshl_b32 s11, s49, 10")
e("s_add_u32 s10, s10, s11")
e(f"s_add_u32 s10, s10, {PS1:#x}")
stamp(3)
e("v_lshlrev_b32 v3, 4, v0")
e(f"v_add_u32 v3, {HB1C:#x}, v3")
for k in range(4):
    sadd64(54 + 2 * k, WS, k * 8192)
    sadd64(62 + 2 * k, WS, k * 8192 + 4096)
_ld = []
for k in range(4):
    _ld.append((f"global_load_dwordx4 {v(16+4*k,4)}, v3, s[{54+2*k}:{55+2*k}] sc1", 16 + 4 * k))
    _ld.append((f"global_load_dwordx4 {v(32+4*k,4)}, v3, s[{62+2*k}:{63+2*k}] sc1", 32 + 4 * k))
sweep_pending(_ld, 136)
stamp(6)
for base in (16, 32):
    for o in (0, 1):
        e(f"v_add_f32 {v(base+o)}, {v(base+o)}, {v(base+4+o)}")
        e(f"v_add_f32 {v(base+8+o)}, {v(base+8+o)}, {v(base+12+o)}")
        e(f"v_add_f32 {v(base+o)}, {v(base+o)}, {v(base+8+o)}")
    e(f"v_cvt_pk_bf16_f32 {v(base)}, {v(base)}, {v(base+1)}")
    unpack2(base, base + 2)
for o in (0, 1):
    e(f"v_fma_f32 {v(34+o)}, {v(134+o)}, {v(34+o)}, {v(134+o)}")
    e(f"v_add_f32 {v(34+o)}, {v(34+o)}, {v(18+o)}")
e("v_lshlrev_b32 v3, 3, v0")
e("ds_write_b64 v3, v[34:35]")
stamp(4)
e("s_waitcnt lgkmcnt(0)")
e("s_barrier")
stamp(1)
e("s_barrier")
lab("L_B2")
e("v_lshlrev_b32 v3, 2, v1")
for w in range(4):
    e(f"ds_read_b32 {v(16+w)}, v3 offset:{2048+256*w}")
WK = 8192
e("s_lshl_b32 s10, s3, 7")
e("v_lshl_add_u32 v56, v1, 1, s10")
e("v_lshrrev_b32 v3, 4, v1")
e("v_lshl_add_u32 v57, v3, 4, s10")
e("s_lshl_b32 s10, s3, 8")
e("s_add_u32 s10, s10, s50")
e("v_lshl_add_u32 v58, v3, 4, s10")
e("v_bfe_u32 v3, v1, 3, 1")
e("s_lshl_b32 s10, s3, 3")
e("v_add_u32 v3, s10, v3")
e("s_movk_i32 s10, 1040")
e("v_mul_lo_u32 v59, v3, s10")
e("v_and_b32 v3, 7, v1")
e("v_lshl_add_u32 v59, v3, 7, v59")
e("v_lshrrev_b32 v11, 4, v1")
e("v_xor_b32 v3, v3, v11")
e(f"v_add_u32 v59, {WK}, v59")
e("v_xor_b32 v11, 4, v3")
e("v_lshl_add_u32 v60, v11, 4, v59")
e("v_lshl_add_u32 v59, v3, 4, v59")
e("s_waitcnt lgkmcnt(0)")
e("v_add_f32 v16, v16, v17"); e("v_add_f32 v18, v18, v19")
e("v_add_f32 v24, v16, v18")
e("v_cvt_pk_bf16_f32 v24, v24, v24")
e("ds_write_b16 v56, v24 offset:4096")
e("s_lshr_b32 s10, s48, 4")
e("s_lshl_b32 s10, s10, 9")
e("s_and_b32 s11, s48, 15")
e("s_lshl_b32 s11, s11, 5")
e("s_add_u32 s10, s10, s11")
e("s_lshl_b32 s11, s49, 4")
e("s_add_u32 s10, s10, s11")
e(f"s_add_u32 s10, s10, {PSQ:#x}")
presignal(10, 10, 32)
stamp(2)
diag(3)
e("s_waitcnt lgkmcnt(0)")
e("ds_read_b128 v[16:19], v57 offset:4096")
e("ds_read_b128 v[20:23], v57 offset:4160")
e("s_cmp_lt_u32 s3, 4")
sk = uid("b")
e(f"s_cbranch_scc1 {sk}")
e("s_waitcnt vmcnt(0)")
lab(sk)
e("s_barrier")
stamp(7)
for rt in range(4):
    e(f"ds_read_b128 {v(96+8*rt,4)}, v59 offset:{2080*rt}")
    e(f"ds_read_b128 {v(100+8*rt,4)}, v60 offset:{2080*rt}")
for rt in range(4):
    e(f"s_waitcnt lgkmcnt({6-2*rt})")
    e(f"v_mfma_f32_16x16x32_bf16 {v(24+4*rt,4)}, {v(96+8*rt,4)}, v[16:19], 0")
    e(f"v_mfma_f32_16x16x32_bf16 {v(24+4*rt,4)}, {v(100+8*rt,4)}, v[20:23], {v(24+4*rt,4)}")
nop(7)
set_exec(0x00010001, 0x00010001)
for rt in range(4):
    d = 64 + 4 * rt
    e(f"v_cvt_pk_bf16_f32 {v(d)}, {v(24+4*rt)}, {v(25+4*rt)}")
    e(f"v_cvt_pk_bf16_f32 {v(d+1)}, {v(26+4*rt)}, {v(27+4*rt)}")
    e(f"v_mov_b32 {v(d+2)}, {T0}")
    e(f"v_mov_b32 {v(d+3)}, {T1}")
    e(f"global_store_dwordx4 v58, {v(d,4)}, {sp(WS)} offset:{64*rt} sc1")
full_exec()
stamp(9)
diag(4)
e("s_branch L_end")
lab("L_Bload")
e("s_sub_u32 s51, s3, 4")
e("v_lshrrev_b32 v10, 3, v1")
e("v_lshlrev_b32 v10, 17, v10")
e("s_lshl_b32 s10, s51, 20")
e("s_lshl_b32 s11, s48, 8")
e("s_add_u32 s10, s10, s11")
e("s_lshl_b32 s11, s49, 7")
e("s_add_u32 s10, s10, s11")
e("v_add_u32 v10, s10, v10")
e("v_and_b32 v3, 7, v1")
e("v_lshl_add_u32 v10, v3, 4, v10")
for i in range(16):
    sadd64(12, WQ, i * 8192)
    e(f"global_load_dwordx4 {v(64+4*i,4)}, v10, s[12:13] nt")
e("v_lshrrev_b32 v3, 3, v1")
e("v_lshlrev_b32 v10, 13, v3")
e("v_and_b32 v11, 7, v1")
e("v_xor_b32 v11, v11, v3")
e("v_lshl_add_u32 v10, v11, 4, v10")
e("s_lshl_b32 s10, s51, 20")
e("s_lshl_b32 s11, s48, 8")
e("s_add_u32 s10, s10, s11")
e("s_lshl_b32 s11, s49, 7")
e("s_add_u32 s10, s10, s11")
e("v_add_u32 v10, s10, v10")
e(f"s_mul_i32 s11, s51, {16*1040}")
e("s_add_u32 s11, s11, 8192")
for i in range(16):
    sadd64(12, WUK, i * 8 * 8192)
    e("s_mov_b32 m0, s11")
    nop(0)
    e("global_load_lds_dwordx4 v10, s[12:13] nt")
    e("s_add_u32 s11, s11, 1040")
masks_setup(52)
e("v_lshrrev_b32 v2, 3, v1")
e("v_lshlrev_b32 v2, 6, v2")
e("s_lshl_b32 s10, s51, 9")
e("v_add_u32 v2, s10, v2")
e("v_and_b32 v48, 7, v1")
e("v_lshlrev_b32 v48, 5, v48")
e("v_and_b32 v3, 16, v1")
e("s_lshl_b32 s10, s51, 8")
e("v_add3_u32 v48, v48, v3, s10")
e("s_waitcnt vmcnt(16)")
get_tags()
e("s_barrier")
for k in range(4):
    e(f"ds_read_b128 {v(136+4*k,4)}, v2 offset:{16*k}")
e("s_waitcnt lgkmcnt(0)")
for i in range(16):
    e(f"v_cvt_pk_bf16_f32 {v(136+i)}, {v(136+i)}, {v(136+i)}")
for i in range(16):
    a_ = 24 + 4 * (i % 3)
    for r in range(4):
        e(f"v_and_b32 {v(a_+r)}, {v(136+i)}, {v(52+r)}")
    if i > 0:
        pa = 24 + 4 * ((i - 1) % 3)
        c = "0" if i == 1 else "v[40:43]"
        e(f"v_mfma_f32_16x16x32_bf16 v[40:43], {v(pa,4)}, {v(64+4*(i-1),4)}, {c}")
nop(1)
e(f"v_mfma_f32_16x16x32_bf16 v[40:43], {v(24+4*(15%3),4)}, {v(64+60,4)}, v[40:43]")
nop(7)
for r in range(4):
    e(f"v_mov_b32 {v(44+r)}, {v(40+r)}")
nop(0)
for r in range(4):
    e(f"v_permlane32_swap_b32 {v(40+r)}, {v(44+r)}")
nop(0)
for r in range(4):
    dpp("v_add_f32", 40 + r, 44 + r, 40 + r, "row_ror:8")
set_exec(0x00ff00ff, 0)
e("ds_write_b128 v48, v[40:43] offset:2048")
full_exec()
e("s_waitcnt lgkmcnt(0)")
e("s_barrier")
e("s_branch L_B2")

CK_ROW = 1040
QA = 128 * CK_ROW
PB = QA + 16 * CK_ROW
MX = PB + 16 * 272
lab("L_roleC")
e("v_lshrrev_b32 v2, 4, v1")
e("v_lshlrev_b32 v50, 18, v2")
e("v_and_b32 v3, 15, v1")
e("v_lshl_add_u32 v50, v3, 4, v50")
e("s_lshl_b32 s10, s49, 20")
e("s_lshl_b32 s11, s48, 11")
e("s_add_u32 s10, s10, s11")
e("s_lshl_b32 s11, s3, 8")
e("s_add_u32 s10, s10, s11")
e(f"s_add_u32 s10, s10, {HB3:#x}")
e("v_add_u32 v50, s10, v50")
for r in range(4):
    sadd64(54 + 2 * r, WS, r * 65536)
e("v_lshlrev_b32 v51, 9, v1")
e("s_lshl_b32 s10, s49, 13")
e("s_lshl_b32 s11, s48, 4")
e("s_add_u32 s10, s10, s11")
e(f"s_add_u32 s10, s10, {HB3ML:#x}")
e("v_add_u32 v51, s10, v51")
e("v_and_b32 v2, 127, v0")
e("v_lshlrev_b32 v52, 4, v2")
e("s_lshr_b32 s10, s3, 1")
e("s_lshl_b32 s11, s49, 4")
e("s_add_u32 s11, s11, s10")
e("s_lshl_b32 s11, s11, 12")
e(f"s_add_u32 s11, s11, {HB2:#x}")
e("v_add_u32 v52, s11, v52")
e(f"s_mul_i32 s10, s10, {CK_ROW}")
e("v_lshlrev_b32 v53, 3, v2")
e("v_add_u32 v53, s10, v53")
e(f"v_add_u32 v53, {QA}, v53")
for i in range(4):
    sadd64(62 + 2 * i, WS, i * 16384)
e("v_and_b32 v2, 15, v1")
e(f"s_movk_i32 s10, {CK_ROW}")
e("v_mul_lo_u32 v49, v2, s10")
e("v_lshrrev_b32 v3, 4, v1")
e("v_lshl_add_u32 v49, v3, 4, v49")
e(f"v_add_u32 v49, {QA}, v49")
e("v_lshlrev_b32 v54, 5, v2")
e(f"v_add_u32 v54, {MX}, v54")
e("s_lshl_b32 s10, s3, 2")
e("v_add_u32 v58, s10, v54")
e("s_movk_i32 s10, 272")
e("v_mul_lo_u32 v56, v2, s10")
e(f"v_add_u32 v56, {PB}, v56")
e("v_lshl_add_u32 v55, v3, 3, v56")
e("s_lshl_b32 s10, s3, 5")
e("v_add_u32 v55, s10, v55")
e("v_lshl_add_u32 v56, v3, 4, v56")
e("v_lshlrev_b32 v2, 4, v1")
e("s_lshl_b32 s10, s48, 17")
e("s_lshl_b32 s11, s3, 14")
e("s_add_u32 s10, s10, s11")
e(f"s_add_u32 s12, s{CKV}, s10")
e(f"s_addc_u32 s13, s{CKV+1}, 0")
e(f"s_mul_i32 s11, s3, {16*CK_ROW}")
for i in range(16):
    e("s_mov_b32 m0, s11")
    e("s_nop 0")
    e("global_load_lds_dwordx4 v2, s[12:13] nt")
    if i < 15:
        e("s_add_u32 s12, s12, 1024")
        e("s_addc_u32 s13, s13, 0")
        e(f"s_add_u32 s11, s11, {CK_ROW}")
e("s_waitcnt vmcnt(0)")
get_tags()
e("s_barrier")
stamp(4)
diag(9)
e("v_and_b32 v2, 15, v1")
e("s_lshl_b32 s10, s3, 4")
e("v_add_u32 v2, s10, v2")
e(f"s_movk_i32 s10, {CK_ROW}")
e("v_mul_lo_u32 v2, v2, s10")
e("v_lshrrev_b32 v3, 4, v1")
e("v_lshl_add_u32 v2, v3, 4, v2")
for j in range(16):
    e(f"ds_read_b128 {v(64+4*j,4)}, v2 offset:{64*j}")
e("v_lshrrev_b32 v2, 4, v1")
e("v_lshlrev_b32 v2, 3, v2")
e("v_and_b32 v3, 15, v1")
e("v_lshrrev_b32 v3, 2, v3")
e("v_add_u32 v2, v2, v3")
e("v_mul_lo_u32 v2, v2, s10")
e("v_and_b32 v3, 3, v1")
e("v_lshl_add_u32 v2, v3, 3, v2")
e("s_lshl_b32 s11, s3, 7")
e("v_add_u32 v2, s11, v2")
e(f"v_add_u32 v3, {64*CK_ROW}, v2")
for j in range(4):
    for jj in range(4):
        base = 2 if j < 2 else 3
        off = (j % 2) * 32 * CK_ROW + jj * 32
        d = 128 + (j * 4 + jj) * 4
        e(f"ds_read_b64_tr_b16 {v(d,2)}, {v(base)} offset:{off}")
        e(f"ds_read_b64_tr_b16 {v(d+2,2)}, {v(base)} offset:{off+4*CK_ROW}")
e("s_waitcnt lgkmcnt(0)")
def _c():
    e("s_lshl_b32 s10, s48, 10")
    e("s_lshl_b32 s11, s49, 9")
    e("s_add_u32 s10, s10, s11")
    e(f"s_add_u32 s10, s10, {PSQ:#x}")
    e("v_lshl_add_u32 v20, v1, 4, s10")
wave0_multi_barrier(_c, 0xffffffff, 0, 16)
stamp(1)
_ld = []
for i in range(4):
    _ld.append((f"global_load_dwordx4 {v(16+8*i,4)}, v52, s[{62+2*i}:{63+2*i}] sc1", 16 + 8 * i))
    _ld.append((f"global_load_dwordx4 {v(20+8*i,4)}, v52, s[{62+2*i}:{63+2*i}] offset:2048 sc1", 20 + 8 * i))
sweep_pending(_ld, 192)
stamp(3)
for i in range(4):
    a_, b_ = 16 + 8 * i, 20 + 8 * i
    for k in (0, 1):
        e(f"v_lshlrev_b32 v2, 16, {v(a_+k)}")
        e(f"v_lshlrev_b32 v3, 16, {v(b_+k)}")
        e("v_add_f32 v2, v2, v3")
        e(f"v_and_b32 v3, 0xffff0000, {v(a_+k)}")
        e(f"v_and_b32 v57, 0xffff0000, {v(b_+k)}")
        e("v_add_f32 v3, v3, v57")
        e(f"v_cvt_pk_bf16_f32 {v(a_+k)}, v2, v3")
    e(f"ds_write_b64 v53, {v(a_,2)} offset:{i*4*CK_ROW}")
e("s_waitcnt lgkmcnt(0)")
stamp(5)
e("s_barrier")
stamp(6)
for j in range(16):
    e(f"ds_read_b128 {v(192+4*j,4)}, v49 offset:{64*j}")
for j in range(16):
    e(f"s_waitcnt lgkmcnt({15-j})")
    c = "0" if j == 0 else "v[16:19]"
    e(f"v_mfma_f32_16x16x32_bf16 v[16:19], {v(64+4*j,4)}, {v(192+4*j,4)}, {c}")
nop(7)
SCL = 128 ** -0.5 * LOG2E
for r in range(4): e(f"v_mul_f32 {v(16+r)}, {fhex(SCL)}, {v(16+r)}")
e("v_max_f32 v20, v16, v17")
e("v_max3_f32 v20, v20, v18, v19")
e("v_mov_b32 v21, v20")
nop(1)
e("v_permlane16_swap_b32 v21, v20")
e("v_max_f32 v20, v20, v21")
e("v_mov_b32 v21, v20")
nop(1)
e("v_permlane32_swap_b32 v21, v20")
e("v_max_f32 v20, v20, v21")
set_exec(0xffff, 0)
e("ds_write_b32 v58, v20")
full_exec()
e("s_waitcnt lgkmcnt(0)")
stamp(7)
e("s_barrier")
stamp(8)
e("s_lshl_b32 s10, s49, 13")
e("s_lshl_b32 s11, s48, 4")
e("s_add_u32 s10, s10, s11")
e(f"s_add_u32 s10, s10, {PS3:#x}")
presignal(10, 9, 16)
e("ds_read_b128 v[24:27], v54")
e("ds_read_b128 v[28:31], v54 offset:16")
e("s_waitcnt lgkmcnt(0)")
e("v_max3_f32 v20, v24, v25, v26")
e("v_max3_f32 v20, v20, v27, v28")
e("v_max3_f32 v20, v20, v29, v30")
e("v_max_f32 v20, v20, v31")
for r in range(4):
    e(f"v_sub_f32 {v(16+r)}, {v(16+r)}, v20")
for r in range(4):
    e(f"v_exp_f32 {v(16+r)}, {v(16+r)}")
nop(0)
e("v_cvt_pk_bf16_f32 v22, v16, v17")
e("v_cvt_pk_bf16_f32 v23, v18, v19")
e("ds_write_b64 v55, v[22:23]")
e("v_add_f32 v16, v16, v17")
e("v_add_f32 v18, v18, v19")
e("v_add_f32 v16, v16, v18")
e("v_mov_b32 v21, v16")
nop(1)
e("v_permlane16_swap_b32 v21, v16")
e("v_add_f32 v16, v16, v21")
e("v_mov_b32 v21, v16")
nop(1)
e("v_permlane32_swap_b32 v21, v16")
e("v_add_f32 v16, v16, v21")
set_exec(0xffff, 0)
e("ds_write_b32 v58, v16 offset:512")
full_exec()
e("s_waitcnt lgkmcnt(0)")
stamp(9)
e("s_barrier")
stamp(10)
for j in range(4):
    e(f"ds_read_b128 {v(192+4*j,4)}, v56 offset:{64*j}")
e("ds_read_b128 v[40:43], v54 offset:512")
e("ds_read_b128 v[44:47], v54 offset:528")
for j in range(4):
    e(f"s_waitcnt lgkmcnt({5-j})")
    for jj in range(4):
        c = "0" if j == 0 else v(24 + 4 * jj, 4)
        e(f"v_mfma_f32_16x16x32_bf16 {v(24+4*jj,4)}, {v(192+4*j,4)}, {v(128+(j*4+jj)*4,4)}, {c}")
e(f"v_mov_b32 v22, {T0}")
e(f"v_mov_b32 v23, {T1}")
e("s_waitcnt lgkmcnt(0)")
e("v_add_f32 v40, v40, v41"); e("v_add_f32 v42, v42, v43"); e("v_add_f32 v44, v44, v45"); e("v_add_f32 v46, v46, v47")
e("v_add_f32 v40, v40, v42"); e("v_add_f32 v44, v44, v46"); e("v_add_f32 v21, v40, v44")
nop(3)
pub_exec()
for r in range(4):
    d = 208 + 4 * r
    e(f"v_cvt_pk_bf16_f32 {v(d)}, {v(24+r)}, {v(28+r)}")
    e(f"v_cvt_pk_bf16_f32 {v(d+1)}, {v(32+r)}, {v(36+r)}")
    e(f"v_mov_b32 {v(d+2)}, {T0}")
    e(f"v_mov_b32 {v(d+3)}, {T1}")
    e(f"global_store_dwordx4 v50, {v(d,4)}, s[{54+2*r}:{55+2*r}] sc1")
sk = uid("c")
e("s_cmp_lg_u32 s3, 0")
e(f"s_cbranch_scc1 {sk}")
pub_exec(0xffff, 0)
e(f"global_store_dwordx4 v51, v[20:23], {sp(WS)} sc1")
lab(sk)
full_exec()
stamp(2)
diag(5)
e("s_branch L_end")


OB, CB = 133120, 134144
lab("L_roleA")
e("s_lshl_b32 s51, s48, 16")
e(f"s_add_u32 s51, s51, {HB3:#x}")
sweep8_addr(52, 51)
e("v_and_b32 v3, 31, v1")
e("s_lshl_b32 s10, s48, 9")
e(f"s_add_u32 s10, s10, {HB3ML:#x}")
e("v_lshl_add_u32 v54, v3, 4, s10")
e("v_lshrrev_b32 v55, 4, v1")
e("v_lshlrev_b32 v55, 5, v55")
col_of_lane(56, 3)
e("v_lshlrev_b32 v56, 1, v56")
e(f"v_add_u32 v56, {OB}, v56")
e("v_lshrrev_b32 v3, 4, v1")
e("v_lshlrev_b32 v57, 4, v3")
e(f"v_add_u32 v57, {OB}, v57")
e("v_and_b32 v3, 15, v1")
e("s_lshl_b32 s10, s3, 5")
e(f"s_add_u32 s10, s10, {CB}")
e("v_lshl_add_u32 v58, v3, 1, s10")
e("s_lshl_b32 s10, s48, 11")
e("s_lshl_b32 s11, s49, 10")
e("s_add_u32 s10, s10, s11")
e(f"s_add_u32 s10, s10, {HB4A:#x}")
e("v_lshl_add_u32 v59, v1, 4, s10")
e("s_lshl_b32 s10, s3, 6")
e(f"s_add_u32 s10, s10, {CB+256}")
e("v_lshl_add_u32 v60, v3, 2, s10")
e("v_lshrrev_b32 v61, 4, v1")
e("v_lshlrev_b32 v61, 7, v61")
e("v_lshl_add_u32 v61, v3, 2, v61")
e(f"v_add_u32 v61, {CB+256}, v61")
e("s_waitcnt vmcnt(0)")
get_tags()
e("s_lshl_b32 s10, s48, 7")
e("s_lshl_b32 s11, s49, 6")
e("s_add_u32 s10, s10, s11")
e(f"s_add_u32 s10, s10, {PSA:#x}")
wave0_hint_barrier(10, 16)
e("v_lshrrev_b32 v2, 4, v1")
e("v_lshlrev_b32 v2, 13, v2")
e("v_and_b32 v3, 15, v1")
e("v_lshl_add_u32 v2, v3, 4, v2")
e("s_lshl_b32 s10, s3, 19")
e("s_lshl_b32 s11, s48, 8")
e("s_add_u32 s10, s10, s11")
e("v_add_u32 v2, s10, v2")
e(f"s_mul_i32 s11, s3, {16*1040}")
e(f"s_mov_b32 s12, s{WUV}")
e(f"s_mov_b32 s13, s{WUV+1}")
for i in range(16):
    e("s_mov_b32 m0, s11")
    nop(0)
    e("global_load_lds_dwordx4 v2, s[12:13] nt")
    if i < 15:
        e("s_add_u32 s12, s12, 32768")
        e("s_addc_u32 s13, s13, 0")
        e("s_add_u32 s11, s11, 1040")
e("v_lshrrev_b32 v2, 4, v1")
e("s_movk_i32 s10, 2080")
e("v_mul_lo_u32 v2, v2, s10")
e("v_bfe_u32 v3, v1, 2, 2")
e("v_lshl_add_u32 v2, v3, 8, v2")
e("v_and_b32 v3, 3, v1")
e("v_lshl_add_u32 v2, v3, 3, v2")
e("s_lshl_b32 s10, s3, 5")
e("v_add_u32 v2, s10, v2")
e(f"v_add_u32 v3, {8*8320}, v2")
e("s_waitcnt vmcnt(0)")
e("s_barrier")
tr_frags(64, [2, 3], 16, 1, 8320, 0, 1040, jsplit=8)
e("s_waitcnt lgkmcnt(0)")
e("s_barrier")
e("v_lshrrev_b32 v2, 5, v1")
e("v_lshlrev_b32 v2, 10, v2")
e("v_and_b32 v3, 31, v1")
e("v_lshl_add_u32 v2, v3, 4, v2")
e("s_lshl_b32 s10, s48, 17")
e("s_lshl_b32 s11, s3, 14")
e("s_add_u32 s10, s10, s11")
e("s_lshl_b32 s11, s49, 9")
e("s_add_u32 s10, s10, s11")
e(f"s_add_u32 s12, s{WO}, s10")
e(f"s_addc_u32 s13, s{WO+1}, 0")
e(f"s_mul_i32 s11, s3, {8*1040}")
for i in range(8):
    e("s_mov_b32 m0, s11")
    nop(0)
    e("global_load_lds_dwordx4 v2, s[12:13] nt")
    if i < 7:
        e("s_add_u32 s12, s12, 2048")
        e("s_addc_u32 s13, s13, 0")
        e("s_add_u32 s11, s11, 1040")
e("v_lshrrev_b32 v2, 4, v1")
e("v_lshlrev_b32 v2, 2, v2")
e("v_bfe_u32 v3, v1, 3, 1")
e("v_add_u32 v2, v2, v3")
e("s_movk_i32 s10, 1040")
e("v_mul_lo_u32 v2, v2, s10")
e("v_bfe_u32 v3, v1, 2, 1")
e("v_lshl_add_u32 v2, v3, 9, v2")
e("v_and_b32 v3, 3, v1")
e("v_lshl_add_u32 v2, v3, 3, v2")
e("s_lshl_b32 s11, s3, 6")
e("v_add_u32 v2, s11, v2")
e("s_waitcnt vmcnt(0)")
e("s_barrier")
tr_frags(128, [2], 4, 2, 16 * 1040, 32, 2 * 1040)
e("s_waitcnt lgkmcnt(0)")
stamp(4)
diag(10)
def _a():
    e("s_lshl_b32 s10, s48, 9")
    e(f"s_add_u32 s10, s10, {PS3:#x}")
    e("v_lshl_add_u32 v20, v1, 4, s10")
wave0_multi_barrier(_a, 0xffffffff, 0, 16)
stamp(1)
stamp_s9(16)
sweep_pending(sweep8_list(52) + [(f"global_load_dwordx4 v[192:195], v54, {sp(WS)} sc1", 192)], 196)
stamp(3)
stamp_s9(17)
e("v_mov_b32 v196, v192")
wave_red("v_max_f32", 196, 197, half=True)
e("v_sub_f32 v192, v192, v196")
e("v_exp_f32 v192, v192")
nop(0)
e("v_mul_f32 v196, v192, v193")
wave_red("v_add_f32", 196, 197, half=True)
e("v_rcp_f32 v196, v196")
nop(0)
e("v_mul_f32 v192, v192, v196")
for i in range(8):
    e(f"ds_bpermute_b32 {v(200+i)}, v55, v192 offset:{4*i}")
for i in range(8):
    u = 16 + 4 * i
    e(f"s_waitcnt lgkmcnt({7-i})")
    for (src, a) in ((u, 208), (u + 1, 210)):
        e(f"v_lshlrev_b32 v196, 16, {v(src)}")
        e(f"v_and_b32 v197, 0xffff0000, {v(src)}")
        if i == 0:
            e(f"v_mul_f32 {v(a)}, {v(200+i)}, v196")
            e(f"v_mul_f32 {v(a+1)}, {v(200+i)}, v197")
        else:
            e(f"v_fmac_f32 {v(a)}, {v(200+i)}, v196")
            e(f"v_fmac_f32 {v(a+1)}, {v(200+i)}, v197")
red4_sg(208)
e("v_cvt_pk_bf16_f32 v208, v208, v208")
e("ds_write_b16 v56, v208")
e("s_waitcnt lgkmcnt(0)")
stamp(5)
e("s_barrier")
stamp(6)
e("s_lshl_b32 s10, s48, 5")
e("s_lshl_b32 s11, s49, 4")
e("s_add_u32 s10, s10, s11")
e(f"s_add_u32 s10, s10, {PS4:#x}")
presignal(10, 10, 59)
for j in range(16):
    e(f"ds_read_b128 {v(192+4*j,4)}, v57 offset:{64*j}")
for j in range(16):
    e(f"s_waitcnt lgkmcnt({15-j})")
    c = "0" if j == 0 else "v[16:19]"
    e(f"v_mfma_f32_16x16x32_bf16 v[16:19], {v(192+4*j,4)}, {v(64+4*j,4)}, {c}")
nop(7)
e("v_cvt_pk_bf16_f32 v16, v16, v16")
set_exec(0xffff, 0)
e("ds_write_b16 v58, v16")
full_exec()
e("s_waitcnt lgkmcnt(0)")
e("s_barrier")
stamp(7)
for j in range(4):
    e(f"ds_read_b128 {v(192+4*j,4)}, v57 offset:{1024+64*j}")
for j in range(4):
    e(f"s_waitcnt lgkmcnt({3-j})")
    for t in range(2):
        c = "0" if j == 0 else v(24 + 4 * t, 4)
        e(f"v_mfma_f32_16x16x32_bf16 {v(24+4*t,4)}, {v(192+4*j,4)}, {v(128+(j*2+t)*4,4)}, {c}")
nop(7)
e("v_cvt_pk_bf16_f32 v24, v24, v28")
set_exec(0xffff, 0)
e("ds_write_b32 v60, v24")
full_exec()
e("s_waitcnt lgkmcnt(0)")
e("s_barrier")
sk = uid("a")
e("s_cmp_lg_u32 s3, 0")
e(f"s_cbranch_scc1 {sk}")
e("ds_read_b32 v16, v61")
e("ds_read_b32 v17, v61 offset:64")
e(f"v_mov_b32 v18, {T0}")
e(f"v_mov_b32 v19, {T1}")
e("s_waitcnt lgkmcnt(0)")
e(f"global_store_dwordx4 v59, v[16:19], {sp(WS)} sc1")
lab(sk)
stamp(2)
diag(6)

lab("L_end")
e("s_endpgm")
L.append('.section .rodata,"a"')
L.append(".p2align 6")
L.append(f".amdhsa_kernel {NAME}_kernel")
L.append("  .amdhsa_next_free_vgpr 256")
L.append("  .amdhsa_next_free_sgpr 102")
L.append("  .amdhsa_accum_offset 256")
L.append("  .amdhsa_group_segment_fixed_size 0")
L.append("  .amdhsa_kernarg_size 128")
L.append("  .amdhsa_user_sgpr_count 2")
L.append("  .amdhsa_user_sgpr_kernarg_segment_ptr 1")
L.append("  .amdhsa_system_sgpr_workgroup_id_x 1")
L.append(".end_amdhsa_kernel")
open(OUTF, "w").write("\n".join(L) + "\n")
print("wrote", OUTF, len(L), "lines")
```

```python
import sys, struct

DEBUG = "--debug" in sys.argv
NODRY = "--nodry" in sys.argv
DIAG = "--diag" in sys.argv
BDEPTH = int([a[4:] for a in sys.argv if a.startswith("--bd")][0]) if any(a.startswith("--bd") for a in sys.argv) else 15
OUTF = [a for a in sys.argv[1:] if not a.startswith("--")]
NAME = "adaLN_cond__compressed_kv_cla__mixer_channel_mlp__decode"
OUTF = OUTF[0] if OUTF else f"cdna_kernels/{NAME}.s"

HB1C = 0x8000
HBQ = 0x4000
PS3 = 0x308000
PSQ = 0x310000
PS4 = 0x320000
PSA = 0x330000
PS1 = 0x340000
HBQL = 0x350000
HB1, HB2, HB3, HB3ML, HB4A, HB4B, HB6, EPOCH = 0x0, 0x10000, 0x100000, 0x300000, 0x400000, 0x480000, 0x500000, 0x600000
TS = 0x2000000
X, CKV, WQ, WUK, WUV, WO, BX, W1, B1, W2, B2, C, WMOD, OUT, DBG, WS = [16 + 2 * i for i in range(16)]
def sp(b): return f"s[{b}:{b+1}]"
LDS_BYTES = 155136
SPIN = 400000
LOG2E = 1.4426950408889634
T0, T1 = "s8", "s93"
PM = "s[96:97]"

L = []
def e(s): L.append("    " + s)
def lab(s): L.append(s + ":")
_uid = [0]
def uid(p="L"):
    _uid[0] += 1
    return f"{p}_{_uid[0]}"
def v(a, n=1): return f"v{a}" if n == 1 else f"v[{a}:{a+n-1}]"
def nop(n): e(f"s_nop {n}")
def fhex(x): return "0x%08x" % struct.unpack("<I", struct.pack("<f", x))[0]

def stamp(k):
    if not DEBUG: return
    sk = uid("st")
    e("s_cmp_lg_u32 s3, 0")
    e(f"s_cbranch_scc1 {sk}")
    e("s_memrealtime s[90:91]")
    e("s_waitcnt lgkmcnt(0)")
    e("v_mov_b32 v255, s90")
    e("v_mov_b32 v254, s92")
    e(f"global_store_dword v254, v255, {sp(WS)} offset:{4*k}")
    lab(sk)

def diag(k, neg=False):
    if not DIAG or neg: return
    sk = uid("dg")
    e("s_cmp_lg_u32 s3, 0")
    e(f"s_cbranch_scc1 {sk}")
    e("s_cmp_lg_u32 s4, 0")
    e(f"s_cbranch_scc1 {sk}")
    e(f"s_cmp_lg_u32 s7, {6 if k == 8 else 0}")
    e(f"s_cbranch_scc1 {sk}")
    if k == 1:
        e("s_cmp_lg_u32 s6, 0")
        e(f"s_cbranch_scc1 {sk}")
    e("s_memrealtime s[90:91]")
    e("s_memtime s[98:99]")
    e("s_waitcnt lgkmcnt(0)")
    e("v_mov_b32 v255, s90")
    e(f"v_mov_b32 v254, {4*k}")
    e("s_mov_b64 s[94:95], exec")
    set_exec(1, 0)
    e(f"global_store_dword v254, v255, {sp(DBG)}")
    if k in (1, 7):
        e("v_mov_b32 v255, s98")
        e(f"global_store_dword v254, v255, {sp(DBG)} offset:{40 if k == 1 else 20}")
    e("s_mov_b64 exec, s[94:95]")
    lab(sk)

def stamp_w(k):
    if not DEBUG: return
    e("s_memrealtime s[90:91]")
    e("s_lshl_b32 s94, s3, 2")
    e("s_add_u32 s94, s94, s92")
    e("s_waitcnt lgkmcnt(0)")
    e("v_mov_b32 v255, s90")
    e("v_mov_b32 v254, s94")
    e(f"global_store_dword v254, v255, {sp(WS)} offset:{4*k}")

def stamp_s9(k):
    if not DEBUG: return
    sk = uid("st")
    e("s_cmp_lg_u32 s3, 0")
    e(f"s_cbranch_scc1 {sk}")
    e("v_mov_b32 v255, s9")
    e("v_mov_b32 v254, s92")
    e(f"global_store_dword v254, v255, {sp(WS)} offset:{4*k}")
    lab(sk)

def set_exec(lo, hi):
    e(f"s_mov_b32 exec_lo, {lo:#x}")
    e(f"s_mov_b32 exec_hi, {hi:#x}")
def full_exec(): e("s_mov_b64 exec, -1")
def pub_exec(lo=None, hi=None):
    if lo is None:
        e(f"s_mov_b64 exec, {PM}")
    else:
        set_exec(lo, hi)
        e(f"s_and_b64 exec, exec, {PM}")

def spin_bound():
    e("s_add_u32 s9, s9, 1")
    e(f"s_cmp_gt_u32 s9, {SPIN}")
    e("s_cbranch_scc1 L_end")

def tagcheck(units, t, retry):
    us = list(units)
    if len(us) % 2: us.append(us[-1])
    first = True
    for a, b in zip(us[0::2], us[1::2]):
        for k in (0, 1):
            if first:
                e(f"v_min_u32 {v(t+2*k)}, {v(a+2+k)}, {v(b+2+k)}")
                e(f"v_max_u32 {v(t+2*k+1)}, {v(a+2+k)}, {v(b+2+k)}")
            else:
                e(f"v_min3_u32 {v(t+2*k)}, {v(t+2*k)}, {v(a+2+k)}, {v(b+2+k)}")
                e(f"v_max3_u32 {v(t+2*k+1)}, {v(t+2*k+1)}, {v(a+2+k)}, {v(b+2+k)}")
        first = False
    e(f"v_xor_b32 {v(t)}, {T0}, {v(t)}")
    e(f"v_xor_b32 {v(t+1)}, {T0}, {v(t+1)}")
    e(f"v_xor_b32 {v(t+2)}, {T1}, {v(t+2)}")
    e(f"v_xor_b32 {v(t+3)}, {T1}, {v(t+3)}")
    e(f"v_or3_b32 {v(t)}, {v(t)}, {v(t+1)}, {v(t+2)}")
    e(f"v_or_b32 {v(t)}, {v(t)}, {v(t+3)}")
    e(f"v_cmp_ne_u32 vcc, 0, {v(t)}")
    ok = uid("ok")
    e(f"s_cbranch_vccz {ok}")
    spin_bound()
    e(f"s_branch {retry}")
    lab(ok)

def hint_wait(saddr_expr_sgpr, u, sleep=4):
    lp, dn = uid("hw"), uid("hd")
    e(f"v_mov_b32 {v(u+4)}, s{saddr_expr_sgpr}")
    set_exec(1, 0)
    lab(lp)
    e(f"global_load_dwordx4 {v(u,4)}, {v(u+4)}, {sp(WS)} sc1")
    e("s_waitcnt vmcnt(0)")
    e(f"v_xor_b32 {v(u)}, {T0}, {v(u+2)}")
    e(f"v_xor_b32 {v(u+1)}, {T1}, {v(u+3)}")
    e(f"v_or_b32 {v(u)}, {v(u)}, {v(u+1)}")
    e(f"v_cmp_ne_u32 vcc, 0, {v(u)}")
    e(f"s_cbranch_vccz {dn}")
    spin_bound()
    e(f"s_sleep {sleep}")
    e(f"s_branch {lp}")
    lab(dn)
    full_exec()

def hint_multi(addr_v, lo, hi, u, sleep=1, base=224):
    lp, dn = uid("hw"), uid("hd")
    set_exec(lo, hi)
    for k in range(3):
        e(f"global_load_dwordx4 {v(base+4*k,4)}, {v(addr_v)}, {sp(WS)} sc1")
        e(f"s_sleep {sleep+1}")
    lab(lp)
    for k in range(4):
        e(f"global_load_dwordx4 {v(base+4*((k+3)%4),4)}, {v(addr_v)}, {sp(WS)} sc1")
        e("s_waitcnt vmcnt(3)")
        e(f"v_xor_b32 {v(u)}, {T0}, {v(base+4*k+2)}")
        e(f"v_xor_b32 {v(u+1)}, {T1}, {v(base+4*k+3)}")
        e(f"v_or_b32 {v(u)}, {v(u)}, {v(u+1)}")
        e(f"v_cmp_ne_u32 vcc, 0, {v(u)}")
        e(f"s_cbranch_vccz {dn}")
        e(f"s_sleep {sleep}")
    spin_bound()
    e(f"s_branch {lp}")
    lab(dn)
    full_exec()

def wave0_hint2_barrier(sreg, addr_code, lo, hi, u):
    sk = uid("h")
    e("s_cmp_lg_u32 s3, 0")
    e(f"s_cbranch_scc1 {sk}")
    hint_wait(sreg, u)
    addr_code()
    hint_multi(u + 4, lo, hi, u)
    lab(sk)
    e("s_barrier")

def presignal(sreg, shift=0, nl=1, guard=True):
    sk = uid("ps")
    if guard:
        e("s_cmp_lg_u32 s3, 0")
        e(f"s_cbranch_scc1 {sk}")
    e(f"v_mov_b32 v246, {T0}")
    e(f"v_mov_b32 v247, {T1}")
    e(f"v_lshl_add_u32 v248, v1, {shift}, s{sreg}")
    m = (1 << nl) - 1
    set_exec(m & 0xffffffff, m >> 32)
    e(f"global_store_dwordx4 v248, v[244:247], {sp(WS)} sc1")
    full_exec()
    lab(sk)

def wave0_multi_barrier(addr_code, lo, hi, u):
    sk = uid("h")
    e("s_cmp_lg_u32 s3, 0")
    e(f"s_cbranch_scc1 {sk}")
    addr_code()
    hint_multi(u + 4, lo, hi, u)
    lab(sk)
    e("s_barrier")

def wave0_hint_barrier(sreg, u):
    sk = uid("h")
    e("s_cmp_lg_u32 s3, 0")
    e(f"s_cbranch_scc1 {sk}")
    hint_wait(sreg, u)
    lab(sk)
    e("s_barrier")

def dpp(op, d, s0, s1, ctrl):
    e(f"{op}_dpp {v(d)}, {v(s0)}, {v(s1)} {ctrl} row_mask:0xf bank_mask:0xf")

def wave_red(op, a, t, half=False):
    for r in (8, 4, 2, 1):
        nop(1)
        dpp(op, a, a, a, f"row_ror:{r}")
    e(f"v_mov_b32 {v(t)}, {v(a)}")
    nop(1)
    e(f"v_permlane16_swap_b32 {v(t)}, {v(a)}")
    e(f"{op} {v(a)}, {v(a)}, {v(t)}")
    if not half:
        e(f"v_mov_b32 {v(t)}, {v(a)}")
        nop(1)
        e(f"v_permlane32_swap_b32 {v(t)}, {v(a)}")
        e(f"{op} {v(a)}, {v(a)}, {v(t)}")

def red8_to2(acc):
    for k in range(4):
        e(f"v_permlane32_swap_b32 {v(acc+2*k)}, {v(acc+2*k+1)}")
    for k in range(4):
        e(f"v_add_f32 {v(acc+2*k)}, {v(acc+2*k)}, {v(acc+2*k+1)}")
    nop(1)
    e(f"v_permlane16_swap_b32 {v(acc+0)}, {v(acc+2)}")
    e(f"v_permlane16_swap_b32 {v(acc+4)}, {v(acc+6)}")
    e(f"v_add_f32 {v(acc+0)}, {v(acc+0)}, {v(acc+2)}")
    e(f"v_add_f32 {v(acc+4)}, {v(acc+4)}, {v(acc+6)}")

def bitswap_rho(dst, t):
    e(f"v_lshrrev_b32 {v(dst)}, 5, v1")
    e(f"v_lshrrev_b32 {v(t)}, 3, v1")
    e(f"v_and_b32 {v(t)}, 2, {v(t)}")
    e(f"v_or_b32 {v(dst)}, {v(dst)}, {v(t)}")

def gemv_row8(W, nrows, vf, acc, lo, hi):
    for i in range(nrows):
        e(f"v_cvt_pk_bf16_f32 {v(lo+i)}, {v(vf+i)}, 0")
        e(f"v_cvt_pk_bf16_f32 {v(hi+i)}, 0, {v(vf+i)}")
    for i in range(nrows):
        for k in range(4):
            c0 = "0" if i == 0 else v(acc + 2 * k)
            c1 = "0" if i == 0 else v(acc + 2 * k + 1)
            e(f"v_dot2_f32_bf16 {v(acc+2*k)}, {v(W+4*i+k)}, {v(lo+i)}, {c0}")
            e(f"v_dot2_f32_bf16 {v(acc+2*k+1)}, {v(W+4*i+k)}, {v(hi+i)}, {c1}")
    nop(2)

def sadd64(dst, src, imm):
    e(f"s_add_u32 s{dst}, s{src}, {imm}")
    e(f"s_addc_u32 s{dst+1}, s{src+1}, 0")

def unpack2(src, d):
    e(f"v_lshlrev_b32 {v(d)}, 16, {v(src)}")
    e(f"v_and_b32 {v(d+1)}, 0xffff0000, {v(src)}")

def gemv64(W, ldsV, ldsRW, nparts=1, pstride=0):
    e(f"ds_read_b128 v[16:19], v2 offset:{ldsV}")
    e(f"ds_read_b128 v[20:23], v2 offset:{ldsV+16}")
    for p in range(1, nparts):
        e(f"ds_read_b128 {v(24+8*(p-1),4)}, v2 offset:{ldsV+p*pstride}")
        e(f"ds_read_b128 {v(28+8*(p-1),4)}, v2 offset:{ldsV+p*pstride+16}")
    e("s_waitcnt lgkmcnt(0)")
    for p in range(1, nparts):
        for i in range(8):
            e(f"v_add_f32 {v(16+i)}, {v(16+i)}, {v(24+8*(p-1)+i)}")
    gemv_row8(W, 8, 16, 40, 24, 32)
    red8_to2(40)
    nop(0)
    dpp("v_add_f32", 40, 40, 40, "row_ror:8")
    dpp("v_add_f32", 44, 44, 44, "row_ror:8")
    set_exec(0x00ff00ff, 0x00ff00ff)
    e(f"ds_write_b32 v48, v40 offset:{ldsRW}")
    e(f"ds_write_b32 v48, v44 offset:{ldsRW+16}")
    full_exec()
def gemv64_setup():
    e("v_lshrrev_b32 v2, 3, v1")
    e("v_lshlrev_b32 v2, 5, v2")
    e("s_lshl_b32 s10, s3, 8")
    e("v_add_u32 v2, s10, v2")
    bitswap_rho(48, 3)
    e("v_and_b32 v3, 7, v1")
    e("v_lshl_add_u32 v48, v3, 3, v48")
    e("v_lshl_add_u32 v48, v48, 2, s10")
def sum64(ldsRW, dst):
    e("v_lshlrev_b32 v3, 2, v1")
    for w in range(8):
        e(f"ds_read_b32 {v(16+w)}, v3 offset:{ldsRW+256*w}")
    e("s_waitcnt lgkmcnt(0)")
    e("v_add_f32 v16, v16, v17"); e("v_add_f32 v18, v18, v19"); e("v_add_f32 v20, v20, v21"); e("v_add_f32 v22, v22, v23")
    e("v_add_f32 v16, v16, v18"); e("v_add_f32 v20, v20, v22")
    e(f"v_add_f32 {v(dst)}, v16, v20")
def load_seg64(ptr, dst, stride):
    for i in range(8):
        sadd64(12, ptr, i * stride)
        e(f"global_load_dwordx4 {v(dst+4*i,4)}, v10, s[12:13] nt")
def seg64_off():
    e("v_lshrrev_b32 v10, 3, v1")
    e("v_lshlrev_b32 v10, 16, v10")
    e("s_lshl_b32 s10, s3, 19")
    e("s_lshl_b32 s11, s48, 8")
    e("s_add_u32 s10, s10, s11")
    e("s_lshl_b32 s11, s49, 7")
    e("s_add_u32 s10, s10, s11")
    e("v_add_u32 v10, s10, v10")
    e("v_and_b32 v3, 7, v1")
    e("v_lshl_add_u32 v10, v3, 4, v10")
def out512_write(ldsO):
    e("v_lshlrev_b32 v3, 5, v1")
    e("s_lshl_b32 s10, s3, 11")
    e("v_add_u32 v3, s10, v3")
    e(f"ds_write_b128 v3, v[40:43] offset:{ldsO}")
    e(f"ds_write_b128 v3, v[44:47] offset:{ldsO+16}")
def publish512(ldsO, sbase):
    sk = uid("p")
    e("s_cmp_ge_u32 s3, 4")
    e(f"s_cbranch_scc1 {sk}")
    e("v_lshlrev_b32 v3, 3, v0")
    for w in range(8):
        e(f"ds_read_b64 {v(16+2*w,2)}, v3 offset:{ldsO+2048*w}")
    e(f"v_mov_b32 v42, {T0}")
    e(f"v_mov_b32 v43, {T1}")
    e("v_lshlrev_b32 v3, 4, v0")
    e(f"v_add_u32 v3, s{sbase}, v3")
    e("s_waitcnt lgkmcnt(0)")
    for o in (0, 1):
        e(f"v_add_f32 {v(16+o)}, {v(16+o)}, {v(18+o)}"); e(f"v_add_f32 {v(20+o)}, {v(20+o)}, {v(22+o)}")
        e(f"v_add_f32 {v(24+o)}, {v(24+o)}, {v(26+o)}"); e(f"v_add_f32 {v(28+o)}, {v(28+o)}, {v(30+o)}")
        e(f"v_add_f32 {v(16+o)}, {v(16+o)}, {v(20+o)}"); e(f"v_add_f32 {v(24+o)}, {v(24+o)}, {v(28+o)}")
        e(f"v_add_f32 {v(40+o)}, {v(16+o)}, {v(24+o)}")
    pub_exec()
    e(f"global_store_dwordx4 v3, v[40:43], {sp(WS)} sc1")
    full_exec()
    lab(sk)

def get_tags():
    e("v_readfirstlane_b32 s8, v253")
    nop(3)
    e("s_add_u32 s8, s8, 1")
    e("s_xor_b32 s93, s8, 0x5bd1e995")

def dry_begin(name):
    if NODRY:
        return
    e(f"s_mov_b64 {PM}, 0")
    e(f"s_branch {name}_crit")
    lab(f"{name}_ret")
    e(f"s_mov_b64 {PM}, -1")
def dry_end(name):
    if NODRY:
        return
    e(f"s_cmp_eq_u64 {PM}, 0")
    e(f"s_cbranch_scc1 {name}_ret")


def masks_setup(m):
    e("v_and_b32 v3, 1, v1")
    e("v_lshlrev_b32 v3, 4, v3")
    e(f"v_mov_b32 {v(m+3)}, 0xffff")
    e(f"v_lshlrev_b32 {v(m+3)}, v3, {v(m+3)}")
    e("v_bfe_u32 v3, v1, 1, 2")
    for r in range(3):
        e(f"v_cmp_eq_u32 vcc, {r}, v3")
        nop(1)
        e(f"v_cndmask_b32 {v(m+r)}, 0, {v(m+3)}, vcc")
    e("v_cmp_eq_u32 vcc, 3, v3")
    nop(1)
    e(f"v_cndmask_b32 {v(m+3)}, 0, {v(m+3)}, vcc")

def gemv64m_setup(m):
    e("v_lshrrev_b32 v2, 3, v1")
    e("v_lshlrev_b32 v2, 5, v2")
    e("s_lshl_b32 s10, s3, 8")
    e("v_add_u32 v2, s10, v2")
    e("v_and_b32 v48, 7, v1")
    e("v_lshlrev_b32 v48, 5, v48")
    e("v_and_b32 v3, 16, v1")
    e("v_add3_u32 v48, v48, v3, s10")
    masks_setup(m)

def gemv64m(W, ldsV, ldsRW, m, nl=8, va=2):
    if nl == 8:
        e(f"ds_read_b128 v[16:19], {v(va)} offset:{ldsV}")
        e(f"ds_read_b128 v[20:23], {v(va)} offset:{ldsV+16}")
    else:
        e(f"ds_read_b64 v[16:17], {v(va)} offset:{ldsV}")
    e("s_waitcnt lgkmcnt(0)")
    for i in range(nl):
        e(f"v_cvt_pk_bf16_f32 {v(16+i)}, {v(16+i)}, {v(16+i)}")
    for i in range(nl):
        a = 24 + 4 * (i % 3)
        for r in range(4):
            e(f"v_and_b32 {v(a+r)}, {v(16+i)}, {v(m+r)}")
        if i > 0:
            pa = 24 + 4 * ((i - 1) % 3)
            c = "0" if i == 1 else "v[40:43]"
            e(f"v_mfma_f32_16x16x32_bf16 v[40:43], {v(pa,4)}, {v(W+4*(i-1),4)}, {c}")
    nop(1)
    e(f"v_mfma_f32_16x16x32_bf16 v[40:43], {v(24+4*((nl-1)%3),4)}, {v(W+4*(nl-1),4)}, v[40:43]")
    nop(7)
    for r in range(4):
        e(f"v_mov_b32 {v(44+r)}, {v(40+r)}")
    nop(0)
    for r in range(4):
        e(f"v_permlane32_swap_b32 {v(40+r)}, {v(44+r)}")
    nop(0)
    for r in range(4):
        dpp("v_add_f32", 40 + r, 44 + r, 40 + r, "row_ror:8")
    set_exec(0x00ff00ff, 0)
    e(f"ds_write_b128 v48, v[40:43] offset:{ldsRW}")
    full_exec()

def tr_frags(dst, bases, njs, ntiles, jstep, tstep, half_off, jsplit=None):
    for j in range(njs):
        for t in range(ntiles):
            if jsplit is None: b, jj = bases[0], j
            else: b, jj = bases[j // jsplit], j % jsplit
            off = jj * jstep + t * tstep
            d = dst + (j * ntiles + t) * 4
            e(f"ds_read_b64_tr_b16 {v(d,2)}, {v(b)} offset:{off}")
            e(f"ds_read_b64_tr_b16 {v(d+2,2)}, {v(b)} offset:{off+half_off}")

def red4_sg(a):
    nop(1)
    e(f"v_permlane32_swap_b32 {v(a)}, {v(a+1)}")
    e(f"v_permlane32_swap_b32 {v(a+2)}, {v(a+3)}")
    e(f"v_add_f32 {v(a)}, {v(a)}, {v(a+1)}")
    e(f"v_add_f32 {v(a+2)}, {v(a+2)}, {v(a+3)}")
    nop(1)
    e(f"v_permlane16_swap_b32 {v(a)}, {v(a+2)}")
    e(f"v_add_f32 {v(a)}, {v(a)}, {v(a+2)}")

def col_of_lane(dst, t):
    bitswap_rho(dst, t)
    e(f"v_lshlrev_b32 {v(dst)}, 4, {v(dst)}")
    e(f"v_and_b32 {v(t)}, 15, v1")
    e("s_lshl_b32 s10, s3, 6")
    e(f"v_add3_u32 {v(dst)}, {v(dst)}, {v(t)}, s10")

def pub_tiles(D, addr):
    e(f"v_cvt_pk_bf16_f32 v16, {v(D)}, {v(D+4)}")
    e(f"v_cvt_pk_bf16_f32 v17, {v(D+8)}, {v(D+12)}")
    e(f"v_mov_b32 v18, {T0}")
    e(f"v_mov_b32 v19, {T1}")
    pub_exec(0xffff, 0)
    e(f"global_store_dwordx4 {v(addr)}, v[16:19], {sp(WS)} sc1")
    full_exec()

def sweep8_addr(dst, hb_sgpr):
    e(f"v_lshrrev_b32 {v(dst)}, 4, v1")
    e(f"v_lshlrev_b32 {v(dst)}, 14, {v(dst)}")
    e("v_and_b32 v3, 15, v1")
    e(f"v_lshl_add_u32 {v(dst)}, v3, 4, {v(dst)}")
    e("s_lshl_b32 s10, s3, 8")
    e(f"s_add_u32 s10, s10, s{hb_sgpr}")
    e(f"v_add_u32 {v(dst)}, s10, {v(dst)}")
    for k in range(4):
        sadd64(54 + 2 * k, WS, k * 4096)
def sweep_pending(loads, t):
    n = len(loads)
    e(f"s_mov_b32 s53, {(1 << n) - 1:#x}")
    lp, dn = uid("sw"), uid("sd")
    lab(lp)
    for i, (line, u) in enumerate(loads):
        sk = uid("sk")
        e(f"s_bitcmp1_b32 s53, {i}")
        e(f"s_cbranch_scc0 {sk}")
        e(line)
        lab(sk)
    e("s_waitcnt vmcnt(0)")
    for i, (line, u) in enumerate(loads):
        e(f"v_xor_b32 {v(t)}, {T0}, {v(u+2)}")
        e(f"v_xor_b32 {v(t+1)}, {T1}, {v(u+3)}")
        e(f"v_or_b32 {v(t)}, {v(t)}, {v(t+1)}")
        e(f"v_cmp_ne_u32 vcc, 0, {v(t)}")
        e("s_cmp_eq_u64 vcc, 0")
        e(f"s_cselect_b32 s10, {~(1 << i) & 0xffffffff:#x}, -1")
        e("s_and_b32 s53, s53, s10")
    e("s_cmp_eq_u32 s53, 0")
    e(f"s_cbranch_scc1 {dn}")
    spin_bound()
    e(f"s_branch {lp}")
    lab(dn)
def sweep8_list(addr):
    return [(f"global_load_dwordx4 {v(16+4*i,4)}, {v(addr)}, s[{54+2*(i//2)}:{55+2*(i//2)}] offset:{2048*(i%2)} sc1", 16 + 4 * i) for i in range(8)]
def sweep8_loads(addr):
    for i in range(8):
        e(f"global_load_dwordx4 {v(16+4*i,4)}, {v(addr)}, s[{54+2*(i//2)}:{55+2*(i//2)}] offset:{2048*(i%2)} sc1")

L.append(f"; @launch grid=(256,1,1) block=(512,1,1) lds={LDS_BYTES}")
L.append('.amdgcn_target "amdgcn-amd-amdhsa--gfx950"')
L.append(".text")
L.append(f".globl {NAME}_kernel")
L.append(".p2align 8")
L.append(f".type {NAME}_kernel,@function")
lab(f"{NAME}_kernel")
e("s_cmp_ge_u32 s2, 256")
e("s_cbranch_scc1 L_end")
e("s_load_dwordx16 s[16:31], s[0:1], 0")
e("s_load_dwordx16 s[32:47], s[0:1], 64")
e("v_and_b32 v1, 63, v0")
e("v_lshrrev_b32 v2, 6, v0")
e("s_and_b32 s4, s2, 7")
e("v_readfirstlane_b32 s3, v2")
e("s_lshr_b32 s5, s2, 3")
e("s_and_b32 s6, s5, 3")
e("s_lshr_b32 s7, s5, 2")
e("s_mov_b32 s9, 0")
e("s_mov_b32 s8, 0")
e("s_mov_b32 s93, 0")
e(f"s_mov_b64 {PM}, -1")
if DEBUG:
    e("s_lshl_b32 s92, s2, 8")
    e(f"s_add_u32 s92, s92, {TS:#x}")
e("s_lshr_b32 s48, s7, 1")
e("s_lshl_b32 s10, s4, 2")
e("s_add_u32 s48, s48, s10")
e("s_and_b32 s49, s7, 1")
e(f"v_mov_b32 v252, {EPOCH:#x}")
e("s_waitcnt lgkmcnt(0)")
e(f"global_load_dword v253, v252, {sp(WS)} sc1")
stamp(0)
diag(0, True)
diag(1)
if DEBUG:
    e("s_getreg_b32 s9, hwreg(HW_REG_XCC_ID)")
    stamp_s9(20)
    e("s_mov_b32 s9, 0")
e("s_cmp_eq_u32 s6, 1")
e("s_cbranch_scc1 L_roleB")
e("s_cmp_eq_u32 s6, 2")
e("s_cbranch_scc1 L_roleC")
e("s_cmp_eq_u32 s6, 3")
e("s_cbranch_scc1 L_roleA")


lab("L_roleD")
e("s_lshl_b32 s50, s7, 3")
e("s_add_u32 s50, s50, s4")
e("v_lshlrev_b32 v3, 1, v0")
e(f"global_load_ushort v8, v3, {sp(C)}")
e("s_lshr_b32 s51, s50, 4")
e("s_and_b32 s52, s50, 15")
e("v_lshrrev_b32 v10, 3, v1")
e("v_lshlrev_b32 v10, 1, v10")
e("s_lshl_b32 s10, s3, 4")
e("s_lshl_b32 s11, s51, 7")
e("s_add_u32 s10, s10, s11")
e("v_add_u32 v10, s10, v10")
e("v_lshlrev_b32 v49, 2, v10")
e("s_movk_i32 s10, 6144")
e("v_mul_lo_u32 v10, v10, s10")
e("v_and_b32 v3, 7, v1")
e("v_lshl_add_u32 v10, v3, 4, v10")
e("s_lshl_b32 s10, s52, 7")
e("v_add_u32 v10, s10, v10")
e(f"global_load_dwordx4 v[56:59], v10, {sp(WMOD)} nt")
sadd64(12, WMOD, 6144)
e("global_load_dwordx4 v[60:63], v10, s[12:13] nt")
gemv64m_setup(52)
e("s_waitcnt vmcnt(2)")
get_tags()
e("v_lshlrev_b32 v9, 16, v8")
e(f"v_mul_f32 v3, {fhex(-LOG2E)}, v9")
e("v_exp_f32 v3, v3")
nop(0)
e("v_add_f32 v3, 1.0, v3")
e("v_rcp_f32 v3, v3")
nop(0)
e("v_mul_f32 v9, v9, v3")
e("v_lshlrev_b32 v3, 2, v0")
e("ds_write_b32 v3, v9")
e("s_waitcnt vmcnt(0) lgkmcnt(0)")
e("s_barrier")
gemv64m(56, 0, 2048, 52, nl=2, va=49)
e("s_waitcnt lgkmcnt(0)")
e("s_barrier")
sk = uid("d")
e("s_cmp_lg_u32 s3, 0")
e(f"s_cbranch_scc1 {sk}")
sum64(2048, 24)
nop(1)
e("v_mov_b32_dpp v32, v24 quad_perm:[0,0,2,2] row_mask:0xf bank_mask:0xf")
e("v_mov_b32_dpp v33, v24 quad_perm:[1,1,3,3] row_mask:0xf bank_mask:0xf")
e(f"v_mov_b32 v34, {T0}")
e(f"v_mov_b32 v35, {T1}")
e("s_lshl_b32 s10, s51, 13")
e("s_lshl_b32 s11, s52, 9")
e("s_add_u32 s10, s10, s11")
e(f"s_add_u32 s10, s10, {HB1C:#x}")
e("v_lshl_add_u32 v3, v1, 3, s10")
set_exec(0x55555555, 0x55555555)
e(f"global_store_dwordx4 v3, v[32:35], {sp(WS)} sc1")
full_exec()
e("s_lshl_b32 s10, s50, 6")
e(f"s_add_u32 s10, s10, {PSA:#x}")
presignal(10, 0, 1, guard=False)
lab(sk)
stamp(1)
diag(2)
if DEBUG:
    e("s_waitcnt vmcnt(0)")
    stamp(9)
e("s_cmp_ge_u32 s50, 48")
e("s_cbranch_scc1 L_final")
e("s_cmp_ge_u32 s50, 32")
e("s_cbranch_scc1 L_ph5pre")
e("v_lshrrev_b32 v10, 3, v1")
e("v_lshlrev_b32 v10, 3, v10")
e("s_lshl_b32 s10, s3, 6")
e("v_add_u32 v10, s10, v10")
e("s_movk_i32 s10, 6144")
e("v_mul_lo_u32 v10, v10, s10")
e("v_and_b32 v3, 7, v1")
e("v_lshl_add_u32 v10, v3, 4, v10")
e("s_lshl_b32 s10, s50, 7")
e("s_add_u32 s10, s10, 2048")
e("v_add_u32 v10, s10, v10")
load_seg64(WMOD, 64, 6144)
e("s_waitcnt vmcnt(0)")
e("s_barrier")
gemv64m(64, 0, 2048, 52)
e("s_waitcnt lgkmcnt(0)")
e("s_barrier")
sk = uid("d")
e("s_cmp_lg_u32 s3, 0")
e(f"s_cbranch_scc1 {sk}")
sum64(2048, 24)
nop(1)
for k in range(4):
    e(f"v_mov_b32_dpp {v(28+k)}, v24 quad_perm:[{k},{k},{k},{k}] row_mask:0xf bank_mask:0xf")
e("v_cvt_pk_bf16_f32 v32, v28, v29")
e("v_cvt_pk_bf16_f32 v33, v30, v31")
e(f"v_mov_b32 v34, {T0}")
e(f"v_mov_b32 v35, {T1}")
e("s_lshl_b32 s10, s50, 8")
e("s_add_u32 s10, s10, 4096")
e("v_lshl_add_u32 v3, v1, 2, s10")
set_exec(0x11111111, 0x11111111)
e(f"global_store_dwordx4 v3, v[32:35], {sp(WS)} sc1")
full_exec()
lab(sk)
lab("L_ph5pre")
e("s_cmp_ge_u32 s50, 43")
e("s_cbranch_scc1 L_end")
e("s_barrier")

W1S, W2S, MODL, X1L, YL, HPL, HL = 0, 33280, 66560, 69632, 71680, 79872, 80896
e("v_lshrrev_b32 v2, 2, v1")
e("s_lshl_b32 s10, s3, 6")
e("v_add_u32 v2, s10, v2")
e("s_movk_i32 s10, 2752")
e("v_mul_lo_u32 v2, v2, s10")
e("v_and_b32 v3, 3, v1")
e("v_lshl_add_u32 v2, v3, 4, v2")
e("s_lshl_b32 s10, s50, 6")
e("v_add_u32 v2, s10, v2")
e(f"s_mul_i32 s11, s3, {4*1040}")
e(f"s_add_u32 s11, s11, {W1S}")
for i in range(4):
    sadd64(12, W1, i * 16 * 2752)
    e("s_mov_b32 m0, s11")
    nop(0)
    e("global_load_lds_dwordx4 v2, s[12:13] nt")
    e("s_add_u32 s11, s11, 1040")
e("s_lshl_b32 s10, s50, 5")
e("s_lshl_b32 s11, s3, 2")
e("s_add_u32 s10, s10, s11")
e("s_lshl_b32 s10, s10, 10")
e("v_lshlrev_b32 v2, 4, v1")
e("v_add_u32 v2, s10, v2")
e(f"s_mul_i32 s11, s3, {4*1040}")
e(f"s_add_u32 s11, s11, {W2S}")
for i in range(4):
    sadd64(12, W2, i * 1024)
    e("s_mov_b32 m0, s11")
    nop(0)
    e("global_load_lds_dwordx4 v2, s[12:13] nt")
    e("s_add_u32 s11, s11, 1040")
e("v_and_b32 v3, 31, v1")
e("s_lshl_b32 s10, s50, 6")
e("v_lshl_add_u32 v3, v3, 1, s10")
e(f"global_load_ushort v96, v3, {sp(B1)}")
col_of_lane(97, 3)
e("v_lshlrev_b32 v3, 1, v97")
e(f"global_load_ushort v98, v3, {sp(X)}")
e(f"s_mov_b32 s10, {HB1 + 4096 + 23*256}")
wave0_hint_barrier(10, 16)
skm = uid("d")
e("s_cmp_ge_u32 s3, 6")
e(f"s_cbranch_scc1 {skm}")
e("v_lshlrev_b32 v12, 4, v0")
e(f"v_add_u32 v12, {HB1 + 256*16}, v12")
lp = uid("g")
lab(lp)
e(f"global_load_dwordx4 v[16:19], v12, {sp(WS)} sc1")
e("s_waitcnt vmcnt(0)")
tagcheck([16], 40, lp)
e("v_lshlrev_b32 v3, 3, v0")
e(f"ds_write_b64 v3, v[16:17] offset:{MODL}" if MODL < 65536 else "")
if MODL >= 65536:
    L.pop()
    e(f"v_add_u32 v3, {MODL}, v3")
    e("ds_write_b64 v3, v[16:17]")
lab(skm)
e("s_waitcnt vmcnt(0) lgkmcnt(0)")
e("s_barrier")
e("v_lshrrev_b32 v2, 5, v1")
e("s_lshl_b32 s10, s3, 2")
e("v_add_u32 v2, s10, v2")
e("s_movk_i32 s10, 1040")
e("v_mul_lo_u32 v2, v2, s10")
e("v_bfe_u32 v3, v1, 4, 1")
e("v_lshl_add_u32 v2, v3, 9, v2")
e("v_bfe_u32 v3, v1, 2, 2")
e("v_lshl_add_u32 v2, v3, 6, v2")
e("v_and_b32 v3, 3, v1")
e("v_lshl_add_u32 v2, v3, 3, v2")
tr_frags(64, [2], 2, 2, 2 * 1040, 32, 256)
e("v_lshrrev_b32 v2, 4, v1")
e("v_lshlrev_b32 v2, 3, v2")
e("v_bfe_u32 v3, v1, 2, 2")
e("v_add_u32 v2, v2, v3")
e("v_mul_lo_u32 v2, v2, s10")
e("v_and_b32 v3, 3, v1")
e("v_lshl_add_u32 v2, v3, 3, v2")
e("s_lshl_b32 s11, s3, 7")
e(f"s_add_u32 s11, s11, {W2S}")
e("v_add_u32 v2, s11, v2")
tr_frags(80, [2], 1, 4, 0, 32, 4 * 1040)
e("v_lshlrev_b32 v3, 1, v97")
e(f"v_add_u32 v3, {MODL}, v3")
e("ds_read_u16 v99, v3")
e("v_lshlrev_b32 v3, 4, v1")
e(f"v_add_u32 v3, {MODL}, v3")
e("ds_read_b128 v[16:19], v3 offset:1024")
e("ds_read_b128 v[20:23], v3 offset:2048")
e("s_waitcnt lgkmcnt(0)")
for k in range(4):
    unpack2(16 + k, 100 + 2 * k)
    unpack2(20 + k, 108 + 2 * k)
for d in range(108, 116):
    e(f"v_add_f32 {v(d)}, 1.0, {v(d)}")
for d in (96, 98, 99):
    e(f"v_lshlrev_b32 {v(d)}, 16, {v(d)}")
e(f"s_mov_b32 s51, {HB4A:#x}")
sweep8_addr(52, 51)
e("v_lshlrev_b32 v53, 2, v97")
e(f"v_add_u32 v53, {X1L}, v53")
e("v_lshlrev_b32 v54, 5, v1")
e(f"v_add_u32 v54, {X1L}, v54")
e("s_lshl_b32 s10, s3, 10")
e(f"s_add_u32 s10, s10, {YL}")
e("v_lshl_add_u32 v55, v1, 4, s10")
e("v_lshrrev_b32 v3, 4, v1")
e("s_lshl_b32 s11, s3, 7")
e("s_add_u32 s10, s10, s11")
e("v_lshl_add_u32 v56, v3, 4, s10")
e("v_and_b32 v3, 15, v1")
e("s_lshl_b32 s10, s3, 7")
e(f"s_add_u32 s10, s10, {HPL}")
e("v_lshl_add_u32 v57, v3, 2, s10")
e("v_and_b32 v3, 31, v1")
e("v_lshlrev_b32 v58, 2, v3")
e(f"v_add_u32 v58, {HPL}, v58")
e("s_lshl_b32 s10, s3, 6")
e(f"s_add_u32 s10, s10, {HL}")
e("v_lshl_add_u32 v59, v3, 1, s10")
e("v_lshrrev_b32 v3, 4, v1")
e("v_lshl_add_u32 v60, v3, 4, s10")
e("v_and_b32 v3, 15, v1")
e("s_lshl_b32 s10, s50, 11")
e("s_lshl_b32 s11, s3, 8")
e("s_add_u32 s10, s10, s11")
e(f"s_add_u32 s10, s10, {HB6:#x}")
e("v_lshl_add_u32 v61, v3, 4, s10")
def _p():
    e("s_lshl_b32 s10, s50, 10")
    e(f"s_add_u32 s10, s10, {PS4:#x}")
    e("v_lshl_add_u32 v20, v1, 4, s10")
wave0_multi_barrier(_p, 0xffffffff, 0xffffffff, 16)
stamp(2)
sweep_pending(sweep8_list(52), 120)
stamp(8)
for i in range(8):
    u = 16 + 4 * i
    for (src, a) in ((u, 120), (u + 1, 122)):
        if i == 0:
            unpack2(src, a)
        else:
            e(f"v_lshlrev_b32 v124, 16, {v(src)}")
            e(f"v_and_b32 v125, 0xffff0000, {v(src)}")
            e(f"v_add_f32 {v(a)}, {v(a)}, v124")
            e(f"v_add_f32 {v(a+1)}, {v(a+1)}, v125")
red4_sg(120)
e("v_fma_f32 v120, v99, v120, v98")
e("v_cvt_pk_bf16_f32 v120, v120, v120")
e("v_lshlrev_b32 v120, 16, v120")
e("ds_write_b32 v53, v120")
e("s_waitcnt lgkmcnt(0)")
e("s_barrier")
e("ds_read_b128 v[16:19], v54")
e("ds_read_b128 v[20:23], v54 offset:16")
e("s_waitcnt lgkmcnt(0)")
def ln8():
    e("v_readfirstlane_b32 s10, v16")
    nop(1)
    for r in range(16, 24): e(f"v_subrev_f32 {v(r)}, s10, {v(r)}")
    e("v_add_f32 v40, v16, v17")
    e("v_mul_f32 v42, v16, v16")
    for r in range(18, 24): e(f"v_add_f32 v40, v40, {v(r)}")
    for r in range(17, 24): e(f"v_fmac_f32 v42, {v(r)}, {v(r)}")
    for r_ in (8, 4, 2, 1):
        nop(0)
        dpp("v_add_f32", 40, 40, 40, f"row_ror:{r_}")
        dpp("v_add_f32", 42, 42, 42, f"row_ror:{r_}")
    for sw in ("v_permlane16_swap_b32", "v_permlane32_swap_b32"):
        e("v_mov_b32 v41, v40")
        e("v_mov_b32 v43, v42")
        nop(0)
        e(f"{sw} v41, v40")
        e(f"{sw} v43, v42")
        e("v_add_f32 v40, v40, v41")
        e("v_add_f32 v42, v42, v43")
    e(f"v_mul_f32 v40, {fhex(1/512)}, v40")
    e(f"v_mul_f32 v42, {fhex(1/512)}, v42")
    e("v_fma_f32 v42, -v40, v40, v42")
    e("v_max_f32 v42, 0, v42")
    e(f"v_add_f32 v42, {fhex(1e-5)}, v42")
    e("v_rsq_f32 v42, v42")
    for r in range(16, 24): e(f"v_sub_f32 {v(r)}, {v(r)}, v40")
    for r in range(16, 24): e(f"v_mul_f32 {v(r)}, {v(r)}, v42")
ln8()
for i in range(8):
    e(f"v_fma_f32 {v(16+i)}, {v(16+i)}, {v(108+i)}, {v(100+i)}")
nop(0)
ln8()
for k in range(4):
    e(f"v_cvt_pk_bf16_f32 {v(24+k)}, {v(16+2*k)}, {v(17+2*k)}")
e("ds_write_b128 v55, v[24:27]")
e("s_waitcnt lgkmcnt(0)")
e("ds_read_b128 v[16:19], v56")
e("ds_read_b128 v[20:23], v56 offset:64")
e("s_waitcnt lgkmcnt(1)")
e("v_mfma_f32_16x16x32_bf16 v[24:27], v[16:19], v[64:67], 0")
e("v_mfma_f32_16x16x32_bf16 v[28:31], v[16:19], v[68:71], 0")
e("s_waitcnt lgkmcnt(0)")
e("v_mfma_f32_16x16x32_bf16 v[24:27], v[20:23], v[72:75], v[24:27]")
e("v_mfma_f32_16x16x32_bf16 v[28:31], v[20:23], v[76:79], v[28:31]")
nop(7)
set_exec(0xffff, 0)
e("ds_write_b32 v57, v24")
e("ds_write_b32 v57, v28 offset:64")
full_exec()
e("s_waitcnt lgkmcnt(0)")
e("s_barrier")
for w in range(8):
    e(f"ds_read_b32 {v(16+w)}, v58 offset:{128*w}")
e("s_waitcnt lgkmcnt(0)")
e("v_add_f32 v16, v16, v17"); e("v_add_f32 v18, v18, v19"); e("v_add_f32 v20, v20, v21"); e("v_add_f32 v22, v22, v23")
e("v_add_f32 v16, v16, v18"); e("v_add_f32 v20, v20, v22")
e("v_add3_u32 v24, 0, 0, 0") if False else None
e("v_add_f32 v24, v16, v20")
K1 = -2 * 0.7978845608028654 * LOG2E
e("v_add_f32 v24, v24, v96")
e("v_mul_f32 v20, v24, v24")
e(f"v_mul_f32 v20, {fhex(0.044715)}, v20")
e("v_fma_f32 v20, v20, v24, v24")
e(f"v_mul_f32 v20, {fhex(K1)}, v20")
e("v_exp_f32 v20, v20")
nop(0)
e("v_add_f32 v20, 1.0, v20")
e("v_rcp_f32 v20, v20")
nop(0)
e("v_mul_f32 v24, v24, v20")
e("v_cvt_pk_bf16_f32 v24, v24, v24")
e("ds_write_b16 v59, v24")
e("s_waitcnt lgkmcnt(0)")
e("ds_read_b128 v[16:19], v60")
e("s_waitcnt lgkmcnt(0)")
for t in range(4):
    e(f"v_mfma_f32_16x16x32_bf16 {v(24+4*t,4)}, v[16:19], {v(80+4*t,4)}, 0")
nop(7)
pub_tiles(24, 61)
stamp(3)
diag(7)
e("s_branch L_end")

lab("L_final")
e("s_barrier")
e("s_sub_u32 s52, s50, 48")
e("v_lshrrev_b32 v3, 3, v0")
e("v_lshlrev_b32 v72, 11, v3")
e("v_and_b32 v2, 7, v0")
e("v_lshl_add_u32 v72, v2, 4, v72")
e("s_lshl_b32 s10, s52, 7")
e("v_add_u32 v72, s10, v72")
e("v_cmp_gt_u32 vcc, 32, v3")
e("s_mov_b64 s[54:55], vcc")
e("v_cmp_gt_u32 vcc, 43, v3")
e("s_mov_b64 s[56:57], vcc")
bitswap_rho(48, 3)
e("v_lshl_add_u32 v48, v2, 2, v48")
e("s_lshl_b32 s10, s3, 7")
e("v_lshl_add_u32 v48, v48, 2, s10")
e("v_and_b32 v3, 3, v1")
e("v_lshlrev_b32 v70, 4, v3")
e("v_bfe_u32 v3, v1, 2, 3")
e("v_add_u32 v70, v70, v3")
e("s_lshr_b32 s10, s52, 1")
e("s_lshl_b32 s10, s10, 6")
e("s_and_b32 s11, s52, 1")
e("s_lshl_b32 s11, s11, 3")
e("s_add_u32 s10, s10, s11")
e("v_add_u32 v70, s10, v70")
e("v_lshlrev_b32 v71, 1, v70")
e(f"global_load_ushort v64, v71, {sp(X)}")
e(f"global_load_ushort v65, v71, {sp(B2)}")
e("s_waitcnt vmcnt(0)")
get_tags()
skr = uid("d")
e("s_cmp_lg_u32 s3, 0")
e(f"s_cbranch_scc1 {skr}")
e(f"s_mov_b32 s10, {HB1 + 4096 + 31*256}")
hint_wait(10, 16)
e("v_lshrrev_b32 v3, 2, v70")
e("v_lshlrev_b32 v3, 4, v3")
e(f"v_add_u32 v10, {HB1 + 256*16}, v3")
e(f"v_add_u32 v11, {HB1 + 640*16}, v3")
lp = uid("g")
lab(lp)
e(f"global_load_dwordx4 v[16:19], v10, {sp(WS)} sc1")
e(f"global_load_dwordx4 v[20:23], v11, {sp(WS)} sc1")
e("s_waitcnt vmcnt(0)")
tagcheck([16, 20], 40, lp)
e("v_and_b32 v3, 2, v70")
e("v_cmp_ne_u32 vcc, 0, v3")
nop(1)
e("v_cndmask_b32 v66, v16, v17, vcc")
e("v_cndmask_b32 v67, v20, v21, vcc")
e("v_and_b32 v3, 1, v70")
e("v_lshlrev_b32 v3, 4, v3")
e("v_lshrrev_b32 v66, v3, v66")
e("v_lshrrev_b32 v67, v3, v67")
for d in (64, 65, 66, 67):
    e(f"v_lshlrev_b32 {v(d)}, 16, {v(d)}")
lab(skr)
def fin_gather(hb, mask, ldsoff):
    e(f"v_add_u32 v10, {hb:#x}, v72")
    e("v_mov_b32 v16, 0"); e("v_mov_b32 v17, 0"); e(f"v_mov_b32 v18, {T0}"); e(f"v_mov_b32 v19, {T1}")
    lp = uid("g"); sk = uid("r")
    e(f"s_cmp_eq_u64 {mask}, 0")
    e(f"s_cbranch_scc1 {sk}")
    lab(lp)
    e(f"s_mov_b64 exec, {mask}")
    e(f"global_load_dwordx4 v[16:19], v10, {sp(WS)} sc1")
    full_exec()
    e("s_waitcnt vmcnt(0)")
    tagcheck([16], 40, lp)
    lab(sk)
    unpack2(16, 20); unpack2(17, 22)
    red4_sg(20)
    nop(1)
    dpp("v_add_f32", 20, 20, 20, "row_ror:8")
    set_exec(0x00ff00ff, 0x00ff00ff)
    e(f"ds_write_b32 v48, v20 offset:{ldsoff}")
    full_exec()
    e("s_waitcnt lgkmcnt(0)")
    e("s_barrier")
    e("s_cmp_lg_u32 s3, 0")
    skw = uid("rw")
    e(f"s_cbranch_scc1 {skw}")
    e("v_and_b32 v3, 31, v1")
    e("v_lshlrev_b32 v3, 2, v3")
    for w in range(8):
        e(f"ds_read_b32 {v(24+w)}, v3 offset:{ldsoff+128*w}")
    e("s_waitcnt lgkmcnt(0)")
    e("v_add_f32 v24, v24, v25"); e("v_add_f32 v26, v26, v27"); e("v_add_f32 v28, v28, v29"); e("v_add_f32 v30, v30, v31")
    e("v_add_f32 v24, v24, v26"); e("v_add_f32 v28, v28, v30"); e("v_add_f32 v16, v24, v28")
    return skw
def _f():
    e("s_add_u32 s10, s52, 43")
    e("s_lshl_b32 s10, s10, 10")
    e(f"s_add_u32 s10, s10, {PS4:#x}")
    e("v_lshl_add_u32 v20, v1, 4, s10")
wave0_multi_barrier(_f, 0xffffffff, 0xffffffff, 16)
skw = fin_gather(HB4A, "s[54:55]", 0)
e("v_fma_f32 v68, v66, v16, v64")
e("v_cvt_pk_bf16_f32 v68, v68, v68")
e("v_lshlrev_b32 v68, 16, v68")
lab(skw)
stamp(3)
skw = fin_gather(HB6, "s[56:57]", 1024)
e("v_add_f32 v16, v16, v65")
e("v_fma_f32 v16, v67, v16, v68")
e("v_cvt_pk_bf16_f32 v16, v16, v16")
set_exec(0xffffffff, 0)
e(f"global_store_short v71, v16, {sp(OUT)}")
e("s_cmp_lg_u32 s52, 0")
e(f"s_cbranch_scc1 {skw}")
set_exec(1, 0)
e(f"v_mov_b32 v3, {EPOCH:#x}")
e(f"v_mov_b32 v24, {T0}")
e(f"global_store_dword v3, v24, {sp(WS)} sc1")
lab(skw)
full_exec()
stamp(5)
diag(8)
e("s_branch L_end")

lab("L_roleB")
e("s_lshl_b32 s50, s48, 1")
e("s_add_u32 s50, s50, s49")
e("s_lshl_b32 s50, s50, 11")
e(f"s_add_u32 s50, s50, {HB2:#x}")
e("s_cmp_ge_u32 s3, 4")
e("s_cbranch_scc1 L_Bload")
e("v_lshlrev_b32 v2, 4, v1")
e(f"global_load_dwordx4 v[128:131], v2, {sp(X)}")
e("v_lshlrev_b32 v2, 2, v0")
e(f"global_load_dword v132, v2, {sp(X)}")
e("s_waitcnt vmcnt(0)")
get_tags()
for k in range(4): unpack2(128 + k, 16 + 2 * k)
unpack2(132, 134)
e("v_add_f32 v40, v16, v17")
for r in range(18, 24): e(f"v_add_f32 v40, v40, {v(r)}")
wave_red("v_add_f32", 40, 41)
e(f"v_mul_f32 v40, {fhex(1/512)}, v40")
for r in list(range(16, 24)) + [134, 135]: e(f"v_sub_f32 {v(r)}, {v(r)}, v40")
e("v_mul_f32 v42, v16, v16")
for r in range(17, 24): e(f"v_fmac_f32 v42, {v(r)}, {v(r)}")
wave_red("v_add_f32", 42, 41)
e(f"v_mov_b32 v41, {fhex(1e-5)}")
e(f"v_fmac_f32 v41, {fhex(1/512)}, v42")
e("v_rsq_f32 v41, v41")
nop(0)
for r in (134, 135): e(f"v_mul_f32 {v(r)}, {v(r)}, v41")
stamp(5)
e("s_lshl_b32 s10, s48, 11")
e("s_lshl_b32 s11, s49, 10")
e("s_add_u32 s10, s10, s11")
e(f"s_add_u32 s10, s10, {PS1:#x}")
stamp(3)
e("v_lshlrev_b32 v3, 4, v0")
e(f"v_add_u32 v3, {HB1C:#x}, v3")
for k in range(4):
    sadd64(54 + 2 * k, WS, k * 8192)
    sadd64(62 + 2 * k, WS, k * 8192 + 4096)
_ld = []
for k in range(4):
    _ld.append((f"global_load_dwordx4 {v(16+4*k,4)}, v3, s[{54+2*k}:{55+2*k}] sc1", 16 + 4 * k))
    _ld.append((f"global_load_dwordx4 {v(32+4*k,4)}, v3, s[{62+2*k}:{63+2*k}] sc1", 32 + 4 * k))
sweep_pending(_ld, 136)
stamp(6)
for base in (16, 32):
    for o in (0, 1):
        e(f"v_add_f32 {v(base+o)}, {v(base+o)}, {v(base+4+o)}")
        e(f"v_add_f32 {v(base+8+o)}, {v(base+8+o)}, {v(base+12+o)}")
        e(f"v_add_f32 {v(base+o)}, {v(base+o)}, {v(base+8+o)}")
    e(f"v_cvt_pk_bf16_f32 {v(base)}, {v(base)}, {v(base+1)}")
    unpack2(base, base + 2)
for o in (0, 1):
    e(f"v_fma_f32 {v(34+o)}, {v(134+o)}, {v(34+o)}, {v(134+o)}")
    e(f"v_add_f32 {v(34+o)}, {v(34+o)}, {v(18+o)}")
e("v_lshlrev_b32 v3, 3, v0")
e("ds_write_b64 v3, v[34:35]")
stamp(4)
e("s_waitcnt lgkmcnt(0)")
e("s_barrier")
stamp(1)
e("s_barrier")
lab("L_B2")
e("v_lshlrev_b32 v3, 2, v1")
for w in range(4):
    e(f"ds_read_b32 {v(16+w)}, v3 offset:{2048+256*w}")
WK = 8192
e("s_lshl_b32 s10, s3, 7")
e("v_lshl_add_u32 v56, v1, 1, s10")
e("v_lshrrev_b32 v3, 4, v1")
e("v_lshl_add_u32 v57, v3, 4, s10")
e("s_lshl_b32 s10, s3, 8")
e("s_add_u32 s10, s10, s50")
e("v_lshl_add_u32 v58, v3, 4, s10")
e("v_bfe_u32 v3, v1, 3, 1")
e("s_lshl_b32 s10, s3, 3")
e("v_add_u32 v3, s10, v3")
e("s_movk_i32 s10, 1040")
e("v_mul_lo_u32 v59, v3, s10")
e("v_and_b32 v3, 7, v1")
e("v_lshl_add_u32 v59, v3, 7, v59")
e("v_lshrrev_b32 v11, 4, v1")
e("v_xor_b32 v3, v3, v11")
e(f"v_add_u32 v59, {WK}, v59")
e("v_xor_b32 v11, 4, v3")
e("v_lshl_add_u32 v60, v11, 4, v59")
e("v_lshl_add_u32 v59, v3, 4, v59")
e("s_waitcnt lgkmcnt(0)")
e("v_add_f32 v16, v16, v17"); e("v_add_f32 v18, v18, v19")
e("v_add_f32 v24, v16, v18")
e("v_cvt_pk_bf16_f32 v24, v24, v24")
e("ds_write_b16 v56, v24 offset:4096")
e("s_lshr_b32 s10, s48, 4")
e("s_lshl_b32 s10, s10, 9")
e("s_and_b32 s11, s48, 15")
e("s_lshl_b32 s11, s11, 5")
e("s_add_u32 s10, s10, s11")
e("s_lshl_b32 s11, s49, 4")
e("s_add_u32 s10, s10, s11")
e(f"s_add_u32 s10, s10, {PSQ:#x}")
presignal(10, 10, 32)
stamp(2)
diag(3)
e("s_waitcnt lgkmcnt(0)")
e("ds_read_b128 v[16:19], v57 offset:4096")
e("ds_read_b128 v[20:23], v57 offset:4160")
e("s_cmp_lt_u32 s3, 4")
sk = uid("b")
e(f"s_cbranch_scc1 {sk}")
e("s_waitcnt vmcnt(0)")
lab(sk)
e("s_barrier")
stamp(7)
for rt in range(4):
    e(f"ds_read_b128 {v(96+8*rt,4)}, v59 offset:{2080*rt}")
    e(f"ds_read_b128 {v(100+8*rt,4)}, v60 offset:{2080*rt}")
for rt in range(4):
    e(f"s_waitcnt lgkmcnt({6-2*rt})")
    e(f"v_mfma_f32_16x16x32_bf16 {v(24+4*rt,4)}, {v(96+8*rt,4)}, v[16:19], 0")
    e(f"v_mfma_f32_16x16x32_bf16 {v(24+4*rt,4)}, {v(100+8*rt,4)}, v[20:23], {v(24+4*rt,4)}")
nop(7)
set_exec(0x00010001, 0x00010001)
for rt in range(4):
    d = 64 + 4 * rt
    e(f"v_cvt_pk_bf16_f32 {v(d)}, {v(24+4*rt)}, {v(25+4*rt)}")
    e(f"v_cvt_pk_bf16_f32 {v(d+1)}, {v(26+4*rt)}, {v(27+4*rt)}")
    e(f"v_mov_b32 {v(d+2)}, {T0}")
    e(f"v_mov_b32 {v(d+3)}, {T1}")
    e(f"global_store_dwordx4 v58, {v(d,4)}, {sp(WS)} offset:{64*rt} sc1")
full_exec()
stamp(9)
diag(4)
e("s_branch L_end")
lab("L_Bload")
e("s_sub_u32 s51, s3, 4")
e("v_lshrrev_b32 v10, 3, v1")
e("v_lshlrev_b32 v10, 17, v10")
e("s_lshl_b32 s10, s51, 20")
e("s_lshl_b32 s11, s48, 8")
e("s_add_u32 s10, s10, s11")
e("s_lshl_b32 s11, s49, 7")
e("s_add_u32 s10, s10, s11")
e("v_add_u32 v10, s10, v10")
e("v_and_b32 v3, 7, v1")
e("v_lshl_add_u32 v10, v3, 4, v10")
for i in range(16):
    sadd64(12, WQ, i * 8192)
    e(f"global_load_dwordx4 {v(64+4*i,4)}, v10, s[12:13] nt")
e("v_lshrrev_b32 v3, 3, v1")
e("v_lshlrev_b32 v10, 13, v3")
e("v_and_b32 v11, 7, v1")
e("v_xor_b32 v11, v11, v3")
e("v_lshl_add_u32 v10, v11, 4, v10")
e("s_lshl_b32 s10, s51, 20")
e("s_lshl_b32 s11, s48, 8")
e("s_add_u32 s10, s10, s11")
e("s_lshl_b32 s11, s49, 7")
e("s_add_u32 s10, s10, s11")
e("v_add_u32 v10, s10, v10")
e(f"s_mul_i32 s11, s51, {16*1040}")
e("s_add_u32 s11, s11, 8192")
masks_setup(52)
for i in range(16):
    sadd64(12, WUK, i * 8 * 8192)
    e("s_mov_b32 m0, s11")
    e(f"s_waitcnt vmcnt({BDEPTH})")
    e("global_load_lds_dwordx4 v10, s[12:13] nt")
    e("s_add_u32 s11, s11, 1040")
e("v_lshrrev_b32 v2, 3, v1")
e("v_lshlrev_b32 v2, 6, v2")
e("s_lshl_b32 s10, s51, 9")
e("v_add_u32 v2, s10, v2")
e("v_and_b32 v48, 7, v1")
e("v_lshlrev_b32 v48, 5, v48")
e("v_and_b32 v3, 16, v1")
e("s_lshl_b32 s10, s51, 8")
e("v_add3_u32 v48, v48, v3, s10")
e("s_waitcnt vmcnt(16)")
get_tags()
e("s_barrier")
for k in range(4):
    e(f"ds_read_b128 {v(136+4*k,4)}, v2 offset:{16*k}")
e("s_waitcnt lgkmcnt(0)")
for i in range(16):
    e(f"v_cvt_pk_bf16_f32 {v(136+i)}, {v(136+i)}, {v(136+i)}")
for i in range(16):
    a_ = 24 + 4 * (i % 3)
    for r in range(4):
        e(f"v_and_b32 {v(a_+r)}, {v(136+i)}, {v(52+r)}")
    if i > 0:
        pa = 24 + 4 * ((i - 1) % 3)
        c = "0" if i == 1 else "v[40:43]"
        e(f"v_mfma_f32_16x16x32_bf16 v[40:43], {v(pa,4)}, {v(64+4*(i-1),4)}, {c}")
nop(1)
e(f"v_mfma_f32_16x16x32_bf16 v[40:43], {v(24+4*(15%3),4)}, {v(64+60,4)}, v[40:43]")
nop(7)
for r in range(4):
    e(f"v_mov_b32 {v(44+r)}, {v(40+r)}")
nop(0)
for r in range(4):
    e(f"v_permlane32_swap_b32 {v(40+r)}, {v(44+r)}")
nop(0)
for r in range(4):
    dpp("v_add_f32", 40 + r, 44 + r, 40 + r, "row_ror:8")
set_exec(0x00ff00ff, 0)
e("ds_write_b128 v48, v[40:43] offset:2048")
full_exec()
e("s_waitcnt lgkmcnt(0)")
e("s_barrier")
e("s_branch L_B2")

CK_ROW = 1040
QA = 128 * CK_ROW
PB = QA + 16 * CK_ROW
MX = PB + 16 * 272
lab("L_roleC")
e("v_lshrrev_b32 v2, 4, v1")
e("v_lshlrev_b32 v50, 18, v2")
e("v_and_b32 v3, 15, v1")
e("v_lshl_add_u32 v50, v3, 4, v50")
e("s_lshl_b32 s10, s49, 20")
e("s_lshl_b32 s11, s48, 11")
e("s_add_u32 s10, s10, s11")
e("s_lshl_b32 s11, s3, 8")
e("s_add_u32 s10, s10, s11")
e(f"s_add_u32 s10, s10, {HB3:#x}")
e("v_add_u32 v50, s10, v50")
for r in range(4):
    sadd64(54 + 2 * r, WS, r * 65536)
e("v_lshlrev_b32 v51, 9, v1")
e("s_lshl_b32 s10, s49, 13")
e("s_lshl_b32 s11, s48, 4")
e("s_add_u32 s10, s10, s11")
e(f"s_add_u32 s10, s10, {HB3ML:#x}")
e("v_add_u32 v51, s10, v51")
e("v_and_b32 v2, 127, v0")
e("v_lshlrev_b32 v52, 4, v2")
e("s_lshr_b32 s10, s3, 1")
e("s_lshl_b32 s11, s49, 4")
e("s_add_u32 s11, s11, s10")
e("s_lshl_b32 s11, s11, 12")
e(f"s_add_u32 s11, s11, {HB2:#x}")
e("v_add_u32 v52, s11, v52")
e(f"s_mul_i32 s10, s10, {CK_ROW}")
e("v_lshlrev_b32 v53, 3, v2")
e("v_add_u32 v53, s10, v53")
e(f"v_add_u32 v53, {QA}, v53")
for i in range(4):
    sadd64(62 + 2 * i, WS, i * 16384)
e("v_and_b32 v2, 15, v1")
e(f"s_movk_i32 s10, {CK_ROW}")
e("v_mul_lo_u32 v49, v2, s10")
e("v_lshrrev_b32 v3, 4, v1")
e("v_lshl_add_u32 v49, v3, 4, v49")
e(f"v_add_u32 v49, {QA}, v49")
e("v_lshlrev_b32 v54, 5, v2")
e(f"v_add_u32 v54, {MX}, v54")
e("s_lshl_b32 s10, s3, 2")
e("v_add_u32 v58, s10, v54")
e("s_movk_i32 s10, 272")
e("v_mul_lo_u32 v56, v2, s10")
e(f"v_add_u32 v56, {PB}, v56")
e("v_lshl_add_u32 v55, v3, 3, v56")
e("s_lshl_b32 s10, s3, 5")
e("v_add_u32 v55, s10, v55")
e("v_lshl_add_u32 v56, v3, 4, v56")
e("v_lshlrev_b32 v2, 4, v1")
e("s_lshl_b32 s10, s48, 17")
e("s_lshl_b32 s11, s3, 14")
e("s_add_u32 s10, s10, s11")
e(f"s_add_u32 s12, s{CKV}, s10")
e(f"s_addc_u32 s13, s{CKV+1}, 0")
e(f"s_mul_i32 s11, s3, {16*CK_ROW}")
for i in range(16):
    e("s_mov_b32 m0, s11")
    e("s_nop 0")
    e("global_load_lds_dwordx4 v2, s[12:13] nt")
    if i < 15:
        e("s_add_u32 s12, s12, 1024")
        e("s_addc_u32 s13, s13, 0")
        e(f"s_add_u32 s11, s11, {CK_ROW}")
e("s_waitcnt vmcnt(0)")
get_tags()
e("s_barrier")
stamp(4)
diag(9)
e("v_and_b32 v2, 15, v1")
e("s_lshl_b32 s10, s3, 4")
e("v_add_u32 v2, s10, v2")
e(f"s_movk_i32 s10, {CK_ROW}")
e("v_mul_lo_u32 v2, v2, s10")
e("v_lshrrev_b32 v3, 4, v1")
e("v_lshl_add_u32 v2, v3, 4, v2")
for j in range(16):
    e(f"ds_read_b128 {v(64+4*j,4)}, v2 offset:{64*j}")
e("v_lshrrev_b32 v2, 4, v1")
e("v_lshlrev_b32 v2, 3, v2")
e("v_and_b32 v3, 15, v1")
e("v_lshrrev_b32 v3, 2, v3")
e("v_add_u32 v2, v2, v3")
e("v_mul_lo_u32 v2, v2, s10")
e("v_and_b32 v3, 3, v1")
e("v_lshl_add_u32 v2, v3, 3, v2")
e("s_lshl_b32 s11, s3, 7")
e("v_add_u32 v2, s11, v2")
e(f"v_add_u32 v3, {64*CK_ROW}, v2")
for j in range(4):
    for jj in range(4):
        base = 2 if j < 2 else 3
        off = (j % 2) * 32 * CK_ROW + jj * 32
        d = 128 + (j * 4 + jj) * 4
        e(f"ds_read_b64_tr_b16 {v(d,2)}, {v(base)} offset:{off}")
        e(f"ds_read_b64_tr_b16 {v(d+2,2)}, {v(base)} offset:{off+4*CK_ROW}")
e("s_waitcnt lgkmcnt(0)")
def _c():
    e("s_lshl_b32 s10, s48, 10")
    e("s_lshl_b32 s11, s49, 9")
    e("s_add_u32 s10, s10, s11")
    e(f"s_add_u32 s10, s10, {PSQ:#x}")
    e("v_lshl_add_u32 v20, v1, 4, s10")
wave0_multi_barrier(_c, 0xffffffff, 0, 16)
stamp(1)
_ld = []
for i in range(4):
    _ld.append((f"global_load_dwordx4 {v(16+8*i,4)}, v52, s[{62+2*i}:{63+2*i}] sc1", 16 + 8 * i))
    _ld.append((f"global_load_dwordx4 {v(20+8*i,4)}, v52, s[{62+2*i}:{63+2*i}] offset:2048 sc1", 20 + 8 * i))
sweep_pending(_ld, 192)
stamp(3)
for i in range(4):
    a_, b_ = 16 + 8 * i, 20 + 8 * i
    for k in (0, 1):
        e(f"v_lshlrev_b32 v2, 16, {v(a_+k)}")
        e(f"v_lshlrev_b32 v3, 16, {v(b_+k)}")
        e("v_add_f32 v2, v2, v3")
        e(f"v_and_b32 v3, 0xffff0000, {v(a_+k)}")
        e(f"v_and_b32 v57, 0xffff0000, {v(b_+k)}")
        e("v_add_f32 v3, v3, v57")
        e(f"v_cvt_pk_bf16_f32 {v(a_+k)}, v2, v3")
    e(f"ds_write_b64 v53, {v(a_,2)} offset:{i*4*CK_ROW}")
e("s_waitcnt lgkmcnt(0)")
stamp(5)
e("s_barrier")
stamp(6)
for j in range(16):
    e(f"ds_read_b128 {v(192+4*j,4)}, v49 offset:{64*j}")
for j in range(16):
    e(f"s_waitcnt lgkmcnt({15-j})")
    c = "0" if j == 0 else "v[16:19]"
    e(f"v_mfma_f32_16x16x32_bf16 v[16:19], {v(64+4*j,4)}, {v(192+4*j,4)}, {c}")
nop(7)
SCL = 128 ** -0.5 * LOG2E
for r in range(4): e(f"v_mul_f32 {v(16+r)}, {fhex(SCL)}, {v(16+r)}")
e("v_max_f32 v20, v16, v17")
e("v_max3_f32 v20, v20, v18, v19")
e("v_mov_b32 v21, v20")
nop(1)
e("v_permlane16_swap_b32 v21, v20")
e("v_max_f32 v20, v20, v21")
e("v_mov_b32 v21, v20")
nop(1)
e("v_permlane32_swap_b32 v21, v20")
e("v_max_f32 v20, v20, v21")
set_exec(0xffff, 0)
e("ds_write_b32 v58, v20")
full_exec()
e("s_waitcnt lgkmcnt(0)")
stamp(7)
e("s_barrier")
stamp(8)
e("s_lshl_b32 s10, s49, 13")
e("s_lshl_b32 s11, s48, 4")
e("s_add_u32 s10, s10, s11")
e(f"s_add_u32 s10, s10, {PS3:#x}")
presignal(10, 9, 16)
e("ds_read_b128 v[24:27], v54")
e("ds_read_b128 v[28:31], v54 offset:16")
e("s_waitcnt lgkmcnt(0)")
e("v_max3_f32 v20, v24, v25, v26")
e("v_max3_f32 v20, v20, v27, v28")
e("v_max3_f32 v20, v20, v29, v30")
e("v_max_f32 v20, v20, v31")
for r in range(4):
    e(f"v_sub_f32 {v(16+r)}, {v(16+r)}, v20")
for r in range(4):
    e(f"v_exp_f32 {v(16+r)}, {v(16+r)}")
nop(0)
e("v_cvt_pk_bf16_f32 v22, v16, v17")
e("v_cvt_pk_bf16_f32 v23, v18, v19")
e("ds_write_b64 v55, v[22:23]")
e("v_add_f32 v16, v16, v17")
e("v_add_f32 v18, v18, v19")
e("v_add_f32 v16, v16, v18")
e("v_mov_b32 v21, v16")
nop(1)
e("v_permlane16_swap_b32 v21, v16")
e("v_add_f32 v16, v16, v21")
e("v_mov_b32 v21, v16")
nop(1)
e("v_permlane32_swap_b32 v21, v16")
e("v_add_f32 v16, v16, v21")
set_exec(0xffff, 0)
e("ds_write_b32 v58, v16 offset:512")
full_exec()
e("s_waitcnt lgkmcnt(0)")
stamp(9)
e("s_barrier")
stamp(10)
for j in range(4):
    e(f"ds_read_b128 {v(192+4*j,4)}, v56 offset:{64*j}")
e("ds_read_b128 v[40:43], v54 offset:512")
e("ds_read_b128 v[44:47], v54 offset:528")
for j in range(4):
    e(f"s_waitcnt lgkmcnt({5-j})")
    for jj in range(4):
        c = "0" if j == 0 else v(24 + 4 * jj, 4)
        e(f"v_mfma_f32_16x16x32_bf16 {v(24+4*jj,4)}, {v(192+4*j,4)}, {v(128+(j*4+jj)*4,4)}, {c}")
e(f"v_mov_b32 v22, {T0}")
e(f"v_mov_b32 v23, {T1}")
e("s_waitcnt lgkmcnt(0)")
e("v_add_f32 v40, v40, v41"); e("v_add_f32 v42, v42, v43"); e("v_add_f32 v44, v44, v45"); e("v_add_f32 v46, v46, v47")
e("v_add_f32 v40, v40, v42"); e("v_add_f32 v44, v44, v46"); e("v_add_f32 v21, v40, v44")
nop(3)
pub_exec()
for r in range(4):
    d = 208 + 4 * r
    e(f"v_cvt_pk_bf16_f32 {v(d)}, {v(24+r)}, {v(28+r)}")
    e(f"v_cvt_pk_bf16_f32 {v(d+1)}, {v(32+r)}, {v(36+r)}")
    e(f"v_mov_b32 {v(d+2)}, {T0}")
    e(f"v_mov_b32 {v(d+3)}, {T1}")
    e(f"global_store_dwordx4 v50, {v(d,4)}, s[{54+2*r}:{55+2*r}] sc1")
sk = uid("c")
e("s_cmp_lg_u32 s3, 0")
e(f"s_cbranch_scc1 {sk}")
pub_exec(0xffff, 0)
e(f"global_store_dwordx4 v51, v[20:23], {sp(WS)} sc1")
lab(sk)
full_exec()
stamp(2)
diag(5)
e("s_branch L_end")


OB, CB = 133120, 134144
lab("L_roleA")
e("s_lshl_b32 s51, s48, 16")
e(f"s_add_u32 s51, s51, {HB3:#x}")
sweep8_addr(52, 51)
e("v_and_b32 v3, 31, v1")
e("s_lshl_b32 s10, s48, 9")
e(f"s_add_u32 s10, s10, {HB3ML:#x}")
e("v_lshl_add_u32 v54, v3, 4, s10")
e("v_lshrrev_b32 v55, 4, v1")
e("v_lshlrev_b32 v55, 5, v55")
col_of_lane(56, 3)
e("v_lshlrev_b32 v56, 1, v56")
e(f"v_add_u32 v56, {OB}, v56")
e("v_lshrrev_b32 v3, 4, v1")
e("v_lshlrev_b32 v57, 4, v3")
e(f"v_add_u32 v57, {OB}, v57")
e("v_and_b32 v3, 15, v1")
e("s_lshl_b32 s10, s3, 5")
e(f"s_add_u32 s10, s10, {CB}")
e("v_lshl_add_u32 v58, v3, 1, s10")
e("s_lshl_b32 s10, s48, 11")
e("s_lshl_b32 s11, s49, 10")
e("s_add_u32 s10, s10, s11")
e(f"s_add_u32 s10, s10, {HB4A:#x}")
e("v_lshl_add_u32 v59, v1, 4, s10")
e("s_lshl_b32 s10, s3, 6")
e(f"s_add_u32 s10, s10, {CB+256}")
e("v_lshl_add_u32 v60, v3, 2, s10")
e("v_lshrrev_b32 v61, 4, v1")
e("v_lshlrev_b32 v61, 7, v61")
e("v_lshl_add_u32 v61, v3, 2, v61")
e(f"v_add_u32 v61, {CB+256}, v61")
e("s_waitcnt vmcnt(0)")
get_tags()
e("s_lshl_b32 s10, s48, 7")
e("s_lshl_b32 s11, s49, 6")
e("s_add_u32 s10, s10, s11")
e(f"s_add_u32 s10, s10, {PSA:#x}")
wave0_hint_barrier(10, 16)
e("v_lshrrev_b32 v2, 4, v1")
e("v_lshlrev_b32 v2, 13, v2")
e("v_and_b32 v3, 15, v1")
e("v_lshl_add_u32 v2, v3, 4, v2")
e("s_lshl_b32 s10, s3, 19")
e("s_lshl_b32 s11, s48, 8")
e("s_add_u32 s10, s10, s11")
e("v_add_u32 v2, s10, v2")
e(f"s_mul_i32 s11, s3, {16*1040}")
e(f"s_mov_b32 s12, s{WUV}")
e(f"s_mov_b32 s13, s{WUV+1}")
for i in range(16):
    e("s_mov_b32 m0, s11")
    nop(0)
    e("global_load_lds_dwordx4 v2, s[12:13] nt")
    if i < 15:
        e("s_add_u32 s12, s12, 32768")
        e("s_addc_u32 s13, s13, 0")
        e("s_add_u32 s11, s11, 1040")
e("v_lshrrev_b32 v2, 4, v1")
e("s_movk_i32 s10, 2080")
e("v_mul_lo_u32 v2, v2, s10")
e("v_bfe_u32 v3, v1, 2, 2")
e("v_lshl_add_u32 v2, v3, 8, v2")
e("v_and_b32 v3, 3, v1")
e("v_lshl_add_u32 v2, v3, 3, v2")
e("s_lshl_b32 s10, s3, 5")
e("v_add_u32 v2, s10, v2")
e(f"v_add_u32 v3, {8*8320}, v2")
e("s_waitcnt vmcnt(0)")
e("s_barrier")
tr_frags(64, [2, 3], 16, 1, 8320, 0, 1040, jsplit=8)
e("s_waitcnt lgkmcnt(0)")
e("s_barrier")
e("v_lshrrev_b32 v2, 5, v1")
e("v_lshlrev_b32 v2, 10, v2")
e("v_and_b32 v3, 31, v1")
e("v_lshl_add_u32 v2, v3, 4, v2")
e("s_lshl_b32 s10, s48, 17")
e("s_lshl_b32 s11, s3, 14")
e("s_add_u32 s10, s10, s11")
e("s_lshl_b32 s11, s49, 9")
e("s_add_u32 s10, s10, s11")
e(f"s_add_u32 s12, s{WO}, s10")
e(f"s_addc_u32 s13, s{WO+1}, 0")
e(f"s_mul_i32 s11, s3, {8*1040}")
for i in range(8):
    e("s_mov_b32 m0, s11")
    nop(0)
    e("global_load_lds_dwordx4 v2, s[12:13] nt")
    if i < 7:
        e("s_add_u32 s12, s12, 2048")
        e("s_addc_u32 s13, s13, 0")
        e("s_add_u32 s11, s11, 1040")
e("v_lshrrev_b32 v2, 4, v1")
e("v_lshlrev_b32 v2, 2, v2")
e("v_bfe_u32 v3, v1, 3, 1")
e("v_add_u32 v2, v2, v3")
e("s_movk_i32 s10, 1040")
e("v_mul_lo_u32 v2, v2, s10")
e("v_bfe_u32 v3, v1, 2, 1")
e("v_lshl_add_u32 v2, v3, 9, v2")
e("v_and_b32 v3, 3, v1")
e("v_lshl_add_u32 v2, v3, 3, v2")
e("s_lshl_b32 s11, s3, 6")
e("v_add_u32 v2, s11, v2")
e("s_waitcnt vmcnt(0)")
e("s_barrier")
tr_frags(128, [2], 4, 2, 16 * 1040, 32, 2 * 1040)
e("s_waitcnt lgkmcnt(0)")
stamp(4)
diag(10)
def _a():
    e("s_lshl_b32 s10, s48, 9")
    e(f"s_add_u32 s10, s10, {PS3:#x}")
    e("v_lshl_add_u32 v20, v1, 4, s10")
wave0_multi_barrier(_a, 0xffffffff, 0, 16)
stamp(1)
stamp_s9(16)
sweep_pending(sweep8_list(52) + [(f"global_load_dwordx4 v[192:195], v54, {sp(WS)} sc1", 192)], 196)
stamp(3)
stamp_s9(17)
e("v_mov_b32 v196, v192")
wave_red("v_max_f32", 196, 197, half=True)
e("v_sub_f32 v192, v192, v196")
e("v_exp_f32 v192, v192")
nop(0)
e("v_mul_f32 v196, v192, v193")
wave_red("v_add_f32", 196, 197, half=True)
e("v_rcp_f32 v196, v196")
nop(0)
e("v_mul_f32 v192, v192, v196")
for i in range(8):
    e(f"ds_bpermute_b32 {v(200+i)}, v55, v192 offset:{4*i}")
for i in range(8):
    u = 16 + 4 * i
    e(f"s_waitcnt lgkmcnt({7-i})")
    for (src, a) in ((u, 208), (u + 1, 210)):
        e(f"v_lshlrev_b32 v196, 16, {v(src)}")
        e(f"v_and_b32 v197, 0xffff0000, {v(src)}")
        if i == 0:
            e(f"v_mul_f32 {v(a)}, {v(200+i)}, v196")
            e(f"v_mul_f32 {v(a+1)}, {v(200+i)}, v197")
        else:
            e(f"v_fmac_f32 {v(a)}, {v(200+i)}, v196")
            e(f"v_fmac_f32 {v(a+1)}, {v(200+i)}, v197")
red4_sg(208)
e("v_cvt_pk_bf16_f32 v208, v208, v208")
e("ds_write_b16 v56, v208")
e("s_waitcnt lgkmcnt(0)")
stamp(5)
e("s_barrier")
stamp(6)
e("s_lshl_b32 s10, s48, 5")
e("s_lshl_b32 s11, s49, 4")
e("s_add_u32 s10, s10, s11")
e(f"s_add_u32 s10, s10, {PS4:#x}")
presignal(10, 10, 59)
for j in range(16):
    e(f"ds_read_b128 {v(192+4*j,4)}, v57 offset:{64*j}")
for j in range(16):
    e(f"s_waitcnt lgkmcnt({15-j})")
    c = "0" if j == 0 else "v[16:19]"
    e(f"v_mfma_f32_16x16x32_bf16 v[16:19], {v(192+4*j,4)}, {v(64+4*j,4)}, {c}")
nop(7)
e("v_cvt_pk_bf16_f32 v16, v16, v16")
set_exec(0xffff, 0)
e("ds_write_b16 v58, v16")
full_exec()
e("s_waitcnt lgkmcnt(0)")
e("s_barrier")
stamp(7)
for j in range(4):
    e(f"ds_read_b128 {v(192+4*j,4)}, v57 offset:{1024+64*j}")
for j in range(4):
    e(f"s_waitcnt lgkmcnt({3-j})")
    for t in range(2):
        c = "0" if j == 0 else v(24 + 4 * t, 4)
        e(f"v_mfma_f32_16x16x32_bf16 {v(24+4*t,4)}, {v(192+4*j,4)}, {v(128+(j*2+t)*4,4)}, {c}")
nop(7)
e("v_cvt_pk_bf16_f32 v24, v24, v28")
set_exec(0xffff, 0)
e("ds_write_b32 v60, v24")
full_exec()
e("s_waitcnt lgkmcnt(0)")
e("s_barrier")
sk = uid("a")
e("s_cmp_lg_u32 s3, 0")
e(f"s_cbranch_scc1 {sk}")
e("ds_read_b32 v16, v61")
e("ds_read_b32 v17, v61 offset:64")
e(f"v_mov_b32 v18, {T0}")
e(f"v_mov_b32 v19, {T1}")
e("s_waitcnt lgkmcnt(0)")
e(f"global_store_dwordx4 v59, v[16:19], {sp(WS)} sc1")
lab(sk)
stamp(2)
diag(6)

lab("L_end")
e("s_endpgm")
L.append('.section .rodata,"a"')
L.append(".p2align 6")
L.append(f".amdhsa_kernel {NAME}_kernel")
L.append("  .amdhsa_next_free_vgpr 256")
L.append("  .amdhsa_next_free_sgpr 102")
L.append("  .amdhsa_accum_offset 256")
L.append("  .amdhsa_group_segment_fixed_size 0")
L.append("  .amdhsa_kernarg_size 128")
L.append("  .amdhsa_user_sgpr_count 2")
L.append("  .amdhsa_user_sgpr_kernarg_segment_ptr 1")
L.append("  .amdhsa_system_sgpr_workgroup_id_x 1")
L.append(".end_amdhsa_kernel")
open(OUTF, "w").write("\n".join(L) + "\n")
print("wrote", OUTF, len(L), "lines")
```
